```python
import torch

def _softmax(x, axis=-1):
    return torch.softmax(x, dim=axis)
def _gelu(x):
    return torch.nn.functional.gelu(x, approximate="tanh")
def _silu(x):
    return torch.nn.functional.silu(x)
def _sigmoid(x):
    return torch.sigmoid(x)
def _layernorm(x, axis=-1, eps=1e-5):
    m = x.mean(dim=axis, keepdim=True)
    v = x.var(dim=axis, keepdim=True, unbiased=False)
    return (x - m) / torch.sqrt(v + eps)
def _scatter_add(tgt, idx, src, axis=0):
    return tgt.clone().index_add_(axis, idx, src)
def _segment_sum(src, seg, n):
    out = torch.zeros((n,) + src.shape[1:], dtype=src.dtype)
    return out.index_add_(0, seg, src)
def _pad(x, pw):
    flat = tuple(v for pair in reversed(pw) for v in pair)
    return torch.nn.functional.pad(x, flat)

kernel_name = 'concat_heads__mha_block_cached__gqa_block_cached__decode'

def setup_inputs():

    _w = (lambda a: (lambda t: t.to(torch.bfloat16) if t.is_floating_point() else t)(torch.as_tensor(a)))
    def _A_setup():
        B, Sq, D = 2, 1, 512
        H, Sk, Dh = 32, 16384, 128
        return {
            "x": _w((lambda *s: torch.randn(*s, dtype=torch.bfloat16) * 0.8)(B, Sq, D)),
            "k_cache": _w((lambda *s: torch.randn(*s, dtype=torch.bfloat16) * 0.8)(B, H, Sk, Dh)),
            "v_cache": _w((lambda *s: torch.randn(*s, dtype=torch.bfloat16) * 0.05)(B, H, Sk, Dh)),
            "wq": _w((lambda *s: torch.randn(*s, dtype=torch.bfloat16) * 0.8)(D, H * Dh) * (D ** -0.5)),
            "wo": _w((lambda *s: torch.randn(*s, dtype=torch.bfloat16) * 0.05)(H * Dh, D) * ((H * Dh) ** -0.5)),
        }
    _A_in = _A_setup()

    def _B_setup():
        B, Sq, D = 2, 1, 512
        Hq, Hkv, Sk, Dh = 32, 8, 16384, 128
        assert Hq % Hkv == 0, (Hq, Hkv)
        return {
            "x": _w((lambda *s: torch.randn(*s, dtype=torch.bfloat16) * 0.8)(B, Sq, D)),
            "k_cache": _w((lambda *s: torch.randn(*s, dtype=torch.bfloat16) * 0.8)(B, Hkv, Sk, Dh)),
            "v_cache": _w((lambda *s: torch.randn(*s, dtype=torch.bfloat16) * 0.05)(B, Hkv, Sk, Dh)),
            "wq": _w((lambda *s: torch.randn(*s, dtype=torch.bfloat16) * 0.8)(D, Hq * Dh) * (D ** -0.5)),
            "wo": _w((lambda *s: torch.randn(*s, dtype=torch.bfloat16) * 0.05)(Hq * Dh, D) * ((Hq * Dh) ** -0.5)),
        }
    _B_in = _B_setup()

    return {
        "A_x": _A_in["x"],
        "A_k_cache": _A_in["k_cache"],
        "A_v_cache": _A_in["v_cache"],
        "A_wq": _A_in["wq"],
        "A_wo": _A_in["wo"],
        "B_x": _B_in["x"],
        "B_k_cache": _B_in["k_cache"],
        "B_v_cache": _B_in["v_cache"],
        "B_wq": _B_in["wq"],
        "B_wo": _B_in["wo"],
    }

def reference(A_x, A_k_cache, A_v_cache, A_wq, A_wo, B_x, B_k_cache, B_v_cache, B_wq, B_wo):
    def _A_ref(x, k_cache, v_cache, wq, wo):
        B, Sq, D = x.shape
        H, Dh = 32, 128
        q = (lambda x, *d: x.permute(*d))((x @ wq).reshape(B, Sq, H, Dh), 0, 2, 1, 3)
        scores = torch.einsum("bhqd,bhkd->bhqk", q, k_cache) * (Dh ** -0.5)
        p = _softmax(scores, axis=-1)
        o = torch.einsum("bhqk,bhkd->bhqd", p, v_cache)
        return (lambda x, *d: x.permute(*d))(o, 0, 2, 1, 3).reshape(B, Sq, H * Dh) @ wo

    def _B_ref(x, k_cache, v_cache, wq, wo):
        B, Sq, D = x.shape
        Hq, Dh = 32, 128
        Hkv = k_cache.shape[1]
        rep = Hq // Hkv
        q = (lambda x, *d: x.permute(*d))((x @ wq).reshape(B, Sq, Hq, Dh), 0, 2, 1, 3)
        k = (lambda x, n, axis: torch.repeat_interleave(x, n, dim=axis))(k_cache, rep, axis=1)
        v = (lambda x, n, axis: torch.repeat_interleave(x, n, dim=axis))(v_cache, rep, axis=1)
        scores = torch.einsum("bhqd,bhkd->bhqk", q, k) * (Dh ** -0.5)
        p = _softmax(scores, axis=-1)
        o = torch.einsum("bhqk,bhkd->bhqd", p, v)
        return (lambda x, *d: x.permute(*d))(o, 0, 2, 1, 3).reshape(B, Sq, Hq * Dh) @ wo

    a = _A_ref(A_x, A_k_cache, A_v_cache, A_wq, A_wo)
    b = _B_ref(B_x, B_k_cache, B_v_cache, B_wq, B_wo)
    return torch.concatenate([a, b], axis=-1)
```

```python
import sys, math, struct
NAME = "concat_heads__mha_block_cached__gqa_block_cached__decode"

HEADER = """; Kernarg layout for this problem (104 bytes, ptrs only, base s[0:1]):
"""

def f2u(x): return struct.unpack("<I", struct.pack("<f", x))[0]

WSB  = 0x100000
EPOCH = WSB
QB   = WSB + 0x008000
PBO  = WSB + 0x040000
PBML = WSB + 0x0C0000
YB   = WSB + 0x100000
YA   = WSB + 0x140000
MLA  = WSB + 0x1C0000
WSSZ = 0x400000
L_QA   = 0x0000
L_QB   = 0x1000
L_FLAG = 0x1400
L_RECB = 0x1800; RECB = 2560
L_SCR  = 0x4000
L_RECA = 0x4400; RECA = 1024
L_MA   = 0x5400
L_RED  = 0x5440
LDS_BYTES = 0x5800

def gen(inf=5, inf0=5, NA1=6, st1=260, st2=68, wpol="nt", stamps=0, spin=1 << 20, exp=0, slp=64, wsoff=0, T2=4, T4=2, T5=6, J1=5, J4=6):
    L = []
    def e(s): L.append("  " + s)
    def lab(s): L.append(s + ":")
    def c(s): L.append("  ; " + s)
    uid = [0]
    def u():
        uid[0] += 1; return uid[0]
    SC = f2u(128 ** -0.5 * math.log2(math.e))
    NA2 = 16 - NA1

    L.append(HEADER.rstrip("\n"))
    L.append(f"; @launch grid=(256,1,1) block=(512,1,1) lds={LDS_BYTES}")
    L.append('.amdgcn_target "amdgcn-amd-amdhsa--gfx950"')
    L.append(".text"); L.append(f".globl {NAME}_kernel"); L.append(".p2align 8")
    L.append(f".type {NAME}_kernel,@function"); L.append(f"{NAME}_kernel:")

    def stamp(k):
        if stamps: e(f"s_memrealtime s[{64+2*k}:{65+2*k}]")

    e("s_cmp_ge_u32 s2, 256"); e("s_cbranch_scc1 L_end")
    e("s_load_dwordx16 s[4:19], s[0:1], 0")
    e("s_load_dwordx8 s[20:27], s[0:1], 64")
    e("s_load_dwordx2 s[28:29], s[0:1], 96")
    if stamps: e("s_memrealtime s[60:61]")
    e("v_lshrrev_b32 v1, 6, v0")
    e("s_and_b32 s30, s2, 7")
    e("v_readfirstlane_b32 s3, v1")
    e("s_lshr_b32 s31, s2, 3")
    e("v_and_b32 v0, 63, v0")
    e("s_lshl_b32 s32, s30, 2"); e("s_lshr_b32 s33, s31, 3"); e("s_add_u32 s32, s32, s33")
    e("s_bfe_u32 s34, s31, 0x10002")
    e("s_cmp_ge_u32 s3, 4"); e("s_cbranch_scc1 L_helper")

    def load_epoch():
        e(f"s_add_u32 s56, s28, {(wsoff<<20) + EPOCH:#x}"); e("s_addc_u32 s57, s29, 0")
        e("s_load_dword s55, s[56:57], 0")
    def tag_consts():
        e("s_add_u32 s55, s55, 0x04030201")
        for k in range(4): e(f"s_mov_b32 s{56+k}, {0x07060500 + k:#x}")
        e("s_mov_b32 s76, 0x0c0c0400"); e("s_mov_b32 s77, 0x0c040100"); e("s_mov_b32 s78, 0x04020100")
    def put_tag(r, vn):
        for k in range(4): e(f"v_perm_b32 v{r+k}, v{r+k}, v{vn}, s{56+k}")
    def get_tag(t, r):
        e(f"v_perm_b32 v{t}, v{r+1}, v{r}, s76"); e(f"v_perm_b32 v{t}, v{r+2}, v{t}, s77"); e(f"v_perm_b32 v{t}, v{r+3}, v{t}, s78")
    RING = 128
    def issue(p):
        r = RING + 4 * p; j = p % 8
        if j < 4: e(f"buffer_load_dwordx4 v[{r}:{r+3}], v2, s[36:39], s44 offen offset:{j*1024} nt")
        else:     e(f"buffer_load_dwordx4 v[{r}:{r+3}], v3, s[40:43], s44 offen offset:{(j-4)*1024} nt")
        if j == 7:
            e("s_add_u32 s44, s44, s45"); e("s_and_b32 s44, s44, 0x3fffff")
    def set_unit(kb, vb, unit):
        e(f"s_lshl_b32 s50, s{unit}, 22")
        e(f"s_add_u32 s36, s{kb}, s50"); e(f"s_addc_u32 s37, s{kb+1}, 0")
        e(f"s_add_u32 s40, s{vb}, s50"); e(f"s_addc_u32 s41, s{vb+1}, 0")
    c("K lane offset: key=(l>>2)&3, d=(l>>4)*32+(l&3)*8 ; V lane offset: l*16")
    e("v_and_b32 v2, 3, v0"); e("v_lshlrev_b32 v2, 4, v2")
    e("v_bfe_u32 v4, v0, 2, 2"); e("v_lshl_add_u32 v2, v4, 8, v2")
    e("v_lshrrev_b32 v5, 4, v0"); e("v_lshl_add_u32 v2, v5, 6, v2")
    e("v_lshlrev_b32 v3, 4, v0")
    e("s_lshl_b32 s35, s34, 5"); e("s_add_u32 s35, s35, s32")
    e("s_and_b32 s44, s31, 3"); e("s_lshl_b32 s44, s44, 2"); e("s_add_u32 s44, s44, s3"); e("s_lshl_b32 s44, s44, 12")
    e(f"s_mul_i32 s50, s35, {st1*1024}"); e("s_add_u32 s44, s44, s50"); e("s_and_b32 s44, s44, 0x3fffff")
    e("s_mov_b32 s45, 0x10000")
    e("s_mov_b32 s38, 0x400000"); e("s_mov_b32 s39, 0x20000")
    e("s_mov_b32 s42, 0x400000"); e("s_mov_b32 s43, 0x20000")
    e("s_waitcnt lgkmcnt(0)")
    set_unit(6, 8, 35)
    for p in range(inf0): issue(p)
    load_epoch()
    c("constants while the first loads fly")
    e("v_and_b32 v6, 1, v0"); e("v_lshlrev_b32 v6, 4, v6"); e("v_mov_b32 v7, 0xffff"); e("v_lshlrev_b32 v6, v6, v7")
    e("v_and_b32 v7, 2, v0"); e("v_cmp_eq_u32 vcc, 0, v7")
    e(f"s_mov_b32 s48, {SC:#x}")
    e("v_mov_b32 v8, 0xff800000")
    e("v_cndmask_b32 v4, 0, v6, vcc")
    e("v_xor_b32 v5, v4, v6")
    e("v_mov_b32 v9, v8"); e("v_mov_b32 v10, 0")
    e("v_mov_b32 v11, v8"); e("v_mov_b32 v12, v8"); e("v_mov_b32 v13, 0")
    for r in range(40, 56): e(f"v_mov_b32 v{r}, 0")
    c("LDS address of q partials: bA*512 + (g*32 + (l&3)*8)*4")
    e("v_lshrrev_b32 v6, 4, v0"); e("v_lshlrev_b32 v6, 7, v6")
    e("v_and_b32 v7, 3, v0"); e("v_lshl_add_u32 v6, v7, 5, v6")
    e("s_lshl_b32 s50, s34, 9"); e("v_add_u32 v6, s50, v6")
    e("v_bfe_u32 v7, v0, 2, 2")
    for p in range(inf0, 32):
        e(f"s_waitcnt vmcnt({inf0-1})"); issue(p)
    stamp(0)
    e("s_waitcnt lgkmcnt(0)")
    tag_consts()
    e(f"v_mov_b32 v14, {L_FLAG}"); e("v_mov_b32 v15, 1")
    e("s_barrier")
    for w in range(4):
        e(f"ds_read_b128 v[{96+8*w}:{99+8*w}], v6 offset:{L_QA + w*1024}")
        e(f"ds_read_b128 v[{100+8*w}:{103+8*w}], v6 offset:{L_QA + w*1024 + 16}")
    e("s_waitcnt lgkmcnt(4)")
    for k in range(8): e(f"v_add_f32 v{96+k}, v{96+k}, v{104+k}")
    e("s_waitcnt lgkmcnt(0)")
    for k in range(8): e(f"v_add_f32 v{112+k}, v{112+k}, v{120+k}")
    for k in range(8): e(f"v_add_f32 v{96+k}, v{96+k}, v{112+k}")
    for k in range(4): e(f"v_cvt_pk_bf16_f32 v{104+k}, v{96+2*k}, v{97+2*k}")
    for s in range(4):
        e(f"v_cmp_eq_u32 vcc, {s}, v7"); e("s_nop 1")
        for k in range(4): e(f"v_cndmask_b32 v{16+4*s+k}, 0, v{104+k}, vcc")
    e("s_mov_b32 s46, 0")
    e(f"s_mov_b32 s47, {NA1}")
    stamp(1)

    def wi(p, on):
        if on:
            e(f"s_waitcnt vmcnt({inf-1})"); issue(p)
    def need(p, on):
        if not on and p >= 32 - inf: e(f"s_waitcnt vmcnt({31-p})")
    def diag(t, d):
        e(f"v_mov_b32_dpp v{t}, v{d} quad_perm:[0,0,0,0] row_mask:0xf bank_mask:0xf")
        for k in range(1, 4):
            e(f"v_add_f32_dpp v{t}, v{d+k}, v{t} quad_perm:[{k},{k},{k},{k}] row_mask:0xf bank_mask:0xf")
    def xrow_max(v, t):
        e(f"v_mov_b32 v{t}, v{v}"); e("s_nop 1"); e(f"v_permlane16_swap_b32 v{v}, v{t}"); e("s_nop 1")
        e(f"v_max_f32 v{v}, v{v}, v{t}")
        e(f"v_mov_b32 v{t}, v{v}"); e("s_nop 1"); e(f"v_permlane32_swap_b32 v{v}, v{t}"); e("s_nop 1")
        e(f"v_max_f32 v{v}, v{v}, v{t}")
    def pv(b0, O, on):
        for j in range(4):
            r = RING + 4 * (b0 + 4 + j)
            need(b0 + 4 + j, on)
            if exp & 1 and O == 40:
                wi(b0 + 4 + j, on); continue
            e(f"v_mfma_f32_16x16x16_bf16 v[{O}:{O+3}], v[{80+2*j}:{81+2*j}], v[{r}:{r+1}], v[{O}:{O+3}]")
            e(f"v_mfma_f32_16x16x16_bf16 v[{O+4}:{O+7}], v[{80+2*j}:{81+2*j}], v[{r+2}:{r+3}], v[{O+4}:{O+7}]")
            wi(b0 + 4 + j, on)
    def step_mha(b0, on):
        for j in range(4):
            r = RING + 4 * (b0 + j)
            need(b0 + j, on)
            if not exp & 4: e(f"v_mfma_f32_16x16x32_bf16 v[56:59], v[{r}:{r+3}], v[{16+4*j}:{19+4*j}], {'v[56:59]' if j else '0'}")
            wi(b0 + j, on)
        e(f"s_nop {5 if on else 7}")
        diag(72, 56)
        n = u()
        e("v_cmp_gt_f32 vcc, v72, v8"); e(f"s_cbranch_vccz L_k{n}")
        c("running max grew: rescale")
        e("v_max_f32_dpp v88, v72, v72 row_ror:4 row_mask:0xf bank_mask:0xf"); e("s_nop 1")
        e("v_max_f32_dpp v88, v88, v88 row_ror:8 row_mask:0xf bank_mask:0xf")
        xrow_max(88, 89)
        e("v_max_f32 v8, v8, v88"); e("v_mul_f32 v89, s48, v8"); e("v_sub_f32 v88, v9, v89"); e("v_exp_f32 v88, v88")
        e("v_mov_b32 v9, v89"); e("v_mul_f32 v10, v10, v88")
        for k in range(8): e(f"v_mul_f32 v{40+k}, v{40+k}, v88")
        lab(f"L_k{n}")
        e("v_fma_f32 v72, v72, s48, -v9"); e("v_exp_f32 v72, v72"); e("s_nop 0")
        e("v_cvt_pk_bf16_f32 v76, v72, v72"); e("v_add_f32 v10, v10, v72"); e("s_nop 0")
        for j in range(4):
            if exp & 2: continue
            e(f"v_and_b32_dpp v{80+2*j}, v76, v4 row_newbcast:{4*j} row_mask:0xf bank_mask:0xf")
            e(f"v_and_b32_dpp v{81+2*j}, v76, v5 row_newbcast:{4*j} row_mask:0xf bank_mask:0xf")
        pv(b0, 40, on)
    def step_gqa(b0):
        for j in range(4):
            r = RING + 4 * (b0 + j)
            e(f"v_mfma_f32_16x16x32_bf16 v[{56+4*j}:{59+4*j}], v[{r}:{r+3}], v[32:35], 0")
            wi(b0 + j, True)
        for j in range(4): diag(72 + j, 56 + 4 * j)
        n = u()
        e("v_max3_f32 v88, v72, v73, v74"); e("v_max_f32 v88, v88, v75")
        e("v_cmp_gt_f32 vcc, v88, v11"); e(f"s_cbranch_vccz L_k{n}")
        c("running max grew: rescale")
        xrow_max(88, 89)
        e("v_max_f32 v11, v11, v88"); e("v_mul_f32 v89, s48, v11"); e("v_sub_f32 v88, v12, v89"); e("v_exp_f32 v88, v88")
        e("v_mov_b32 v12, v89"); e("v_mul_f32 v13, v13, v88")
        for k in range(4):
            e(f"v_mov_b32_dpp v89, v88 row_newbcast:{4*k} row_mask:{1<<k:#x} bank_mask:0xf")
        for k in range(8): e(f"v_mul_f32 v{48+k}, v{48+k}, v89")
        lab(f"L_k{n}")
        for j in range(4): e(f"v_fma_f32 v{72+j}, v{72+j}, s48, -v12")
        for j in range(4): e(f"v_exp_f32 v{72+j}, v{72+j}")
        e("s_nop 0")
        for j in range(4): e(f"v_cvt_pk_bf16_f32 v{76+j}, v{72+j}, v{72+j}")
        for j in range(4):
            e(f"v_and_b32 v{80+2*j}, v{76+j}, v4"); e(f"v_and_b32 v{81+2*j}, v{76+j}, v5")
        for j in range(4): e(f"v_add_f32 v13, v13, v{72+j}")
        pv(b0, 48, True)

    lab("L_mha")
    e("s_sub_u32 s50, s47, s46")
    e("s_cmp_lg_u32 s50, 1"); e("s_cbranch_scc1 L_mha_go")
    c("issue side moves on to the B unit")
    e("s_mov_b32 s49, s44")
    e("s_lshr_b32 s51, s31, 4"); e("s_lshl_b32 s51, s51, 3"); e("s_add_u32 s51, s51, s30")
    set_unit(16, 18, 51)
    e("s_and_b32 s44, s31, 15"); e("s_lshl_b32 s44, s44, 2"); e("s_add_u32 s44, s44, s3"); e("s_lshl_b32 s44, s44, 12")
    e(f"s_mul_i32 s50, s51, {st2*1024}"); e("s_add_u32 s44, s44, s50"); e("s_and_b32 s44, s44, 0x3fffff")
    e("s_mov_b32 s45, 0x40000")
    lab("L_mha_go")
    e("ds_add_u32 v14, v15 offset:8")
    for k in range(4): step_mha(8 * k, True)
    e("s_sub_u32 s47, s47, 1"); e("s_cmp_lg_u32 s47, 0"); e("s_cbranch_scc1 L_mha")
    e("s_cmp_lg_u32 s46, 0"); e("s_cbranch_scc1 L_drain")
    stamp(2)
    e(f"s_mov_b32 s50, {spin}")
    lab("L_wqb")
    e("ds_read_b32 v7, v14"); e(f"ds_read_b128 v[32:35], v3 offset:{L_QB}")
    e("s_waitcnt lgkmcnt(0)")
    e("v_readfirstlane_b32 s51, v7"); e("s_sub_u32 s50, s50, 1")
    e("s_cbranch_scc1 L_wqb_done")
    e("s_cmp_eq_u32 s51, 0"); e("s_cbranch_scc1 L_wqb")
    lab("L_wqb_done")
    e("s_mov_b32 s47, 4")
    lab("L_gqa")
    e("s_cmp_lg_u32 s47, 1"); e("s_cbranch_scc1 L_gqa_go")
    c("issue side returns to the A unit")
    set_unit(6, 8, 35)
    e("s_mov_b32 s44, s49"); e("s_mov_b32 s45, 0x10000")
    lab("L_gqa_go")
    e("ds_add_u32 v14, v15 offset:8")
    for k in range(4): step_gqa(8 * k)
    e("s_sub_u32 s47, s47, 1"); e("s_cmp_lg_u32 s47, 0"); e("s_cbranch_scc1 L_gqa")
    c("hand the B partial of this wave to the agent through LDS")
    e(f"s_mul_i32 s50, s3, {RECB}"); e(f"s_add_u32 s50, s50, {L_RECB}")
    e("v_lshl_add_u32 v6, v0, 5, s50"); e("v_lshl_add_u32 v7, v0, 2, s50")
    e("s_nop 4")
    e("ds_write_b128 v6, v[48:51]"); e("ds_write_b128 v6, v[52:55] offset:16")
    e("ds_write_b32 v7, v12 offset:2048"); e("ds_write_b32 v7, v13 offset:2304")
    e("s_waitcnt lgkmcnt(0)")
    e("ds_add_u32 v14, v15 offset:4")
    e("s_mov_b32 s46, 64"); e(f"s_mov_b32 s47, {NA2-1}")
    stamp(3)
    e("s_branch L_mha")
    lab("L_drain")
    stamp(4)
    for k in range(4): step_mha(8 * k, False)
    c("A partial of this wave -> LDS")
    e("v_add_f32_dpp v10, v10, v10 row_ror:4 row_mask:0xf bank_mask:0xf")
    e(f"s_lshl_b32 s50, s3, 10"); e(f"s_add_u32 s50, s50, {L_RECA}")
    e("v_add_f32_dpp v10, v10, v10 row_ror:8 row_mask:0xf bank_mask:0xf")
    e("v_lshl_add_u32 v6, v0, 5, s50"); e("v_lshl_add_u32 v7, v0, 2, s50")
    e(f"s_lshl_b32 s50, s3, 2"); e("v_mov_b32 v14, s50")
    e("ds_write_b32 v7, v10 offset:512")
    e(f"ds_write_b32 v14, v9 offset:{L_MA}")
    e("s_mov_b64 exec, 0xffff")
    e("ds_write_b128 v6, v[40:43]"); e("ds_write_b128 v6, v[44:47] offset:16")
    e("s_mov_b64 exec, -1")
    e(f"s_add_u32 s36, s28, {wsoff<<20:#x}"); e("s_addc_u32 s37, s29, 0"); e(f"s_mov_b32 s38, {WSSZ:#x}")
    e("s_waitcnt lgkmcnt(0)")
    stamp(5)
    e("s_barrier")
    e("s_cmp_lg_u32 s3, 0"); e("s_cbranch_scc1 L_red")
    c("wave 0 publishes (M, L) of the workgroup: lane = (w, row)")
    e("v_bfe_u32 v6, v0, 2, 2"); e("v_and_b32 v7, 3, v0"); e("v_lshlrev_b32 v7, 6, v7")
    e("v_lshl_add_u32 v7, v6, 10, v7"); e("v_lshlrev_b32 v6, 2, v6")
    e(f"ds_read_b32 v16, v6 offset:{L_MA}"); e(f"ds_read_b32 v17, v7 offset:{L_RECA+512}")
    e("s_lshl_b32 s50, s35, 2"); e("s_and_b32 s51, s31, 3"); e("s_add_u32 s50, s50, s51")
    e("s_lshl_b32 s50, s50, 7"); e(f"s_add_u32 s50, s50, {MLA:#x}")
    e("v_mov_b32 v22, 0"); e("v_mov_b32 v23, s55")
    e("s_waitcnt lgkmcnt(0)")
    e("v_max_f32_dpp v20, v16, v16 row_ror:4 row_mask:0xf bank_mask:0xf"); e("s_nop 1")
    e("v_max_f32_dpp v20, v20, v20 row_ror:8 row_mask:0xf bank_mask:0xf")
    e("v_sub_f32 v16, v16, v20"); e("v_exp_f32 v16, v16"); e("s_nop 0"); e("v_mul_f32 v21, v16, v17"); e("s_nop 1")
    for d in ("quad_perm:[1,0,3,2]", "quad_perm:[2,3,0,1]", "row_ror:4", "row_ror:8"):
        e(f"v_add_f32_dpp v21, v21, v21 {d} row_mask:0xf bank_mask:0xf"); e("s_nop 1")
    e("s_mov_b64 exec, 0xff")
    e("buffer_store_dwordx4 v[20:23], v3, s[36:39], s50 offen sc1")
    e("s_mov_b64 exec, -1")
    lab("L_red")
    e("s_cmp_ge_u32 s2, 32"); e("s_cbranch_scc1 L_sdone")
    c("reducer: b = id>>4, one 128-byte line of every slot; wave = 8 heads; lane = (head, granule)")
    e("s_lshr_b32 s50, s2, 4"); e("s_lshl_b32 s50, s50, 5"); e("s_lshl_b32 s51, s3, 3"); e("s_add_u32 s50, s50, s51")
    e("v_lshrrev_b32 v6, 3, v0"); e("v_add_u32 v6, s50, v6")
    e("v_lshlrev_b32 v7, 9, v6")
    e("v_lshlrev_b32 v6, 13, v6"); e("v_and_b32 v14, 7, v0"); e("v_lshl_add_u32 v6, v14, 4, v6")
    e("s_and_b32 s51, s2, 15"); e("s_lshl_b32 s51, s51, 7")
    e(f"s_add_u32 s52, s51, {YA:#x}"); e("s_add_u32 s53, s52, 4096"); e(f"s_mov_b32 s54, {MLA:#x}")
    e(f"s_mov_b32 s50, {spin}")
    lab("L_rpoll")
    for q in range(4): e(f"buffer_load_dwordx4 v[{40+4*q}:{43+4*q}], v7, s[36:39], s54 offen offset:{128*q} sc1")
    for q in range(4): e(f"buffer_load_dwordx4 v[{24+4*q}:{27+4*q}], v6, s[36:39], s{52+q//2} offen offset:{2048*(q%2)} sc1")
    e("s_mov_b64 s[46:47], exec")
    for q in range(4):
        e(f"s_waitcnt vmcnt({3-q})"); get_tag(16 + q, 24 + 4 * q)
    for q in range(4):
        e(f"v_cmpx_eq_u32 vcc, s55, v{43+4*q}"); e(f"v_cmpx_eq_u32 vcc, s55, v{16+q}")
    e("s_sub_u32 s50, s50, 1"); e("s_cbranch_scc1 L_rdone")
    e("s_andn2_b64 exec, s[46:47], vcc"); e("s_cbranch_scc1 L_rpoll")
    lab("L_rdone")
    e("s_mov_b64 exec, -1")
    e("v_max3_f32 v15, v40, v44, v48"); e("v_max_f32 v15, v15, v52")
    for q in range(4): e(f"v_sub_f32 v{40+4*q}, v{40+4*q}, v15")
    for q in range(4): e(f"v_exp_f32 v{40+4*q}, v{40+4*q}")
    e("s_nop 0")
    e("v_mul_f32 v15, v40, v41")
    for q in range(1, 4): e(f"v_fmac_f32 v15, v{40+4*q}, v{41+4*q}")
    e("v_rcp_f32 v15, v15")
    for k in range(4): e(f"v_mul_f32 v{24+k}, v40, v{24+k}")
    for q in range(1, 4):
        for k in range(4): e(f"v_fmac_f32 v{24+k}, v{40+4*q}, v{24+4*q+k}")
    for k in range(4): e(f"v_mul_f32 v{24+k}, v15, v{24+k}")
    def xlane_sum4(a):
        e("s_nop 1")
        e(f"v_permlane32_swap_b32 v{a}, v{a+1}"); e(f"v_permlane32_swap_b32 v{a+2}, v{a+3}"); e("s_nop 1")
        e(f"v_add_f32 v{a}, v{a}, v{a+1}"); e(f"v_add_f32 v{a+2}, v{a+2}, v{a+3}"); e("s_nop 1")
        e(f"v_permlane16_swap_b32 v{a}, v{a+2}"); e("s_nop 1")
        e(f"v_add_f32 v{a}, v{a}, v{a+2}"); e("s_nop 1")
        e(f"v_add_f32_dpp v{a}, v{a}, v{a} row_ror:8 row_mask:0xf bank_mask:0xf")
    def comp_col(dst, t, sh):
        e(f"v_and_b32 v{dst}, 7, v0"); e(f"v_lshlrev_b32 v{dst}, {sh}, v{dst}")
        e(f"v_bfe_u32 v{t}, v0, 4, 1"); e(f"v_lshl_add_u32 v{dst}, v{t}, 1, v{dst}")
        e(f"v_lshrrev_b32 v{t}, 5, v0"); e(f"v_add_u32 v{dst}, v{dst}, v{t}")
    def out_base(d, t):
        e(f"s_bfe_u32 s{d}, s2, 0x10004"); e(f"s_lshl_b32 s{d}, s{d}, 11")
        e(f"s_bfe_u32 s{t}, s2, 0x20002"); e(f"s_lshl_b32 s{t}, s{t}, 8"); e(f"s_add_u32 s{d}, s{d}, s{t}")
        e(f"s_and_b32 s{t}, s2, 1"); e(f"s_lshl_b32 s{t}, s{t}, 7"); e(f"s_add_u32 s{d}, s{d}, s{t}")
        e(f"s_and_b32 s{t}, s2, 2"); e(f"s_lshl_b32 s{t}, s{t}, 2"); e(f"s_add_u32 s{d}, s{d}, s{t}")
    comp_col(6, 7, 2)
    e("s_lshl_b32 s50, s3, 7"); e("v_lshl_add_u32 v6, v6, 2, s50")
    xlane_sum4(24)
    e(f"ds_write_b32 v6, v24 offset:{L_RED}")
    e("v_lshlrev_b32 v7, 3, v0")
    e("s_mov_b32 s40, s24"); e("s_mov_b32 s41, s25"); e("s_mov_b32 s42, 4096")
    e("s_waitcnt lgkmcnt(0)")
    e("s_barrier")
    e("s_cmp_lg_u32 s3, 0"); e("s_cbranch_scc1 L_sdone")
    e("s_mov_b64 exec, 0xffff")
    for w in range(4): e(f"ds_read_b64 v[{16+2*w}:{17+2*w}], v7 offset:{L_RED + w*128}")
    out_base(50, 51)
    e("v_lshrrev_b32 v6, 1, v0"); e("v_lshlrev_b32 v6, 4, v6"); e("v_and_b32 v7, 1, v0"); e("v_lshl_add_u32 v6, v7, 2, v6")
    e("s_waitcnt lgkmcnt(0)")
    e("v_add_f32 v16, v16, v18"); e("v_add_f32 v17, v17, v19"); e("v_add_f32 v20, v20, v22"); e("v_add_f32 v21, v21, v23")
    e("v_add_f32 v16, v16, v20"); e("v_add_f32 v17, v17, v21")
    e("v_cvt_pk_bf16_f32 v16, v16, v17")
    e("buffer_store_dword v16, v6, s[40:43], s50 offen")
    e("s_mov_b64 exec, -1")
    lab("L_sdone")
    if stamps:
        e("s_cmp_lg_u32 s3, 0"); e("s_cbranch_scc1 L_end")
        e("s_waitcnt vmcnt(0)")
        e("s_memrealtime s[62:63]"); e("s_getreg_b32 s50, hwreg(HW_REG_XCC_ID)"); e("s_waitcnt lgkmcnt(0)")
        e("s_mov_b64 exec, 1"); e("s_mov_b32 s36, s28"); e("s_mov_b32 s37, s29")
        for k in range(4): e(f"v_mov_b32 v{16+k}, s{60+k}")
        e("s_lshl_b32 s51, s2, 4"); e("buffer_store_dwordx4 v[16:19], off, s[36:39], s51")
        e("v_mov_b32 v20, s50"); e("s_lshl_b32 s51, s2, 2"); e("s_add_u32 s51, s51, 0x10000")
        e("buffer_store_dword v20, off, s[36:39], s51")
        for k in range(12): e(f"v_mov_b32 v{24+k}, s{64+k}")
        e("s_lshl_b32 s51, s2, 7"); e("s_add_u32 s51, s51, 0x20000")
        for k in range(3): e(f"buffer_store_dwordx4 v[{24+4*k}:{27+4*k}], off, s[36:39], s51 offset:{16*k}")
    e("s_endpgm")

    lab("L_helper")
    e("s_sub_u32 s33, s3, 4")
    e("v_and_b32 v1, 15, v0")
    e("v_lshrrev_b32 v2, 4, v0")
    e("s_lshl_b32 s50, s33, 7"); e("v_lshl_add_u32 v3, v2, 5, s50")
    e("v_bfe_u32 v34, v0, 3, 1"); e("v_lshlrev_b32 v34, 10, v34")
    e("v_lshl_add_u32 v35, v3, 1, v34")
    e("v_lshlrev_b32 v3, 13, v3"); e("v_lshl_add_u32 v3, v1, 4, v3")
    e("s_lshl_b32 s50, s32, 8"); e("v_add_u32 v3, s50, v3")
    e("s_mov_b32 s38, 2048"); e("s_mov_b32 s39, 0x20000"); e("s_mov_b32 s42, 0x400000"); e("s_mov_b32 s43, 0x20000")
    e("s_mov_b32 s50, 0")
    e("s_waitcnt lgkmcnt(0)")
    e("s_mov_b32 s36, s4"); e("s_mov_b32 s37, s5"); e("s_mov_b32 s40, s10"); e("s_mov_b32 s41, s11")
    for k in range(4): e(f"buffer_load_dwordx4 v[{8+4*k}:{11+4*k}], v35, s[36:39], 0 offen offset:{16*k}")
    for s in range(32):
        e(f"buffer_load_dwordx4 v[{128+4*s}:{131+4*s}], v3, s[40:43], s50 offen {wpol}")
        if s < 31: e("s_add_u32 s50, s50, 0x2000")
    load_epoch()
    c("diagonal masks m_i: e=l&7 ; (e>>1==i) ? half(e&1) : 0")
    e("v_and_b32 v24, 1, v0"); e("v_lshlrev_b32 v24, 4, v24"); e("v_mov_b32 v25, 0xffff"); e("v_lshlrev_b32 v24, v24, v25")
    e("v_bfe_u32 v25, v0, 1, 2")
    for i in range(4):
        e(f"v_cmp_eq_u32 vcc, {i}, v25"); e("s_nop 1"); e(f"v_cndmask_b32 v{4+i}, 0, v24, vcc")
    e("s_mov_b32 s52, 0x01000100"); e("s_mov_b32 s53, 0x03020302")
    c("D position: (rg>>1)*512 + (c*8 + (rg&1)*4)*4")
    e("v_lshrrev_b32 v33, 1, v2"); e("v_lshlrev_b32 v33, 9, v33"); e("v_lshl_add_u32 v33, v1, 5, v33")
    e("v_and_b32 v24, 1, v2"); e("v_lshl_add_u32 v33, v24, 4, v33")
    e(f"v_mov_b32 v41, {L_FLAG}")
    for k in range(4): e(f"v_mov_b32 v{28+k}, 0")
    e("ds_write_b128 v41, v[28:31]")
    e("v_lshlrev_b32 v40, 4, v0")
    def rows_mfma(n, xr, wr, waits, acc=False):
        for s in range(n):
            if s == 0 and waits: e(f"s_waitcnt vmcnt({n})")
            e(f"v_perm_b32 v32, v{xr + s//2}, v{xr + s//2}, s{52 + s%2}")
            for i in range(4): e(f"v_and_b32 v{24+i}, v32, v{4+i}")
            if waits: e(f"s_waitcnt vmcnt({n-1-s})"); e("s_nop 0")
            else: e("s_nop 1")
            e(f"v_mfma_f32_16x16x32_bf16 v[36:39], v[24:27], v[{wr+4*s}:{wr+4*s+3}], {'v[36:39]' if (s or acc) else '0'}")
    rows_mfma(32, 8, 128, True)
    e("s_lshl_b32 s50, s33, 10"); e("v_add_u32 v24, s50, v33")
    c("wo_A offset: (h*128 + 32g)*1024 + hw*256 + c*16")
    e("s_lshl_b32 s50, s32, 17"); e("s_lshl_b32 s51, s33, 8"); e("s_add_u32 s50, s50, s51")
    e("v_lshlrev_b32 v3, 15, v2"); e("v_lshl_add_u32 v3, v1, 4, v3")
    e("s_mov_b32 s40, s12"); e("s_mov_b32 s41, s13")
    e(f"ds_write_b128 v24, v[36:39] offset:{L_QA}")
    e("s_waitcnt lgkmcnt(0)")
    e("s_barrier")
    for s in range(32):
        e(f"buffer_load_dwordx4 v[{128+4*s}:{131+4*s}], v3, s[40:43], s50 offen offset:{(s%4)*1024} {wpol}")
        if s % 4 == 3 and s < 31: e("s_add_u32 s50, s50, 0x1000")
    e(f"s_add_u32 s44, s28, {wsoff<<20:#x}"); e("s_addc_u32 s45, s29, 0"); e(f"s_mov_b32 s46, {WSSZ:#x}"); e("s_mov_b32 s47, 0x20000")
    e("s_lshl_b32 s35, s34, 5"); e("s_add_u32 s35, s35, s32"); e("s_lshl_b32 s35, s35, 2")
    e("s_and_b32 s50, s31, 3"); e("s_add_u32 s35, s35, s50")
    tag_consts()
    e("v_mov_b32 v63, s55")
    e("s_cmp_lg_u32 s33, 0"); e("s_cbranch_scc1 L_hfinal")

    agent_start = len(L)
    def lds_wait(off, val):
        n = u()
        e(f"s_mov_b32 s50, {spin}")
        lab(f"L_p{n}")
        e(f"ds_read_b32 v24, v41 offset:{off}"); e("s_waitcnt lgkmcnt(0)")
        e("v_readfirstlane_b32 s51, v24"); e("s_sub_u32 s50, s50, 1"); e(f"s_cbranch_scc1 L_pd{n}")
        e(f"s_cmp_ge_u32 s51, {val}"); e(f"s_cbranch_scc1 L_pd{n}")
        e("s_sleep 16"); e(f"s_branch L_p{n}")
        lab(f"L_pd{n}")
    def poll_begin():
        n = u(); e(f"s_mov_b32 s79, {spin}"); lab(f"L_g{n}"); return n
    def poll_end(n):
        e("s_not_b64 s[80:81], vcc"); e("s_mov_b64 exec, -1"); e(f"s_cbranch_scc0 L_gd{n}")
        e("s_sub_u32 s79, s79, 1"); e(f"s_cbranch_scc1 L_gd{n}")
        e(f"s_sleep {slp}"); e(f"s_branch L_g{n}")
        lab(f"L_gd{n}")
    e("s_and_b32 s54, s31, 7")
    e(f"s_cmp_lg_u32 s54, {J1}"); e("s_cbranch_scc1 L_job2")
    c("job 1: q of head h of branch B (both batches)")
    e("v_lshl_add_u32 v35, v2, 5, v34")
    e("v_lshlrev_b32 v3, 17, v2"); e("v_lshl_add_u32 v3, v1, 4, v3")
    e("s_lshl_b32 s50, s32, 8"); e("s_mov_b32 s51, 0")
    e("s_mov_b32 s36, s14"); e("s_mov_b32 s37, s15"); e("s_mov_b32 s40, s20"); e("s_mov_b32 s41, s21")
    for k in range(4): e(f"v_mov_b32 v{36+k}, 0")
    lab("L_j1")
    for k in range(2): e(f"buffer_load_dwordx4 v[{8+4*k}:{11+4*k}], v35, s[36:39], s51 offen offset:{16*k}")
    for s_ in range(16):
        e(f"buffer_load_dwordx4 v[{64+4*s_}:{67+4*s_}], v3, s[40:43], s50 offen nt")
        e(f"s_add_u32 s50, s50, {0x2000 if s_ < 15 else 0x2000*49:#x}")
    rows_mfma(16, 8, 64, True, True)
    e("s_add_u32 s51, s51, 128"); e("s_cmp_lg_u32 s51, 1024"); e("s_cbranch_scc1 L_j1")
    e("s_lshl_b32 s50, s32, 10"); e(f"s_add_u32 s50, s50, {QB:#x}")
    e("s_nop 2")
    put_tag(36, 63)
    e("buffer_store_dwordx4 v[36:39], v40, s[44:47], s50 offen sc1")
    lab("L_job2")
    c("job 2: q of the four heads of this workgroup's B unit -> LDS")
    e("v_bfe_u32 v42, v0, 2, 2"); e("v_lshlrev_b32 v42, 10, v42")
    e("v_lshl_add_u32 v42, v2, 6, v42"); e("v_and_b32 v25, 3, v0"); e("v_lshl_add_u32 v42, v25, 4, v42")
    e("s_lshl_b32 s48, s30, 12"); e("s_lshr_b32 s51, s31, 4"); e("s_lshl_b32 s51, s51, 9"); e("s_add_u32 s48, s48, s51")
    e(f"s_add_u32 s48, s48, {QB:#x}")
    lds_wait(8, 256 * T2)
    n = poll_begin()
    e("buffer_load_dwordx4 v[8:11], v42, s[44:47], s48 offen sc1")
    e("buffer_load_dwordx4 v[12:15], v42, s[44:47], s48 offen offset:256 sc1")
    e("s_waitcnt vmcnt(0)")
    get_tag(16, 8); get_tag(17, 12)
    e("v_cmpx_eq_u32 vcc, s55, v16"); e("v_cmpx_eq_u32 vcc, s55, v17")
    poll_end(n)
    for q in range(4): e(f"v_cvt_pk_bf16_f32 v{16+q}, v{8+2*q}, v{9+2*q}")
    e(f"ds_write_b128 v40, v[16:19] offset:{L_QB}")
    e("v_mov_b32 v25, 1")
    e("s_waitcnt lgkmcnt(0)")
    e("ds_write_b32 v41, v25")
    c("job 3: merge the four waves' B partials, publish")
    lds_wait(4, 256)
    e("v_lshlrev_b32 v42, 4, v2")
    e("v_lshlrev_b32 v43, 9, v2"); e("v_lshl_add_u32 v43, v1, 4, v43")
    for w in range(4): e(f"ds_read_b32 v{8+w}, v42 offset:{L_RECB + w*RECB + 2048}")
    e("s_waitcnt lgkmcnt(0)")
    for w in range(4):
        for a in range(4): e(f"ds_read_b32 v{12+4*w+a}, v42 offset:{L_RECB + w*RECB + 2304 + 64*a}")
        e("s_waitcnt lgkmcnt(0)")
    e("v_max3_f32 v44, v8, v9, v10"); e("v_max_f32 v44, v44, v11")
    for w in range(4): e(f"v_sub_f32 v{8+w}, v{8+w}, v44")
    for w in range(4): e(f"v_exp_f32 v{8+w}, v{8+w}")
    e("v_mov_b32 v45, 0"); e("v_mov_b32 v46, 0"); e("v_mov_b32 v47, s55")
    for w in range(4):
        for a in range(4): e(f"v_fmac_f32 v45, v{8+w}, v{12+4*w+a}")
    for k in range(8): e(f"v_mov_b32 v{48+k}, 0")
    for w in range(4):
        e(f"ds_read_b128 v[12:15], v43 offset:{L_RECB + w*RECB}")
        e(f"ds_read_b128 v[16:19], v43 offset:{L_RECB + w*RECB + 256}")
        e("s_waitcnt lgkmcnt(0)")
        for k in range(8): e(f"v_fmac_f32 v{48+k}, v{8+w}, v{12+k}")
    put_tag(48, 63); put_tag(52, 63)
    e("s_lshr_b32 s48, s31, 4"); e("s_lshl_b32 s48, s48, 3"); e("s_add_u32 s48, s48, s30")
    e("s_and_b32 s49, s31, 15"); e("s_lshl_b32 s48, s48, 4"); e("s_add_u32 s48, s48, s49")
    e("s_lshl_b32 s50, s48, 11"); e(f"s_add_u32 s50, s50, {PBO:#x}")
    e("buffer_store_dwordx4 v[48:51], v43, s[44:47], s50 offen sc1")
    e("buffer_store_dwordx4 v[52:55], v43, s[44:47], s50 offen offset:256 sc1")
    e("s_lshl_b32 s50, s48, 7"); e(f"s_add_u32 s50, s50, {PBML:#x}")
    e("v_lshlrev_b32 v42, 5, v2"); e("v_lshl_add_u32 v42, v1, 4, v42")
    e("s_mov_b32 exec_lo, 0x00030003"); e("s_mov_b32 exec_hi, 0x00030003")
    e("buffer_store_dwordx4 v[44:47], v42, s[44:47], s50 offen sc1")
    e("s_mov_b64 exec, -1")
    e(f"s_cmp_lg_u32 s54, {J4}"); e("s_cbranch_scc1 L_job5")
    c("job 4: finish head h of branch B for both batches, multiply by its rows of wo, publish")
    e("v_lshrrev_b32 v42, 5, v0")
    e("v_lshlrev_b32 v43, 14, v42"); e("v_lshl_add_u32 v43, v1, 7, v43")
    e("v_lshlrev_b32 v46, 18, v42"); e("v_and_b32 v47, 31, v0"); e("v_lshl_add_u32 v46, v47, 4, v46")
    e("s_lshr_b32 s51, s31, 3")
    e("s_lshl_b32 s48, s30, 11"); e("s_lshl_b32 s49, s51, 5"); e("s_add_u32 s48, s48, s49"); e(f"s_add_u32 s48, s48, {PBML:#x}")
    e("s_lshl_b32 s49, s30, 15"); e("s_lshl_b32 s51, s51, 9"); e("s_add_u32 s49, s49, s51"); e(f"s_add_u32 s49, s49, {PBO:#x}")
    lds_wait(8, 256 * (NA1 + 4 + T4))
    n = poll_begin()
    e("s_mov_b32 s50, s49")
    e("buffer_load_dwordx4 v[8:11], v43, s[44:47], s48 offen sc1")
    for k in range(16):
        e(f"buffer_load_dwordx4 v[{64+4*k}:{67+4*k}], v46, s[44:47], s50 offen offset:{(k%2)*2048} sc1")
        if k % 2 and k < 15: e("s_add_u32 s50, s50, 0x1000")
    e("s_waitcnt vmcnt(0)")
    e("v_cmpx_eq_u32 vcc, s55, v11")
    for k in range(16):
        get_tag(16, 64 + 4 * k); e("v_cmpx_eq_u32 vcc, s55, v16")
    poll_end(n)
    e("s_nop 4")
    e("v_max_f32_dpp v12, v8, v8 quad_perm:[1,0,3,2] row_mask:0xf bank_mask:0xf"); e("s_nop 1")
    for d in ("quad_perm:[2,3,0,1]", "row_ror:4", "row_ror:8"):
        e(f"v_max_f32_dpp v12, v12, v12 {d} row_mask:0xf bank_mask:0xf"); e("s_nop 1")
    e("v_sub_f32 v8, v8, v12"); e("v_exp_f32 v8, v8"); e("s_nop 0"); e("v_mul_f32 v9, v8, v9"); e("s_nop 1")
    for d in ("quad_perm:[1,0,3,2]", "quad_perm:[2,3,0,1]", "row_ror:4", "row_ror:8"):
        e(f"v_add_f32_dpp v9, v9, v9 {d} row_mask:0xf bank_mask:0xf"); e("s_nop 1")
    e("v_rcp_f32 v9, v9"); e("s_nop 0"); e("v_mul_f32 v8, v8, v9")
    for q in range(4): e(f"v_mov_b32 v{28+q}, 0")
    for k in range(16):
        for q in range(4):
            e(f"v_fmac_f32_dpp v{28+q}, v8, v{64+4*k+q} row_newbcast:{k} row_mask:0xf bank_mask:0xf")
    e("v_cvt_pk_bf16_f32 v28, v28, v29"); e("v_cvt_pk_bf16_f32 v29, v30, v31")
    e("v_lshlrev_b32 v46, 3, v0")
    e(f"ds_write_b64 v46, v[28:29] offset:{L_SCR}")
    e("v_lshrrev_b32 v46, 2, v34"); e("v_lshl_add_u32 v46, v2, 5, v46")
    e("s_waitcnt lgkmcnt(0)")
    for k in range(4): e(f"ds_read_b128 v[{8+4*k}:{11+4*k}], v46 offset:{L_SCR + 128*(k//2) + 16*(k%2)}")
    e("v_lshlrev_b32 v3, 14, v2"); e("v_lshl_add_u32 v3, v1, 4, v3")
    e("s_mov_b32 s40, s22"); e("s_mov_b32 s41, s23")
    e("s_lshl_b32 s48, s32, 17"); e("s_lshl_b32 s49, s32, 12"); e(f"s_add_u32 s49, s49, {YB:#x}"); e("s_mov_b32 s51, 4")
    e("s_waitcnt lgkmcnt(0)")
    lab("L_j4")
    for kq in range(2):
        e(f"s_add_u32 s50, s48, {kq<<16:#x}")
        for s_ in range(16):
            e(f"buffer_load_dwordx4 v[{64+4*s_}:{67+4*s_}], v3, s[40:43], s50 offen offset:{(s_%4)*1024} nt")
            if s_ % 4 == 3 and s_ < 15: e("s_add_u32 s50, s50, 0x1000")
        rows_mfma(16, 8 + 8 * kq, 64, True, kq == 1)
    e("s_nop 7")
    put_tag(36, 63)
    e("buffer_store_dwordx4 v[36:39], v40, s[44:47], s49 offen sc1")
    e("s_add_u32 s48, s48, 256"); e("s_add_u32 s49, s49, 1024")
    e("s_sub_u32 s51, s51, 1"); e("s_cmp_lg_u32 s51, 0"); e("s_cbranch_scc1 L_j4")
    lab("L_job5")
    c("job 5: workgroups 0..31 add up the 32 heads for 32 output columns")
    e("s_cmp_ge_u32 s2, 32"); e("s_cbranch_scc1 L_hfinal")
    e("v_lshrrev_b32 v46, 3, v0"); e("v_lshlrev_b32 v46, 12, v46"); e("v_and_b32 v47, 7, v0"); e("v_lshl_add_u32 v46, v47, 4, v46")
    e("s_bfe_u32 s48, s2, 0x20002"); e("s_lshl_b32 s48, s48, 10")
    e("s_lshr_b32 s49, s2, 4"); e("s_lshl_b32 s49, s49, 9"); e("s_add_u32 s48, s48, s49")
    e("s_and_b32 s49, s2, 3"); e("s_lshl_b32 s49, s49, 7"); e("s_add_u32 s48, s48, s49")
    e(f"s_add_u32 s48, s48, {YB:#x}")
    comp_col(42, 47, 3)
    e("v_lshlrev_b32 v42, 1, v42")
    lds_wait(8, 256 * (NA1 + 4 + T5))
    n = poll_begin()
    e("s_mov_b32 s50, s48")
    for k in range(4):
        e(f"buffer_load_dwordx4 v[{64+4*k}:{67+4*k}], v46, s[44:47], s50 offen sc1")
        if k < 3: e("s_add_u32 s50, s50, 0x8000")
    e("s_waitcnt vmcnt(0)")
    for k in range(4):
        get_tag(16, 64 + 4 * k); e("v_cmpx_eq_u32 vcc, s55, v16")
    poll_end(n)
    for k in range(1, 4):
        for q in range(4): e(f"v_add_f32 v{64+q}, v{64+q}, v{64+4*k+q}")
    xlane_sum4(64)
    e("v_cvt_pk_bf16_f32 v64, v64, v64")
    e("s_mov_b32 s40, s24"); e("s_mov_b32 s41, s25"); e("s_mov_b32 s42, 4096")
    out_base(50, 51)
    e("s_mov_b32 exec_lo, 0x00ff00ff"); e("s_mov_b32 exec_hi, 0x00ff00ff")
    e("buffer_store_short v64, v42, s[40:43], s50 offen offset:1024")
    e("s_mov_b64 exec, -1")
    c("every workgroup has published with this launch's tag, so all have read the old one: leave the new one")
    e("s_cmp_lg_u32 s2, 0"); e("s_cbranch_scc1 L_hfinal")
    e(f"s_mov_b32 s50, {EPOCH:#x}")
    e("s_mov_b64 exec, 1"); e("buffer_store_dword v63, off, s[44:47], s50 sc1"); e("s_mov_b64 exec, -1")

    if exp & 0xff0:
        for k in range(agent_start, len(L)):
            t = L[k]
            if exp & 16 and "buffer_store" in t: L[k] = "  s_nop 0"
            if exp & 32 and "buffer_load" in t and "s[44:47]" in t: L[k] = "  s_nop 0"
            if exp & 128 and "buffer_store" in t and "sc1" in t: L[k] = t + " nt"
            if exp & 512 and "buffer_store" in t and "sc1" in t: L[k] = t.replace(" sc1", "")
            if exp & 1024 and "buffer_load" in t and "s[44:47]" in t: L[k] = t.replace(" sc1", "")
            if exp & 2048 and "buffer_store_dwordx2" in t: L[k] = "  s_nop 0"
            if exp & 256 and "buffer_load" in t and "s[44:47]" in t: L[k] = t + " nt"
    lab("L_hfinal")
    e("v_lshlrev_b32 v8, 3, v0"); e("v_mov_b32 v9, 0")
    e("s_lshl_b32 s50, s35, 11"); e("s_lshl_b32 s51, s33, 9"); e("s_add_u32 s50, s50, s51"); e(f"s_add_u32 s50, s50, {YA:#x}")
    e("s_waitcnt vmcnt(0)")
    e("s_barrier")
    e(f"ds_read_b128 v[12:15], v9 offset:{L_MA}")
    for w in range(4): e(f"ds_read_b64 v[{16+2*w}:{17+2*w}], v8 offset:{L_RECA + w*RECA}")
    e("s_waitcnt lgkmcnt(4)")
    e("v_max3_f32 v11, v12, v13, v14"); e("v_max_f32 v11, v11, v15")
    for w in range(4): e(f"v_sub_f32 v{12+w}, v{12+w}, v11")
    for w in range(4): e(f"v_exp_f32 v{12+w}, v{12+w}")
    e("s_waitcnt lgkmcnt(0)")
    e("v_mul_f32 v16, v12, v16"); e("v_mul_f32 v17, v12, v17")
    for w in range(1, 4):
        e(f"v_fmac_f32 v16, v{12+w}, v{16+2*w}"); e(f"v_fmac_f32 v17, v{12+w}, v{17+2*w}")
    e("v_cvt_pk_bf16_f32 v18, v16, v16"); e("v_cvt_pk_bf16_f32 v19, v17, v17"); e("s_nop 0")
    def ya(s):
        for i in range(4):
            e(f"v_and_b32_dpp v{24+4*(s%2)+i}, v{18+s%2}, v{4+i} row_newbcast:{s//2} row_mask:0xf bank_mask:0xf")
    ya(0)
    for s in range(32):
        if s < 31: ya(s + 1)
        else: e("s_nop 1")
        a = 24 + 4 * (s % 2)
        e(f"v_mfma_f32_16x16x32_bf16 v[36:39], v[{a}:{a+3}], v[{128+4*s}:{131+4*s}], {'v[36:39]' if s else '0'}")
    e("s_nop 6")
    e("s_mov_b32 exec_hi, 0")
    put_tag(36, 63)
    e("buffer_store_dwordx4 v[36:39], v40, s[44:47], s50 offen sc1")
    lab("L_end")
    e("s_endpgm")

    L.append('.section .rodata,"a"'); L.append(".p2align 6")
    L.append(f".amdhsa_kernel {NAME}_kernel")
    for s in ("next_free_vgpr 256", "next_free_sgpr 96", "accum_offset 256", "group_segment_fixed_size 0",
              "kernarg_size 104", "user_sgpr_count 2", "user_sgpr_kernarg_segment_ptr 1",
              "system_sgpr_workgroup_id_x 1", "float_denorm_mode_32 3"):
        L.append("  .amdhsa_" + s)
    L.append(".end_amdhsa_kernel")
    return "\n".join(L) + "\n"

if __name__ == "__main__":
    import os
    names = []
    os.makedirs("k", exist_ok=True)
    for spec in sys.argv[1:]:
        p = {}
        for x in spec.split(","):
            if not x: continue
            k, v = x.split("=")
            p[k] = v.replace("+", " ") if k == "wpol" else int(v)
            if k == "wpol" and v == "def": p[k] = ""
        fn = "k/k_" + (spec.replace(",", "_").replace("=", "").replace("+", "") or "base") + ".s"
        open(fn, "w").write(gen(**p))
        names.append("dev/" + fn)
    print(" ".join(names))
```

```python
import sys, math, struct
NAME = "concat_heads__mha_block_cached__gqa_block_cached__decode"

HEADER = """; Kernarg layout for this problem (104 bytes, ptrs only, base s[0:1]):
"""

def f2u(x): return struct.unpack("<I", struct.pack("<f", x))[0]

WSB  = 0x100000
EPOCH = WSB
QB   = WSB + 0x010000
QPA  = WSB + 0x200000
QPB  = WSB + 0x240000
PBO  = WSB + 0x040000
PBML = WSB + 0x0C0000
YB   = WSB + 0x100000
YA   = WSB + 0x140000
MLA  = WSB + 0x1C0000
WSSZ = 0x400000
L_QA   = 0x0000
L_QB   = 0x1000
L_FLAG = 0x1400
L_RECB = 0x1800; RECB = 2560
L_SCR  = 0x4000
L_RECA = 0x4400; RECA = 1024
L_MA   = 0x5400
L_RED  = 0x5440
LDS_BYTES = 0x5800

def gen(inf=5, inf0=5, NA1=8, st1=260, st2=68, wpol="nt", stamps=0, spin=1 << 20, exp=0, slp=64, wsoff=0, T2=7, T4=2, YBT=-1, qslp=0, T1=5, rot=0, wth=4, bth=4, P1=32, q1=0, rspin=1 << 20, drop='', diagw=0, gspin=1 << 20):
    L = []
    def e(s): L.append("  " + s)
    def lab(s): L.append(s + ":")
    def c(s): L.append("  ; " + s)
    uid = [0]
    def u():
        uid[0] += 1; return uid[0]
    SC = f2u(128 ** -0.5 * math.log2(math.e))
    NA2 = 16 - NA1

    L.append(HEADER.rstrip("\n"))
    L.append(f"; @launch grid=(256,1,1) block=(512,1,1) lds={LDS_BYTES}")
    L.append('.amdgcn_target "amdgcn-amd-amdhsa--gfx950"')
    L.append(".text"); L.append(f".globl {NAME}_kernel"); L.append(".p2align 8")
    L.append(f".type {NAME}_kernel,@function"); L.append(f"{NAME}_kernel:")

    def stamp(k):
        if stamps: e(f"s_memrealtime s[{64+2*k}:{65+2*k}]")

    e("s_cmp_ge_u32 s2, 256"); e("s_cbranch_scc1 L_end")
    e("s_load_dwordx16 s[4:19], s[0:1], 0")
    e("s_load_dwordx8 s[20:27], s[0:1], 64")
    e("s_load_dwordx2 s[28:29], s[0:1], 96")
    if stamps or diagw: e("s_memrealtime s[60:61]")
    e("v_lshrrev_b32 v1, 6, v0")
    e("s_and_b32 s30, s2, 7")
    e("v_readfirstlane_b32 s3, v1")
    e("s_lshr_b32 s31, s2, 3")
    e("v_and_b32 v0, 63, v0")
    e("s_lshl_b32 s32, s30, 2"); e("s_lshr_b32 s33, s31, 3"); e("s_add_u32 s32, s32, s33")
    e("s_bfe_u32 s34, s31, 0x10002")
    e("s_cmp_ge_u32 s3, 4"); e("s_cbranch_scc1 L_helper")

    def load_epoch():
        e(f"s_add_u32 s56, s28, {(wsoff<<20) + EPOCH:#x}"); e("s_addc_u32 s57, s29, 0")
        e("s_load_dword s55, s[56:57], 0")
    def tag_consts():
        e("s_add_u32 s55, s55, 0x04030201")
        for k in range(4): e(f"s_mov_b32 s{56+k}, {0x07060500 + k:#x}")
        e("s_mov_b32 s76, 0x0c0c0400"); e("s_mov_b32 s77, 0x0c040100"); e("s_mov_b32 s78, 0x04020100")
    def put_tag(r, vn):
        for k in range(4): e(f"v_perm_b32 v{r+k}, v{r+k}, v{vn}, s{56+k}")
    def get_tag(t, r):
        e(f"v_perm_b32 v{t}, v{r+1}, v{r}, s76"); e(f"v_perm_b32 v{t}, v{r+2}, v{t}, s77"); e(f"v_perm_b32 v{t}, v{r+3}, v{t}, s78")
    RING = 128
    def issue(p):
        r = RING + 4 * p; j = p % 8
        if j < 4: e(f"buffer_load_dwordx4 v[{r}:{r+3}], v2, s[36:39], s44 offen offset:{j*1024} nt")
        else:     e(f"buffer_load_dwordx4 v[{r}:{r+3}], v3, s[40:43], s44 offen offset:{(j-4)*1024} nt")
        if j == 7:
            e("s_add_u32 s44, s44, s45"); e("s_and_b32 s44, s44, 0x3fffff")
    def set_unit(kb, vb, unit):
        e(f"s_lshl_b32 s50, s{unit}, 22")
        e(f"s_add_u32 s36, s{kb}, s50"); e(f"s_addc_u32 s37, s{kb+1}, 0")
        e(f"s_add_u32 s40, s{vb}, s50"); e(f"s_addc_u32 s41, s{vb+1}, 0")
    c("K lane offset: key=(l>>2)&3, d=(l>>4)*32+(l&3)*8 ; V lane offset: l*16")
    e("v_and_b32 v2, 3, v0"); e("v_lshlrev_b32 v2, 4, v2")
    e("v_bfe_u32 v4, v0, 2, 2"); e("v_lshl_add_u32 v2, v4, 8, v2")
    e("v_lshrrev_b32 v5, 4, v0"); e("v_lshl_add_u32 v2, v5, 6, v2")
    e("v_lshlrev_b32 v3, 4, v0")
    e("s_lshl_b32 s35, s34, 5"); e("s_add_u32 s35, s35, s32")
    e("s_and_b32 s44, s31, 3"); e("s_lshl_b32 s44, s44, 2"); e("s_add_u32 s44, s44, s3"); e("s_lshl_b32 s44, s44, 12")
    e(f"s_mul_i32 s50, s35, {st1*1024}"); e("s_add_u32 s44, s44, s50"); e("s_and_b32 s44, s44, 0x3fffff")
    e("s_mov_b32 s45, 0x10000")
    e("s_mov_b32 s38, 0x400000"); e("s_mov_b32 s39, 0x20000")
    e("s_mov_b32 s42, 0x400000"); e("s_mov_b32 s43, 0x20000")
    e("s_waitcnt lgkmcnt(0)")
    set_unit(6, 8, 35)
    for p in range(inf0): issue(p)
    load_epoch()
    c("constants while the first loads fly")
    e("v_and_b32 v6, 1, v0"); e("v_lshlrev_b32 v6, 4, v6"); e("v_mov_b32 v7, 0xffff"); e("v_lshlrev_b32 v6, v6, v7")
    e("v_and_b32 v7, 2, v0"); e("v_cmp_eq_u32 vcc, 0, v7")
    e(f"s_mov_b32 s48, {SC:#x}")
    e("v_mov_b32 v8, 0xff800000")
    e("v_cndmask_b32 v4, 0, v6, vcc")
    e("v_xor_b32 v5, v4, v6")
    e("v_mov_b32 v9, v8"); e("v_mov_b32 v10, 0")
    e("v_mov_b32 v11, v8"); e("v_mov_b32 v12, v8"); e("v_mov_b32 v13, 0")
    for r in range(40, 56): e(f"v_mov_b32 v{r}, 0")
    c("LDS address of the q operand: (g*32 + (l&3)*8)*2")
    e("v_lshrrev_b32 v6, 4, v0"); e("v_lshlrev_b32 v6, 6, v6")
    e("v_and_b32 v7, 3, v0"); e("v_lshl_add_u32 v6, v7, 4, v6")
    e("v_bfe_u32 v7, v0, 2, 2")
    for p in range(inf0, 32):
        e(f"s_waitcnt vmcnt({(inf0 if p < P1 else inf)-1})"); issue(p)
    stamp(0)
    e("s_waitcnt lgkmcnt(0)")
    tag_consts()
    e(f"v_mov_b32 v14, {L_FLAG}"); e("v_mov_b32 v15, 1")
    e("s_barrier")
    e(f"ds_read_b128 v[104:107], v6 offset:{L_QA}")
    e("v_lshl_add_u32 v6, v7, 8, v6")
    e("s_waitcnt lgkmcnt(0)")
    for s in range(4):
        e(f"v_cmp_eq_u32 vcc, {s}, v7"); e("s_nop 1")
        for k in range(4): e(f"v_cndmask_b32 v{16+4*s+k}, 0, v{104+k}, vcc")
    e("s_mov_b32 s46, 0")
    e(f"s_mov_b32 s47, {NA1}")
    stamp(1)

    def wi(p, on):
        if on:
            e(f"s_waitcnt vmcnt({inf-1})"); issue(p)
    def need(p, on):
        if not on and p >= 32 - inf: e(f"s_waitcnt vmcnt({31-p})")
    def diag(t, d):
        e(f"v_mov_b32_dpp v{t}, v{d} quad_perm:[0,0,0,0] row_mask:0xf bank_mask:0xf")
        for k in range(1, 4):
            e(f"v_add_f32_dpp v{t}, v{d+k}, v{t} quad_perm:[{k},{k},{k},{k}] row_mask:0xf bank_mask:0xf")
    def xrow_max(v, t):
        e(f"v_mov_b32 v{t}, v{v}"); e("s_nop 1"); e(f"v_permlane16_swap_b32 v{v}, v{t}"); e("s_nop 1")
        e(f"v_max_f32 v{v}, v{v}, v{t}")
        e(f"v_mov_b32 v{t}, v{v}"); e("s_nop 1"); e(f"v_permlane32_swap_b32 v{v}, v{t}"); e("s_nop 1")
        e(f"v_max_f32 v{v}, v{v}, v{t}")
    def pv(b0, O, on):
        for j in range(4):
            r = RING + 4 * (b0 + 4 + j)
            need(b0 + 4 + j, on)
            if exp & 1 and O == 40:
                wi(b0 + 4 + j, on); continue
            e(f"v_mfma_f32_16x16x16_bf16 v[{O}:{O+3}], v[{80+2*j}:{81+2*j}], v[{r}:{r+1}], v[{O}:{O+3}]")
            e(f"v_mfma_f32_16x16x16_bf16 v[{O+4}:{O+7}], v[{80+2*j}:{81+2*j}], v[{r+2}:{r+3}], v[{O+4}:{O+7}]")
            wi(b0 + 4 + j, on)
    def step_mha(b0, on):
        for j in range(4):
            r = RING + 4 * (b0 + j)
            need(b0 + j, on)
            if not exp & 4: e(f"v_mfma_f32_16x16x32_bf16 v[56:59], v[{r}:{r+3}], v[{16+4*j}:{19+4*j}], {'v[56:59]' if j else '0'}")
            wi(b0 + j, on)
        e(f"s_nop {5 if on else 7}")
        diag(72, 56)
        n = u()
        e("v_cmp_gt_f32 vcc, v72, v8"); e(f"s_cbranch_vccz L_k{n}")
        c("running max grew: rescale")
        e("v_max_f32_dpp v88, v72, v72 row_ror:4 row_mask:0xf bank_mask:0xf"); e("s_nop 1")
        e("v_max_f32_dpp v88, v88, v88 row_ror:8 row_mask:0xf bank_mask:0xf")
        xrow_max(88, 89)
        e("v_max_f32 v8, v8, v88"); e("v_mul_f32 v89, s48, v8"); e("v_sub_f32 v88, v9, v89"); e("v_exp_f32 v88, v88")
        e("v_mov_b32 v9, v89"); e("v_mul_f32 v10, v10, v88")
        for k in range(8): e(f"v_mul_f32 v{40+k}, v{40+k}, v88")
        lab(f"L_k{n}")
        e("v_fma_f32 v72, v72, s48, -v9"); e("v_exp_f32 v72, v72"); e("s_nop 0")
        e("v_cvt_pk_bf16_f32 v76, v72, v72"); e("v_add_f32 v10, v10, v72"); e("s_nop 0")
        for j in range(4):
            if exp & 2: continue
            e(f"v_and_b32_dpp v{80+2*j}, v76, v4 row_newbcast:{4*j} row_mask:0xf bank_mask:0xf")
            e(f"v_and_b32_dpp v{81+2*j}, v76, v5 row_newbcast:{4*j} row_mask:0xf bank_mask:0xf")
        pv(b0, 40, on)
    def step_gqa(b0):
        for j in range(4):
            r = RING + 4 * (b0 + j)
            e(f"v_mfma_f32_16x16x32_bf16 v[{56+4*j}:{59+4*j}], v[{r}:{r+3}], v[32:35], 0")
            wi(b0 + j, True)
        for j in range(4): diag(72 + j, 56 + 4 * j)
        n = u()
        e("v_max3_f32 v88, v72, v73, v74"); e("v_max_f32 v88, v88, v75")
        e("v_cmp_gt_f32 vcc, v88, v11"); e(f"s_cbranch_vccz L_k{n}")
        c("running max grew: rescale")
        xrow_max(88, 89)
        e("v_max_f32 v11, v11, v88"); e("v_mul_f32 v89, s48, v11"); e("v_sub_f32 v88, v12, v89"); e("v_exp_f32 v88, v88")
        e("v_mov_b32 v12, v89"); e("v_mul_f32 v13, v13, v88")
        for k in range(4):
            e(f"v_mov_b32_dpp v89, v88 row_newbcast:{4*k} row_mask:{1<<k:#x} bank_mask:0xf")
        for k in range(8): e(f"v_mul_f32 v{48+k}, v{48+k}, v89")
        lab(f"L_k{n}")
        for j in range(4): e(f"v_fma_f32 v{72+j}, v{72+j}, s48, -v12")
        for j in range(4): e(f"v_exp_f32 v{72+j}, v{72+j}")
        e("s_nop 0")
        for j in range(4): e(f"v_cvt_pk_bf16_f32 v{76+j}, v{72+j}, v{72+j}")
        for j in range(4):
            e(f"v_and_b32 v{80+2*j}, v{76+j}, v4"); e(f"v_and_b32 v{81+2*j}, v{76+j}, v5")
        for j in range(4): e(f"v_add_f32 v13, v13, v{72+j}")
        pv(b0, 48, True)

    lab("L_mha")
    e("s_sub_u32 s50, s47, s46")
    e("s_cmp_lg_u32 s50, 1"); e("s_cbranch_scc1 L_mha_go")
    c("issue side moves on to the B unit")
    e("s_mov_b32 s49, s44")
    e("s_lshr_b32 s51, s31, 4"); e("s_lshl_b32 s51, s51, 3"); e("s_add_u32 s51, s51, s30")
    set_unit(16, 18, 51)
    e("s_and_b32 s44, s31, 15"); e("s_lshl_b32 s44, s44, 2"); e("s_add_u32 s44, s44, s3"); e("s_lshl_b32 s44, s44, 12")
    e(f"s_mul_i32 s50, s51, {st2*1024}"); e("s_add_u32 s44, s44, s50"); e("s_and_b32 s44, s44, 0x3fffff")
    e("s_mov_b32 s45, 0x40000")
    lab("L_mha_go")
    e("ds_add_u32 v14, v15 offset:8")
    for k in range(4): step_mha(8 * k, True)
    e("s_sub_u32 s47, s47, 1"); e("s_cmp_lg_u32 s47, 0"); e("s_cbranch_scc1 L_mha")
    e("s_cmp_lg_u32 s46, 0"); e("s_cbranch_scc1 L_drain")
    stamp(2)
    e(f"s_mov_b32 s50, {spin}")
    lab("L_wqb")
    e("ds_read_b32 v7, v14"); e(f"ds_read_b128 v[32:35], v6 offset:{L_QB}")
    e("s_waitcnt lgkmcnt(0)")
    e("v_readfirstlane_b32 s51, v7"); e("s_sub_u32 s50, s50, 1")
    e("s_cbranch_scc1 L_wqb_done")
    e("s_cmp_eq_u32 s51, 0"); e("s_cbranch_scc1 L_wqb")
    lab("L_wqb_done")
    e("s_mov_b32 s47, 4")
    lab("L_gqa")
    e("s_cmp_lg_u32 s47, 1"); e("s_cbranch_scc1 L_gqa_go")
    c("issue side returns to the A unit")
    set_unit(6, 8, 35)
    e("s_mov_b32 s44, s49"); e("s_mov_b32 s45, 0x10000")
    lab("L_gqa_go")
    e("ds_add_u32 v14, v15 offset:8")
    for k in range(4): step_gqa(8 * k)
    e("s_sub_u32 s47, s47, 1"); e("s_cmp_lg_u32 s47, 0"); e("s_cbranch_scc1 L_gqa")
    c("hand the B partial of this wave to the agent through LDS")
    e(f"s_mul_i32 s50, s3, {RECB}"); e(f"s_add_u32 s50, s50, {L_RECB}")
    e("v_lshl_add_u32 v6, v0, 5, s50"); e("v_lshl_add_u32 v7, v0, 2, s50")
    e("s_nop 4")
    e("ds_write_b128 v6, v[48:51]"); e("ds_write_b128 v6, v[52:55] offset:16")
    e("ds_write_b32 v7, v12 offset:2048"); e("ds_write_b32 v7, v13 offset:2304")
    e("s_waitcnt lgkmcnt(0)")
    e("ds_add_u32 v14, v15 offset:4")
    e("s_mov_b32 s46, 64"); e(f"s_mov_b32 s47, {NA2-1}")
    stamp(3)
    e("s_branch L_mha")
    lab("L_drain")
    stamp(4)
    for k in range(4): step_mha(8 * k, False)
    c("A partial of this wave -> LDS")
    e("v_add_f32_dpp v10, v10, v10 row_ror:4 row_mask:0xf bank_mask:0xf")
    e(f"s_lshl_b32 s50, s3, 10"); e(f"s_add_u32 s50, s50, {L_RECA}")
    e("v_add_f32_dpp v10, v10, v10 row_ror:8 row_mask:0xf bank_mask:0xf")
    e("v_lshl_add_u32 v6, v0, 5, s50"); e("v_lshl_add_u32 v7, v0, 2, s50")
    e(f"s_lshl_b32 s50, s3, 2"); e("v_mov_b32 v14, s50")
    e("ds_write_b32 v7, v10 offset:512")
    e(f"ds_write_b32 v14, v9 offset:{L_MA}")
    e("s_mov_b64 exec, 0xffff")
    e("ds_write_b128 v6, v[40:43]"); e("ds_write_b128 v6, v[44:47] offset:16")
    e("s_mov_b64 exec, -1")
    e(f"s_add_u32 s36, s28, {wsoff<<20:#x}"); e("s_addc_u32 s37, s29, 0"); e(f"s_mov_b32 s38, {WSSZ:#x}")
    e("s_waitcnt lgkmcnt(0)")
    stamp(5)
    e("s_barrier")
    e("s_cmp_lg_u32 s3, 0"); e("s_cbranch_scc1 L_red")
    c("wave 0 publishes (M, L) of the workgroup: lane = (w, row)")
    e("v_bfe_u32 v6, v0, 2, 2"); e("v_and_b32 v7, 3, v0"); e("v_lshlrev_b32 v7, 6, v7")
    e("v_lshl_add_u32 v7, v6, 10, v7"); e("v_lshlrev_b32 v6, 2, v6")
    e(f"ds_read_b32 v16, v6 offset:{L_MA}"); e(f"ds_read_b32 v17, v7 offset:{L_RECA+512}")
    e("s_lshl_b32 s50, s35, 2"); e("s_and_b32 s51, s31, 3"); e("s_add_u32 s50, s50, s51")
    e("s_lshl_b32 s50, s50, 7"); e(f"s_add_u32 s50, s50, {MLA:#x}")
    e("v_mov_b32 v22, 0"); e("v_mov_b32 v23, s55")
    e("s_waitcnt lgkmcnt(0)")
    e("v_max_f32_dpp v20, v16, v16 row_ror:4 row_mask:0xf bank_mask:0xf"); e("s_nop 1")
    e("v_max_f32_dpp v20, v20, v20 row_ror:8 row_mask:0xf bank_mask:0xf")
    e("v_sub_f32 v16, v16, v20"); e("v_exp_f32 v16, v16"); e("s_nop 0"); e("v_mul_f32 v21, v16, v17"); e("s_nop 1")
    for d in ("quad_perm:[1,0,3,2]", "quad_perm:[2,3,0,1]", "row_ror:4", "row_ror:8"):
        e(f"v_add_f32_dpp v21, v21, v21 {d} row_mask:0xf bank_mask:0xf"); e("s_nop 1")
    e("s_mov_b64 exec, 0xff")
    e("buffer_store_dwordx4 v[20:23], v3, s[36:39], s50 offen sc1")
    e("s_mov_b64 exec, -1")
    lab("L_red")
    e("s_cmp_ge_u32 s2, 64"); e("s_cbranch_scc1 L_sdone")
    e("s_cmp_ge_u32 s2, 32"); e("s_cbranch_scc1 L_redb")
    c("reducer: b = id>>4, one 128-byte line of every slot; wave = 8 heads; lane = (head, granule)")
    e("s_lshr_b32 s50, s2, 4"); e("s_lshl_b32 s50, s50, 5"); e("s_lshl_b32 s51, s3, 3"); e("s_add_u32 s50, s50, s51")
    e("v_lshrrev_b32 v6, 3, v0"); e("v_add_u32 v6, s50, v6")
    e("v_lshlrev_b32 v7, 9, v6")
    e("v_lshlrev_b32 v6, 13, v6"); e("v_and_b32 v14, 7, v0"); e("v_lshl_add_u32 v6, v14, 4, v6")
    e("s_and_b32 s51, s2, 15"); e("s_lshl_b32 s51, s51, 7")
    e(f"s_add_u32 s52, s51, {YA:#x}"); e("s_add_u32 s53, s52, 4096"); e(f"s_mov_b32 s54, {MLA:#x}")
    e(f"s_mov_b32 s50, {rspin}")
    lab("L_rpoll")
    for q in range(4): e(f"buffer_load_dwordx4 v[{40+4*q}:{43+4*q}], v7, s[36:39], s54 offen offset:{128*q} sc1")
    for q in range(4): e(f"buffer_load_dwordx4 v[{24+4*q}:{27+4*q}], v6, s[36:39], s{52+q//2} offen offset:{2048*(q%2)} sc1")
    e("s_mov_b64 s[46:47], exec")
    for q in range(4):
        e(f"s_waitcnt vmcnt({3-q})"); get_tag(16 + q, 24 + 4 * q)
    for q in range(4):
        e(f"v_cmpx_eq_u32 vcc, s55, v{43+4*q}"); e(f"v_cmpx_eq_u32 vcc, s55, v{16+q}")
    e("s_sub_u32 s50, s50, 1"); e("s_cbranch_scc1 L_rdone")
    e("s_andn2_b64 exec, s[46:47], vcc"); e("s_cbranch_scc1 L_rpoll")
    lab("L_rdone")
    e("s_mov_b64 exec, -1")
    e("v_max3_f32 v15, v40, v44, v48"); e("v_max_f32 v15, v15, v52")
    for q in range(4): e(f"v_sub_f32 v{40+4*q}, v{40+4*q}, v15")
    for q in range(4): e(f"v_exp_f32 v{40+4*q}, v{40+4*q}")
    e("s_nop 0")
    e("v_mul_f32 v15, v40, v41")
    for q in range(1, 4): e(f"v_fmac_f32 v15, v{40+4*q}, v{41+4*q}")
    e("v_rcp_f32 v15, v15")
    for k in range(4): e(f"v_mul_f32 v{24+k}, v40, v{24+k}")
    for q in range(1, 4):
        for k in range(4): e(f"v_fmac_f32 v{24+k}, v{40+4*q}, v{24+4*q+k}")
    for k in range(4): e(f"v_mul_f32 v{24+k}, v15, v{24+k}")
    def xlane_sum4(a):
        e("s_nop 1")
        e(f"v_permlane32_swap_b32 v{a}, v{a+1}"); e(f"v_permlane32_swap_b32 v{a+2}, v{a+3}"); e("s_nop 1")
        e(f"v_add_f32 v{a}, v{a}, v{a+1}"); e(f"v_add_f32 v{a+2}, v{a+2}, v{a+3}"); e("s_nop 1")
        e(f"v_permlane16_swap_b32 v{a}, v{a+2}"); e("s_nop 1")
        e(f"v_add_f32 v{a}, v{a}, v{a+2}"); e("s_nop 1")
        e(f"v_add_f32_dpp v{a}, v{a}, v{a} row_ror:8 row_mask:0xf bank_mask:0xf")
    def comp_col(dst, t, sh):
        e(f"v_and_b32 v{dst}, 7, v0"); e(f"v_lshlrev_b32 v{dst}, {sh}, v{dst}")
        e(f"v_bfe_u32 v{t}, v0, 4, 1"); e(f"v_lshl_add_u32 v{dst}, v{t}, 1, v{dst}")
        e(f"v_lshrrev_b32 v{t}, 5, v0"); e(f"v_add_u32 v{dst}, v{dst}, v{t}")
    def out_base(d, t):
        e(f"s_bfe_u32 s{d}, s2, 0x10004"); e(f"s_lshl_b32 s{d}, s{d}, 11")
        e(f"s_bfe_u32 s{t}, s2, 0x20002"); e(f"s_lshl_b32 s{t}, s{t}, 8"); e(f"s_add_u32 s{d}, s{d}, s{t}")
        e(f"s_and_b32 s{t}, s2, 1"); e(f"s_lshl_b32 s{t}, s{t}, 7"); e(f"s_add_u32 s{d}, s{d}, s{t}")
        e(f"s_and_b32 s{t}, s2, 2"); e(f"s_lshl_b32 s{t}, s{t}, 2"); e(f"s_add_u32 s{d}, s{d}, s{t}")
    lab("L_rsum")
    comp_col(6, 7, 2)
    e("s_lshl_b32 s50, s3, 7"); e("v_lshl_add_u32 v6, v6, 2, s50")
    xlane_sum4(24)
    e(f"ds_write_b32 v6, v24 offset:{L_RED}")
    e("v_lshlrev_b32 v7, 3, v0")
    e("s_mov_b32 s40, s24"); e("s_mov_b32 s41, s25"); e("s_mov_b32 s42, 4096")
    e("s_waitcnt lgkmcnt(0)")
    e("s_barrier")
    e("s_cmp_lg_u32 s3, 0"); e("s_cbranch_scc1 L_sdone")
    e("s_mov_b64 exec, 0xffff")
    for w in range(4): e(f"ds_read_b64 v[{16+2*w}:{17+2*w}], v7 offset:{L_RED + w*128}")
    out_base(50, 51)
    e("s_and_b32 s51, s2, 32"); e("s_lshl_b32 s51, s51, 5"); e("s_add_u32 s50, s50, s51")
    e("v_lshrrev_b32 v6, 1, v0"); e("v_lshlrev_b32 v6, 4, v6"); e("v_and_b32 v7, 1, v0"); e("v_lshl_add_u32 v6, v7, 2, v6")
    e("s_waitcnt lgkmcnt(0)")
    e("v_add_f32 v16, v16, v18"); e("v_add_f32 v17, v17, v19"); e("v_add_f32 v20, v20, v22"); e("v_add_f32 v21, v21, v23")
    e("v_add_f32 v16, v16, v20"); e("v_add_f32 v17, v17, v21")
    e("v_cvt_pk_bf16_f32 v16, v16, v17")
    e("buffer_store_dword v16, v6, s[40:43], s50 offen")
    c("workgroup 32 has seen data that depends on every workgroup, so all have read the old tag: leave the new one")
    e("s_cmp_lg_u32 s2, 32"); e("s_cbranch_scc1 L_sdone")
    e(f"s_mov_b32 s50, {EPOCH:#x}"); e("v_mov_b32 v17, s55")
    e("s_mov_b64 exec, 1"); e("buffer_store_dword v17, off, s[36:39], s50 sc1")
    lab("L_sdone")
    if diagw:
        lab("L_diag")
        e("s_memrealtime s[62:63]"); e("s_waitcnt lgkmcnt(0)")
        e("s_sub_u32 s62, s62, s60"); e(f"s_cmp_lt_u32 s62, {diagw*100}"); e("s_cbranch_scc1 L_diag")
    if stamps:
        e("s_cmp_lg_u32 s3, 0"); e("s_cbranch_scc1 L_end")
        e("s_waitcnt vmcnt(0)")
        e("s_memrealtime s[62:63]"); e("s_getreg_b32 s50, hwreg(HW_REG_XCC_ID)"); e("s_waitcnt lgkmcnt(0)")
        e("s_mov_b64 exec, 1"); e("s_mov_b32 s36, s28"); e("s_mov_b32 s37, s29")
        for k in range(4): e(f"v_mov_b32 v{16+k}, s{60+k}")
        e("s_lshl_b32 s51, s2, 4"); e("buffer_store_dwordx4 v[16:19], off, s[36:39], s51")
        e("v_mov_b32 v20, s50"); e("s_lshl_b32 s51, s2, 2"); e("s_add_u32 s51, s51, 0x10000")
        e("buffer_store_dword v20, off, s[36:39], s51")
        for k in range(12): e(f"v_mov_b32 v{24+k}, s{64+k}")
        e("s_lshl_b32 s51, s2, 7"); e("s_add_u32 s51, s51, 0x20000")
        for k in range(3): e(f"buffer_store_dwordx4 v[{24+4*k}:{27+4*k}], off, s[36:39], s51 offset:{16*k}")
    e("s_endpgm")
    lab("L_redb")
    c("branch B reducer: wave = 16 terms")
    e("v_lshrrev_b32 v6, 3, v0"); e("v_lshlrev_b32 v6, 12, v6"); e("v_and_b32 v7, 7, v0"); e("v_lshl_add_u32 v6, v7, 4, v6")
    e("s_bfe_u32 s52, s2, 0x20002"); e("s_lshl_b32 s52, s52, 10")
    e("s_bfe_u32 s51, s2, 0x10004"); e("s_lshl_b32 s51, s51, 9"); e("s_add_u32 s52, s52, s51")
    e("s_and_b32 s51, s2, 3"); e("s_lshl_b32 s51, s51, 7"); e("s_add_u32 s52, s52, s51")
    e("s_lshl_b32 s51, s3, 16"); e("s_add_u32 s52, s52, s51")
    e(f"s_add_u32 s52, s52, {YB:#x}"); e("s_add_u32 s53, s52, 0x8000")
    e(f"s_mov_b32 s50, {rspin}")
    lab("L_bpoll")
    e("buffer_load_dwordx4 v[24:27], v6, s[36:39], s52 offen sc1")
    e("buffer_load_dwordx4 v[28:31], v6, s[36:39], s53 offen sc1")
    e("s_mov_b64 s[46:47], exec")
    e("s_waitcnt vmcnt(1)"); get_tag(16, 24); e("s_waitcnt vmcnt(0)"); get_tag(17, 28)
    e("v_cmpx_eq_u32 vcc, s55, v16"); e("v_cmpx_eq_u32 vcc, s55, v17")
    e("s_sub_u32 s50, s50, 1"); e("s_cbranch_scc1 L_bdone")
    e("s_andn2_b64 exec, s[46:47], vcc"); e("s_cbranch_scc1 L_bpoll")
    lab("L_bdone")
    e("s_mov_b64 exec, -1")
    for k in range(4): e(f"v_add_f32 v{24+k}, v{24+k}, v{28+k}")
    e("s_branch L_rsum")

    lab("L_helper")
    e("s_sub_u32 s33, s3, 4")
    e("s_and_b32 s54, s31, 7")
    e("v_and_b32 v1, 15, v0")
    e("v_lshrrev_b32 v2, 4, v0")
    e("v_bfe_u32 v34, v0, 3, 1")
    e("v_lshlrev_b32 v3, 17, v2"); e("v_lshl_add_u32 v3, v1, 4, v3")
    e("v_lshlrev_b32 v35, 10, v34"); e("v_lshl_add_u32 v35, v2, 5, v35")
    e("s_lshl_b32 s50, s32, 8"); e("s_lshl_b32 s51, s54, 19"); e("s_add_u32 s50, s50, s51"); e("s_lshl_b32 s51, s54, 7")
    e("s_mov_b32 s38, 2048"); e("s_mov_b32 s39, 0x20000"); e("s_mov_b32 s42, 0x400000"); e("s_mov_b32 s43, 0x20000")
    e("s_waitcnt lgkmcnt(0)")
    e("s_mov_b32 s36, s4"); e("s_mov_b32 s37, s5"); e("s_mov_b32 s40, s10"); e("s_mov_b32 s41, s11")
    load_epoch()
    e("s_cmp_lg_u32 s33, 0"); e("s_cbranch_scc1 L_hc")
    c("helper 0: 64 of the 512 rows of the q projection of head h (branch A)")
    for k in range(2): e(f"buffer_load_dwordx4 v[{8+4*k}:{11+4*k}], v35, s[36:39], s51 offen offset:{16*k}")
    for t in range(16):
        e(f"buffer_load_dwordx4 v[{64+4*t}:{67+4*t}], v3, s[40:43], s50 offen nt")
        if t < 15: e("s_add_u32 s50, s50, 0x2000")
    lab("L_hc")
    c("diagonal masks m_i: e=l&7 ; (e>>1==i) ? half(e&1) : 0")
    e("v_and_b32 v24, 1, v0"); e("v_lshlrev_b32 v24, 4, v24"); e("v_mov_b32 v25, 0xffff"); e("v_lshlrev_b32 v24, v24, v25")
    e("v_bfe_u32 v25, v0, 1, 2")
    for i in range(4):
        e(f"v_cmp_eq_u32 vcc, {i}, v25"); e("s_nop 1"); e(f"v_cndmask_b32 v{4+i}, 0, v24, vcc")
    e(f"v_mov_b32 v41, {L_FLAG}")
    for k in range(4): e(f"v_mov_b32 v{28+k}, 0")
    e("ds_write_b128 v41, v[28:31]")
    e("v_lshlrev_b32 v40, 4, v0")
    e(f"s_add_u32 s44, s28, {wsoff<<20:#x}"); e("s_addc_u32 s45, s29, 0"); e(f"s_mov_b32 s46, {WSSZ:#x}"); e("s_mov_b32 s47, 0x20000")
    e("s_lshl_b32 s35, s34, 5"); e("s_add_u32 s35, s35, s32"); e("s_lshl_b32 s35, s35, 2")
    e("s_and_b32 s50, s31, 3"); e("s_add_u32 s35, s35, s50")
    e("s_waitcnt lgkmcnt(0)")
    tag_consts()
    e("v_mov_b32 v63, s55")
    e("s_cmp_lg_u32 s33, 0"); e("s_cbranch_scc1 L_hb")
    def rows_mfma(waits):
        e("s_mov_b32 s52, 0x01000100"); e("s_mov_b32 s53, 0x03020302")
        if waits: e("s_waitcnt vmcnt(16)")
        for s_ in range(16):
            e(f"v_perm_b32 v32, v{8 + s_//2}, v{8 + s_//2}, s{52 + s_%2}")
            for i in range(4): e(f"v_and_b32 v{24+i}, v32, v{4+i}")
            if waits: e(f"s_waitcnt vmcnt({15-s_})"); e("s_nop 0")
            else: e("s_nop 1")
            e(f"v_mfma_f32_16x16x32_bf16 v[56:59], v[24:27], v[{64+4*s_}:{67+4*s_}], {'v[56:59]' if s_ else '0'}")
    rows_mfma(True)
    e("s_lshl_b32 s50, s32, 13"); e(f"s_add_u32 s50, s50, {QPA:#x}")
    e("s_lshl_b32 s51, s54, 10"); e("s_add_u32 s51, s51, s50")
    e("s_nop 3")
    put_tag(56, 63)
    e("buffer_store_dwordx4 v[56:59], v40, s[44:47], s51 offen sc1")
    def poll_begin(g=None):
        n = u(); e(f"s_mov_b32 s79, {gspin if g is None else g}"); lab(f"L_g{n}"); return n
    def poll_end(n, sl):
        e("s_not_b64 s[80:81], vcc"); e("s_mov_b64 exec, -1"); e(f"s_cbranch_scc0 L_gd{n}")
        e("s_sub_u32 s79, s79, 1"); e(f"s_cbranch_scc1 L_gd{n}")
        if sl: e(f"s_sleep {sl}")
        e(f"s_branch L_g{n}")
        lab(f"L_gd{n}")
    if stamps: e("s_memrealtime s[86:87]")
    c("helper 0 adds up the eight slices for this workgroup's batch")
    e("v_and_b32 v42, 31, v0"); e("v_lshlrev_b32 v42, 4, v42"); e("v_lshrrev_b32 v24, 5, v0"); e("v_lshl_add_u32 v42, v24, 10, v42")
    e("v_lshlrev_b32 v43, 4, v1"); e("v_lshl_add_u32 v43, v24, 2, v43"); e("v_and_b32 v24, 1, v2"); e("v_lshl_add_u32 v43, v24, 3, v43")
    e("s_lshl_b32 s51, s34, 9"); e("s_add_u32 s50, s50, s51"); e("s_add_u32 s51, s50, 0x1000")
    e("s_waitcnt vmcnt(0)")
    if stamps: e("s_memrealtime s[88:89]")
    if q1: e(f"s_sleep {q1}")
    n = poll_begin(spin)
    for t in range(4): e(f"buffer_load_dwordx4 v[{8+4*t}:{11+4*t}], v42, s[44:47], s{50+t//2} offen offset:{2048*(t%2)} sc1")
    for t in range(4):
        e(f"s_waitcnt vmcnt({3-t})"); get_tag(24 + t, 8 + 4 * t)
    for t in range(4): e(f"v_cmpx_eq_u32 vcc, s55, v{24+t}")
    poll_end(n, qslp)
    for k in range(4): e(f"v_add_f32 v{8+k}, v{8+k}, v{12+k}")
    for k in range(4): e(f"v_add_f32 v{16+k}, v{16+k}, v{20+k}")
    for k in range(4): e(f"v_add_f32 v{8+k}, v{8+k}, v{16+k}")
    e("s_nop 0")
    e("v_permlane32_swap_b32 v8, v10"); e("v_permlane32_swap_b32 v9, v11")
    e("v_add_f32 v8, v8, v10"); e("v_add_f32 v9, v9, v11")
    e("v_cvt_pk_bf16_f32 v8, v8, v9")
    e(f"ds_write_b32 v43, v8 offset:{L_QA}")
    e("s_waitcnt lgkmcnt(0)")
    lab("L_hb")
    if stamps: e("s_memrealtime s[82:83]")
    c("wo_A: register slot s holds row h*128 + 32g + ((s + 4j) & 31), columns hw*128..")
    e("s_lshl_b32 s52, s32, 17"); e("s_lshl_b32 s51, s33, 8"); e("s_add_u32 s52, s52, s51")
    e("v_lshlrev_b32 v33, 15, v2"); e("v_lshl_add_u32 v33, v1, 4, v33")
    e("s_mov_b32 s40, s12"); e("s_mov_b32 s41, s13")
    if rot: e("s_lshl_b32 s51, s54, 12")
    else: e("s_mov_b32 s51, 0")
    e("s_barrier")
    for t in range(8):
        e("s_add_u32 s50, s52, s51")
        for k in range(4):
            s_ = 4 * t + k
            if s_ >= wth: e(f"s_waitcnt vmcnt({wth-1})")
            e(f"buffer_load_dwordx4 v[{128+4*s_}:{131+4*s_}], v33, s[40:43], s50 offen offset:{k*1024} {wpol}")
        if t < 7:
            e("s_add_u32 s51, s51, 0x1000"); e("s_and_b32 s51, s51, 0x7000")
    e("s_cmp_lg_u32 s33, 1"); e("s_cbranch_scc1 L_hfinal")

    agent_start = len(L)
    def lds_wait(off, val):
        n = u()
        e(f"s_mov_b32 s50, {spin}")
        lab(f"L_p{n}")
        e(f"ds_read_b32 v24, v41 offset:{off}"); e("s_waitcnt lgkmcnt(0)")
        e("v_readfirstlane_b32 s51, v24"); e("s_sub_u32 s50, s50, 1"); e(f"s_cbranch_scc1 L_pd{n}")
        e(f"s_cmp_ge_u32 s51, {val}"); e(f"s_cbranch_scc1 L_pd{n}")
        e("s_sleep 16"); e(f"s_branch L_p{n}")
        lab(f"L_pd{n}")
    c("job 0: 64 of the 512 rows of the q projection of head h (branch B)")
    e("s_lshl_b32 s50, s32, 8"); e("s_lshl_b32 s51, s54, 19"); e("s_add_u32 s50, s50, s51"); e("s_lshl_b32 s51, s54, 7")
    e("s_mov_b32 s36, s14"); e("s_mov_b32 s37, s15"); e("s_mov_b32 s40, s20"); e("s_mov_b32 s41, s21")
    for k in range(2): e(f"buffer_load_dwordx4 v[{8+4*k}:{11+4*k}], v35, s[36:39], s51 offen offset:{16*k}")
    for t in range(16):
        e(f"s_waitcnt vmcnt({bth-1})")
        e(f"buffer_load_dwordx4 v[{64+4*t}:{67+4*t}], v3, s[40:43], s50 offen nt")
        if t < 15: e("s_add_u32 s50, s50, 0x2000")
    rows_mfma(True)
    e("s_lshl_b32 s50, s32, 13"); e(f"s_add_u32 s50, s50, {QPB:#x}")
    e("s_lshl_b32 s51, s54, 10"); e("s_add_u32 s51, s51, s50")
    e("s_nop 3")
    put_tag(56, 63)
    e("buffer_store_dwordx4 v[56:59], v40, s[44:47], s51 offen sc1")
    c("job 1: add up the eight slices for q columns 16j..16j+15 of head h, both batches")
    e("v_lshrrev_b32 v42, 1, v0"); e("v_lshlrev_b32 v42, 8, v42"); e("v_and_b32 v24, 1, v0"); e("v_lshl_add_u32 v42, v24, 4, v42")
    e("s_lshl_b32 s52, s32, 13"); e("s_lshl_b32 s51, s54, 5"); e("s_add_u32 s52, s52, s51"); e(f"s_add_u32 s52, s52, {QPB:#x}")
    if T1: lds_wait(8, 256 * T1)
    n = poll_begin()
    e("buffer_load_dwordx4 v[8:11], v42, s[44:47], s52 offen sc1")
    e("s_waitcnt vmcnt(0)")
    get_tag(16, 8); e("v_cmp_eq_u32 vcc, s55, v16")
    poll_end(n, slp)
    for k in range(4): e(f"v_add_f32_dpp v{8+k}, v{8+k}, v{8+k} row_ror:8 row_mask:0xf bank_mask:0xf")
    for sw in (16, 32):
        for k in range(4): e(f"v_mov_b32 v{12+k}, v{8+k}")
        e("s_nop 0")
        for k in range(4): e(f"v_permlane{sw}_swap_b32 v{8+k}, v{12+k}")
        for k in range(4): e(f"v_add_f32 v{8+k}, v{8+k}, v{12+k}")
    put_tag(8, 63)
    e("s_lshl_b32 s50, s32, 3"); e("s_add_u32 s50, s50, s54"); e("s_lshl_b32 s50, s50, 7"); e(f"s_add_u32 s50, s50, {QB:#x}")
    e("s_mov_b64 exec, 0xff"); e("buffer_store_dwordx4 v[8:11], v40, s[44:47], s50 offen sc1"); e("s_mov_b64 exec, -1")
    c("gather addresses for job 2: granule (j = (l>>2)&7, half, c'), upper lanes = next head")
    e("v_lshrrev_b32 v42, 2, v0"); e("v_lshlrev_b32 v42, 7, v42"); e("v_and_b32 v24, 3, v0"); e("v_lshl_add_u32 v42, v24, 4, v42")
    e("v_lshrrev_b32 v43, 2, v0"); e("v_lshlrev_b32 v43, 5, v43")
    e("v_and_b32 v24, 1, v0"); e("v_lshl_add_u32 v43, v24, 4, v43"); e("v_bfe_u32 v24, v0, 1, 1"); e("v_lshl_add_u32 v43, v24, 3, v43")
    c("job 2: q of the four heads of this workgroup's B unit -> LDS")
    e("s_lshl_b32 s52, s30, 12"); e("s_lshr_b32 s51, s31, 4"); e("s_lshl_b32 s51, s51, 6"); e("s_add_u32 s52, s52, s51")
    e(f"s_add_u32 s52, s52, {QB:#x}")
    lds_wait(8, 256 * T2)
    n = poll_begin()
    e("buffer_load_dwordx4 v[8:11], v42, s[44:47], s52 offen sc1")
    e("buffer_load_dwordx4 v[12:15], v42, s[44:47], s52 offen offset:2048 sc1")
    e("s_waitcnt vmcnt(0)")
    get_tag(16, 8); get_tag(17, 12)
    e("v_cmpx_eq_u32 vcc, s55, v16"); e("v_cmpx_eq_u32 vcc, s55, v17")
    poll_end(n, slp)
    for q in range(4): e(f"v_cvt_pk_bf16_f32 v{16+q}, v{8+2*q}, v{9+2*q}")
    e(f"ds_write_b64 v43, v[16:17] offset:{L_QB}"); e(f"ds_write_b64 v43, v[18:19] offset:{L_QB+512}")
    e("v_mov_b32 v25, 1")
    e("s_waitcnt lgkmcnt(0)")
    e("ds_write_b32 v41, v25")
    c("wo_B slice: rows h*128 + kq*64 + 16g + s, columns cq*128..")
    e("s_lshr_b32 s48, s54, 2"); e("s_and_b32 s49, s54, 3")
    e("s_lshl_b32 s50, s32, 17"); e("s_lshl_b32 s51, s48, 16"); e("s_add_u32 s50, s50, s51")
    e("s_lshl_b32 s51, s49, 8"); e("s_add_u32 s50, s50, s51")
    e("v_lshlrev_b32 v3, 14, v2"); e("v_lshl_add_u32 v3, v1, 4, v3")
    e("s_mov_b32 s40, s22"); e("s_mov_b32 s41, s23")
    for s_ in range(16):
        e(f"s_waitcnt vmcnt({bth-1})")
        e(f"buffer_load_dwordx4 v[{64+4*s_}:{67+4*s_}], v3, s[40:43], s50 offen offset:{(s_%4)*1024} nt")
        if s_ % 4 == 3 and s_ < 15: e("s_add_u32 s50, s50, 0x1000")
    c("job 3: merge the four waves' B partials, publish (outputs first, then the tagged max/sum line)")
    lds_wait(4, 256)
    e("v_lshlrev_b32 v42, 4, v2")
    e("v_lshlrev_b32 v43, 5, v0")
    for w in range(4): e(f"ds_read_b32 v{8+w}, v42 offset:{L_RECB + w*RECB + 2048}")
    e("s_waitcnt lgkmcnt(0)")
    for w in range(4):
        for a in range(4): e(f"ds_read_b32 v{12+4*w+a}, v42 offset:{L_RECB + w*RECB + 2304 + 64*a}")
        e("s_waitcnt lgkmcnt(0)")
    e("v_max3_f32 v44, v8, v9, v10"); e("v_max_f32 v44, v44, v11")
    for w in range(4): e(f"v_sub_f32 v{8+w}, v{8+w}, v44")
    for w in range(4): e(f"v_exp_f32 v{8+w}, v{8+w}")
    e("v_mov_b32 v45, 0"); e("v_mov_b32 v46, 0"); e("v_mov_b32 v47, s55")
    for w in range(4):
        for a in range(4): e(f"v_fmac_f32 v45, v{8+w}, v{12+4*w+a}")
    for k in range(8): e(f"v_mov_b32 v{48+k}, 0")
    for w in range(4):
        e(f"ds_read_b128 v[12:15], v43 offset:{L_RECB + w*RECB}")
        e(f"ds_read_b128 v[16:19], v43 offset:{L_RECB + w*RECB + 16}")
        e("s_waitcnt lgkmcnt(0)")
        for k in range(8): e(f"v_fmac_f32 v{48+k}, v{8+w}, v{12+k}")
    for k in range(4): e(f"v_cvt_pk_bf16_f32 v{48+k}, v{48+2*k}, v{49+2*k}")
    e("s_lshr_b32 s52, s31, 4"); e("s_lshl_b32 s52, s52, 3"); e("s_add_u32 s52, s52, s30")
    e("s_and_b32 s51, s31, 15"); e("s_lshl_b32 s52, s52, 4"); e("s_add_u32 s52, s52, s51")
    e("s_lshl_b32 s50, s52, 10"); e(f"s_add_u32 s50, s50, {PBO:#x}")
    e("buffer_store_dwordx4 v[48:51], v40, s[44:47], s50 offen sc1")
    e("s_lshl_b32 s50, s52, 7"); e(f"s_add_u32 s50, s50, {PBML:#x}")
    e("v_lshlrev_b32 v42, 5, v2"); e("v_lshl_add_u32 v42, v1, 4, v42")
    e("s_waitcnt vmcnt(0)")
    e("s_mov_b32 exec_lo, 0x00030003"); e("s_mov_b32 exec_hi, 0x00030003")
    e("buffer_store_dwordx4 v[44:47], v42, s[44:47], s50 offen sc1")
    e("s_mov_b64 exec, -1")
    c("job 4: finish half of the dims of head h (both batches), multiply by the wo slice")
    e("v_lshrrev_b32 v42, 5, v0")
    e("v_lshlrev_b32 v43, 14, v42"); e("v_lshl_add_u32 v43, v1, 7, v43")
    e("v_bfe_u32 v33, v0, 3, 2")
    e("v_lshlrev_b32 v35, 17, v42"); e("v_lshl_add_u32 v35, v33, 10, v35")
    e("v_and_b32 v32, 7, v0"); e("v_lshl_add_u32 v35, v32, 4, v35")
    e("v_lshl_add_u32 v33, v42, 5, v33"); e("v_lshlrev_b32 v33, 2, v33")
    e("s_lshr_b32 s51, s31, 3")
    e("s_lshl_b32 s52, s30, 11"); e("s_lshl_b32 s53, s51, 5"); e("s_add_u32 s52, s52, s53"); e(f"s_add_u32 s52, s52, {PBML:#x}")
    e("s_lshl_b32 s53, s30, 14"); e("s_lshl_b32 s51, s51, 8"); e("s_add_u32 s53, s53, s51")
    e("s_lshl_b32 s51, s48, 7"); e("s_add_u32 s53, s53, s51"); e(f"s_add_u32 s53, s53, {PBO:#x}")
    lds_wait(8, 256 * (NA1 + 4 + T4))
    n = poll_begin()
    e("buffer_load_dwordx4 v[8:11], v43, s[44:47], s52 offen sc1")
    e("s_waitcnt vmcnt(0)")
    e("v_cmp_eq_u32 vcc, s55, v11")
    poll_end(n, slp)
    for t in range(4):
        e(f"buffer_load_dwordx4 v[{44+4*t}:{47+4*t}], v35, s[44:47], s53 offen sc1")
        if t < 3: e("s_add_u32 s53, s53, 0x1000")
    e("v_max_f32_dpp v12, v8, v8 quad_perm:[1,0,3,2] row_mask:0xf bank_mask:0xf"); e("s_nop 1")
    for d in ("quad_perm:[2,3,0,1]", "row_ror:4", "row_ror:8"):
        e(f"v_max_f32_dpp v12, v12, v12 {d} row_mask:0xf bank_mask:0xf"); e("s_nop 1")
    e("v_sub_f32 v8, v8, v12"); e("v_exp_f32 v8, v8"); e("s_nop 0"); e("v_mul_f32 v9, v8, v9"); e("s_nop 1")
    for d in ("quad_perm:[1,0,3,2]", "quad_perm:[2,3,0,1]", "row_ror:4", "row_ror:8"):
        e(f"v_add_f32_dpp v9, v9, v9 {d} row_mask:0xf bank_mask:0xf"); e("s_nop 1")
    e("v_rcp_f32 v9, v9"); e("s_nop 0"); e("v_mul_f32 v8, v8, v9")
    for t in range(4): e(f"ds_bpermute_b32 v{12+t}, v33, v8 offset:{16*t}")
    for k in range(8): e(f"v_mov_b32 v{16+k}, 0")
    e("s_waitcnt vmcnt(0) lgkmcnt(0)")
    for t in range(4):
        for k in range(4):
            e(f"v_lshlrev_b32 v24, 16, v{44+4*t+k}"); e(f"v_and_b32 v25, 0xffff0000, v{44+4*t+k}")
            e(f"v_fmac_f32 v{16+2*k}, v{12+t}, v24"); e(f"v_fmac_f32 v{17+2*k}, v{12+t}, v25")
    e("s_nop 1")
    for k in range(4): e(f"v_permlane16_swap_b32 v{16+k}, v{20+k}")
    for k in range(4): e(f"v_add_f32 v{16+k}, v{16+k}, v{20+k}")
    for k in range(4): e(f"v_add_f32_dpp v{16+k}, v{16+k}, v{16+k} row_ror:8 row_mask:0xf bank_mask:0xf")
    e("v_cvt_pk_bf16_f32 v16, v16, v17"); e("v_cvt_pk_bf16_f32 v17, v18, v19")
    e("v_lshlrev_b32 v46, 7, v42"); e("v_lshl_add_u32 v46, v32, 4, v46"); e("v_and_b32 v47, 1, v2"); e("v_lshl_add_u32 v46, v47, 3, v46")
    e(f"ds_write_b64 v46, v[16:17] offset:{L_SCR}")
    e("v_lshlrev_b32 v46, 7, v34"); e("v_lshl_add_u32 v46, v2, 5, v46")
    e("s_waitcnt lgkmcnt(0)")
    for k in range(2): e(f"ds_read_b128 v[{8+4*k}:{11+4*k}], v46 offset:{L_SCR + 16*k}")
    e("s_waitcnt lgkmcnt(0)")
    rows_mfma(False)
    e("s_lshl_b32 s52, s32, 1"); e("s_add_u32 s52, s52, s48"); e("s_lshl_b32 s52, s52, 2"); e("s_add_u32 s52, s52, s49")
    e("s_lshl_b32 s52, s52, 10"); e(f"s_add_u32 s52, s52, {YB:#x}")
    e("s_nop 2")
    put_tag(56, 63)
    if YBT >= 0:
        if YBT: lds_wait(8, 256 * YBT)
        e("buffer_store_dwordx4 v[56:59], v40, s[44:47], s52 offen sc1")

    if exp & 0xff0:
        for k in range(agent_start, len(L)):
            t = L[k]
            if exp & 16 and "buffer_store" in t: L[k] = "  s_nop 0"
            if exp & 32 and "buffer_load" in t and "s[44:47]" in t: L[k] = "  s_nop 0"
            if exp & 64 and "buffer_load" in t and "s[40:43]" in t: L[k] = "  s_nop 0"
            if exp & 128 and "buffer_store" in t and "sc1" in t: L[k] = t + " nt"
            if exp & 512 and "buffer_store" in t and "sc1" in t: L[k] = t.replace(" sc1", "")
            if exp & 1024 and "buffer_load" in t and "s[44:47]" in t: L[k] = t.replace(" sc1", "")
            if exp & 2048 and "buffer_store_dwordx4 v[44:47]" in t: L[k] = "  s_nop 0"
            if exp & 256 and "buffer_load" in t and "s[44:47]" in t: L[k] = t + " nt"
    lab("L_hfinal")
    e(f"s_mul_i32 s50, s54, {2*rot}"); e("v_add_u32 v8, s50, v1"); e("v_and_b32 v8, 15, v8")
    e("v_lshl_add_u32 v8, v2, 4, v8"); e("v_lshlrev_b32 v8, 3, v8"); e("v_mov_b32 v9, 0")
    e("s_lshl_b32 s50, s35, 11"); e("s_lshl_b32 s51, s33, 9"); e("s_add_u32 s50, s50, s51"); e(f"s_add_u32 s50, s50, {YA:#x}")
    e("s_waitcnt vmcnt(0)")
    e("s_barrier")
    e(f"ds_read_b128 v[12:15], v9 offset:{L_MA}")
    for w in range(4): e(f"ds_read_b64 v[{16+2*w}:{17+2*w}], v8 offset:{L_RECA + w*RECA}")
    if YBT < 0:
        e("s_cmp_lg_u32 s33, 1"); e("s_cbranch_scc1 L_hf2")
        e("buffer_store_dwordx4 v[56:59], v40, s[44:47], s52 offen sc1")
        lab("L_hf2")
    e("s_waitcnt lgkmcnt(4)")
    e("v_max3_f32 v11, v12, v13, v14"); e("v_max_f32 v11, v11, v15")
    for w in range(4): e(f"v_sub_f32 v{12+w}, v{12+w}, v11")
    for w in range(4): e(f"v_exp_f32 v{12+w}, v{12+w}")
    e("s_waitcnt lgkmcnt(0)")
    e("v_mul_f32 v16, v12, v16"); e("v_mul_f32 v17, v12, v17")
    for w in range(1, 4):
        e(f"v_fmac_f32 v16, v{12+w}, v{16+2*w}"); e(f"v_fmac_f32 v17, v{12+w}, v{17+2*w}")
    e("v_cvt_pk_bf16_f32 v18, v16, v16"); e("v_cvt_pk_bf16_f32 v19, v17, v17"); e("s_nop 0")
    def ya(s):
        for i in range(4):
            e(f"v_and_b32_dpp v{24+4*(s%2)+i}, v{18+s%2}, v{4+i} row_newbcast:{s//2} row_mask:0xf bank_mask:0xf")
    ya(0)
    for s in range(32):
        if s < 31: ya(s + 1)
        else: e("s_nop 1")
        a = 24 + 4 * (s % 2)
        e(f"v_mfma_f32_16x16x32_bf16 v[36:39], v[{a}:{a+3}], v[{128+4*s}:{131+4*s}], {'v[36:39]' if s else '0'}")
    e("s_nop 6")
    e("s_mov_b32 exec_hi, 0")
    put_tag(36, 63)
    e("buffer_store_dwordx4 v[36:39], v40, s[44:47], s50 offen sc1")
    if stamps:
        e("s_cmp_lg_u32 s33, 0"); e("s_cbranch_scc1 L_end")
        e("s_memrealtime s[84:85]"); e("s_waitcnt lgkmcnt(0)")
        e("s_mov_b64 exec, 1"); e("s_mov_b32 s44, s28"); e("s_mov_b32 s45, s29")
        for k in range(8): e(f"v_mov_b32 v{16+k}, s{82+k}")
        e("s_lshl_b32 s51, s2, 7"); e("s_add_u32 s51, s51, 0x20030")
        e("buffer_store_dwordx4 v[16:19], off, s[44:47], s51")
        e("buffer_store_dwordx4 v[20:23], off, s[44:47], s51 offset:16")
    lab("L_end")
    e("s_endpgm")

    if drop:
        job = None
        for k, t in enumerate(L):
            if t.startswith("  ; job "): job = t[8]
            if t.startswith("  ; wo_B slice"): job = "b"
            if t.startswith("  ; wo_A:"): job = "a"
            if t.startswith("L_hfinal"): job = "f"
            if job is not None and "buffer_" in t and "off," not in t:
                if job + ("s" if "store" in t else "l") in drop.split("."): L[k] = "  s_nop 0"
    L.append('.section .rodata,"a"'); L.append(".p2align 6")
    L.append(f".amdhsa_kernel {NAME}_kernel")
    for s in ("next_free_vgpr 256", "next_free_sgpr 96", "accum_offset 256", "group_segment_fixed_size 0",
              "kernarg_size 104", "user_sgpr_count 2", "user_sgpr_kernarg_segment_ptr 1",
              "system_sgpr_workgroup_id_x 1", "float_denorm_mode_32 3"):
        L.append("  .amdhsa_" + s)
    L.append(".end_amdhsa_kernel")
    return "\n".join(L) + "\n"

if __name__ == "__main__":
    import os
    names = []
    os.makedirs("k", exist_ok=True)
    for spec in sys.argv[1:]:
        p = {}
        for x in spec.split(","):
            if not x: continue
            k, v = x.split("=")
            p[k] = v.replace("+", " ") if k in ("wpol", "drop") else int(v)
            if k == "wpol" and v == "def": p[k] = ""
        fn = "k/k_" + (spec.replace(",", "_").replace("=", "").replace("+", "") or "base") + ".s"
        open(fn, "w").write(gen(**p))
        names.append("dev/" + fn)
    print(" ".join(names))
```

```python
import sys, math, struct
NAME = "concat_heads__mha_block_cached__gqa_block_cached__decode"

HEADER = """; Kernarg layout for this problem (104 bytes, ptrs only, base s[0:1]):
"""

def f2u(x): return struct.unpack("<I", struct.pack("<f", x))[0]

WSB  = 0x100000
EPOCH = WSB
QB   = WSB + 0x010000
PBO  = WSB + 0x040000
PBML = WSB + 0x0C0000
YB   = WSB + 0x100000
YA   = WSB + 0x140000
MLA  = WSB + 0x1C0000
QPA  = WSB + 0x200000
QPB  = WSB + 0x240000
PROG = WSB + 0x280000
WSSZ = 0x400000
L_QA   = 0x0000
L_QB   = 0x0400
L_FLAG = 0x0800
L_SCR  = 0x0900
L_MA   = 0x0A00
L_RED  = 0x0A40
L_RECA = 0x0D00; RECA = 576
L_RECB = 0x1800; RECB = 2560
L_WO   = 0x4000
LDS_BYTES = L_WO + 0x20000

def gen(inf=5, inf0=5, NA1=8, st1=260, st2=68, wpol="", stamps=0, spin=1 << 20, slp=64, wsoff=0,
        T1=5, T2=7, T4=2, YBT=-1, qslp=0, wth=2, bth=4, rspin=1 << 20, gspin=1 << 20, drop="",
        hi=0, ms="", r0=6, rk=4, G=16, diagw=0, pd=0, mlr=1, rsl=0, wb2=0, wb3=0, ot=0):
    L = []
    def e(s): L.append("  " + s)
    def lab(s): L.append(s + ":")
    def c(s): L.append("  ; " + s)
    uid = [0]
    def u():
        uid[0] += 1; return uid[0]
    SC = f2u(128 ** -0.5 * math.log2(math.e))
    NA2 = 16 - NA1
    DPP = "row_mask:0xf bank_mask:0xf"

    L.append(HEADER.rstrip("\n"))
    L.append(f"; @launch grid=(256,1,1) block=(512,1,1) lds={LDS_BYTES}")
    L.append('.amdgcn_target "amdgcn-amd-amdhsa--gfx950"')
    L.append(".text"); L.append(f".globl {NAME}_kernel"); L.append(".p2align 8")
    L.append(f".type {NAME}_kernel,@function"); L.append(f"{NAME}_kernel:")

    def stamp(k, lvl=1):
        if stamps >= lvl: e(f"s_memrealtime s[{64+2*k}:{65+2*k}]")
    def tag_consts():
        for k in range(4): e(f"s_mov_b32 s{56+k}, {0x07060500 + k:#x}")
        e("s_mov_b32 s76, 0x0c0c0400"); e("s_mov_b32 s77, 0x0c040100"); e("s_mov_b32 s78, 0x04020100")
    def put_tag(r, vn):
        for k in range(4): e(f"v_perm_b32 v{r+k}, v{r+k}, v{vn}, s{56+k}")
    def get_tag(t, r):
        e(f"v_perm_b32 v{t}, v{r+1}, v{r}, s76"); e(f"v_perm_b32 v{t}, v{r+2}, v{t}, s77"); e(f"v_perm_b32 v{t}, v{r+3}, v{t}, s78")

    e("s_cmp_ge_u32 s2, 256"); e("s_cbranch_scc1 L_end")
    e("s_load_dwordx16 s[4:19], s[0:1], 0")
    e("s_load_dwordx8 s[20:27], s[0:1], 64")
    e("s_load_dwordx2 s[28:29], s[0:1], 96")
    if stamps or diagw: e("s_memrealtime s[60:61]")
    e("v_lshrrev_b32 v1, 6, v0")
    e("s_and_b32 s30, s2, 7")
    e("v_readfirstlane_b32 s3, v1")
    e("s_lshr_b32 s31, s2, 3")
    e("v_and_b32 v0, 63, v0")
    e("s_lshr_b32 s33, s2, 6"); e("s_lshl2_add_u32 s32, s30, s33")
    e("s_and_b32 s35, s2, 32"); e("s_add_u32 s35, s35, s32")
    e("s_mov_b32 s42, 0x400000"); e("s_mov_b32 s43, 0x20000"); e("s_mov_b32 s39, s43")
    e("s_cmp_ge_u32 s3, 4"); e("s_cbranch_scc1 L_helper")

    RING = 128
    def issue(p):
        r = RING + 4 * p; j = p % 8
        if j < 4: e(f"buffer_load_dwordx4 v[{r}:{r+3}], v2, s[36:39], s44 offen offset:{j*1024} nt")
        else:     e(f"buffer_load_dwordx4 v[{r}:{r+3}], v3, s[40:43], s44 offen offset:{(j-4)*1024} nt")
        if j == 7:
            e("s_add_u32 s44, s44, s45"); e("s_and_b32 s44, s44, 0x3fffff")
    def set_unit(kb, vb):
        e(f"s_add_u32 s36, s{kb}, s50"); e(f"s_addc_u32 s37, s{kb+1}, 0")
        e(f"s_add_u32 s40, s{vb}, s50"); e(f"s_addc_u32 s41, s{vb+1}, 0")
    c("K lane offset: key=(l>>2)&3, d=(l>>4)*32+(l&3)*8 ; V lane offset: l*16")
    e("v_lshlrev_b32 v3, 4, v0")
    e("v_and_b32 v2, 48, v3"); e("v_and_b32 v4, 12, v0"); e("v_lshl_add_u32 v2, v4, 6, v2")
    e("v_and_b32 v5, 48, v0"); e("v_lshl_add_u32 v2, v5, 2, v2")
    e("s_and_b32 s44, s31, 3"); e("s_lshl2_add_u32 s44, s44, s3")
    e(f"s_mul_i32 s50, s35, {st1//4}"); e("s_add_u32 s44, s44, s50"); e("s_lshl_b32 s44, s44, 22"); e("s_lshr_b32 s44, s44, 10")
    e("s_mov_b32 s38, s42"); e("s_lshl_b32 s50, s35, 22")
    e("s_waitcnt lgkmcnt(0)")
    set_unit(6, 8)
    assert inf0 <= 7
    for p in range(inf0): issue(p)
    e("s_barrier")
    e("s_mov_b32 s45, 0x10000")
    c("constants while the first loads fly")
    e("v_and_b32 v6, 1, v0"); e("v_lshlrev_b32 v6, 4, v6"); e("v_mov_b32 v7, 0xffff"); e("v_lshlrev_b32 v6, v6, v7")
    e("v_and_b32 v7, 2, v0"); e("v_cmp_eq_u32 vcc, 0, v7")
    e(f"s_mov_b32 s48, {SC:#x}")
    e("v_mov_b32 v8, 0xff800000")
    e("v_cndmask_b32 v4, 0, v6, vcc")
    e("v_xor_b32 v5, v4, v6")
    e("v_mov_b32 v9, v8"); e("v_mov_b32 v10, 0")
    e("v_mov_b32 v11, v8"); e("v_mov_b32 v12, v8"); e("v_mov_b32 v13, 0")
    for r in range(40, 56): e(f"v_mov_b32 v{r}, 0")
    c("LDS address of the q operand: (g*32 + (l&3)*8)*2")
    e("v_and_b32 v6, 0xff, v2")
    e("v_bfe_u32 v7, v0, 2, 2")
    for s in range(4): e(f"v_cmp_eq_u32 s[{84+2*s}:{85+2*s}], {s}, v7")
    tag_consts()
    e(f"v_mov_b32 v14, {L_FLAG}"); e("v_mov_b32 v15, 1"); e("v_mov_b32 v90, 0")
    e("s_mov_b32 s33, 0"); e("s_mov_b32 s34, 0")
    e("s_mov_b32 s46, 0")
    e(f"s_mov_b32 s47, {NA1}")
    e(f"s_mov_b32 s50, {spin}")
    for p in range(inf0, 32):
        e(f"s_waitcnt vmcnt({inf0-1})"); issue(p)
    stamp(0)
    lab("L_wqa")
    e("ds_read_b64 v[108:109], v14 offset:16"); e(f"ds_read_b128 v[104:107], v6 offset:{L_QA}")
    e("s_waitcnt lgkmcnt(0)")
    e("v_readfirstlane_b32 s51, v108"); e("v_readfirstlane_b32 s55, v109"); e("s_sub_u32 s50, s50, 1")
    e("s_cbranch_scc1 L_wqa_done")
    e("s_cmp_eq_u32 s51, 0"); e("s_cbranch_scc1 L_wqa")
    lab("L_wqa_done")
    for s in range(4):
        for k in range(4): e(f"v_cndmask_b32 v{16+4*s+k}, 0, v{104+k}, s[{84+2*s}:{85+2*s}]")
    stamp(1)

    def wi(p, on):
        if on:
            if hi:
                n = u()
                e(f"s_bitcmp1_b32 s33, {p}"); e(f"s_cbranch_scc1 L_t{n}")
                e(f"s_waitcnt vmcnt({inf-1})")
                lab(f"L_t{n}")
                e(f"s_waitcnt vmcnt({hi-1})")
            else:
                e(f"s_waitcnt vmcnt({inf-1})")
            issue(p)
    def need(p, on):
        if not on and p >= 32 - max(inf, hi): e(f"s_waitcnt vmcnt({31-p})")
    def diag(t, d):
        e(f"v_mov_b32_dpp v{t}, v{d} quad_perm:[0,0,0,0] {DPP}")
        for k in range(1, 4):
            e(f"v_add_f32_dpp v{t}, v{d+k}, v{t} quad_perm:[{k},{k},{k},{k}] {DPP}")
    def xrow_max(v, t):
        e(f"v_mov_b32 v{t}, v{v}"); e("s_nop 1"); e(f"v_permlane16_swap_b32 v{v}, v{t}"); e("s_nop 1")
        e(f"v_max_f32 v{v}, v{v}, v{t}")
        e(f"v_mov_b32 v{t}, v{v}"); e("s_nop 1"); e(f"v_permlane32_swap_b32 v{v}, v{t}"); e("s_nop 1")
        e(f"v_max_f32 v{v}, v{v}, v{t}")
    def pv(b0, O, on):
        for j in range(4):
            r = RING + 4 * (b0 + 4 + j)
            need(b0 + 4 + j, on)
            e(f"v_mfma_f32_16x16x16_bf16 v[{O}:{O+3}], v[{80+2*j}:{81+2*j}], v[{r}:{r+1}], v[{O}:{O+3}]")
            e(f"v_mfma_f32_16x16x16_bf16 v[{O+4}:{O+7}], v[{80+2*j}:{81+2*j}], v[{r+2}:{r+3}], v[{O+4}:{O+7}]")
            wi(b0 + 4 + j, on)
    def pick_mask(b0, mha=False):
        if ms or wb3:
            e("s_waitcnt lgkmcnt(0)"); e("v_readfirstlane_b32 s33, v90"); e("ds_read_b32 v90, v14 offset:12")
        if wb3 and b0 == 8:
            c("waves that start the iteration late within the workgroup run a few loads deeper")
            e("v_readfirstlane_b32 s50, v91"); e("s_sub_i32 s50, s50, s34"); e("s_addk_i32 s34, 256")
            e("s_cmp_ge_i32 s50, 128"); e(f"s_cselect_b32 s51, {((1 << wb2) - 1) << 8:#x}, 0")
            e("s_cmp_ge_i32 s50, 192"); e(f"s_cselect_b32 s51, {((1 << wb3) - 1) << 8:#x}, s51")
            e("s_or_b32 s33, s33, s51")
        if ot and mha and ((0xffffffff << (32 - ot)) >> b0) & 0xff:
            e("s_add_u32 s50, s47, s46"); e("s_cmp_eq_u32 s50, 65")
            e(f"s_cselect_b32 s50, {(0xffffffff << (32 - ot)) & 0xffffffff:#x}, 0"); e("s_or_b32 s33, s33, s50")
        if b0 == 0:
            e("ds_add_rtn_u32 v91, v14, v15 offset:8" if wb3 else "ds_add_u32 v14, v15 offset:8")
    def step_mha(b0, on):
        if on: pick_mask(b0, True)
        for j in range(4):
            r = RING + 4 * (b0 + j)
            need(b0 + j, on)
            e(f"v_mfma_f32_16x16x32_bf16 v[56:59], v[{r}:{r+3}], v[{16+4*j}:{19+4*j}], {'v[56:59]' if j else '0'}")
            wi(b0 + j, on)
        e(f"s_nop {(3 if hi else 5) if on else 7}")
        diag(72, 56)
        n = u()
        e("v_cmp_gt_f32 vcc, v72, v8"); e(f"s_cbranch_vccz L_k{n}")
        c("running max grew: rescale")
        e(f"v_max_f32_dpp v88, v72, v72 row_ror:4 {DPP}"); e("s_nop 1")
        e(f"v_max_f32_dpp v88, v88, v88 row_ror:8 {DPP}")
        xrow_max(88, 89)
        e("v_max_f32 v8, v8, v88"); e("v_mul_f32 v89, s48, v8"); e("v_sub_f32 v88, v9, v89"); e("v_exp_f32 v88, v88")
        e("v_mov_b32 v9, v89"); e("v_mul_f32 v10, v10, v88")
        for k in range(8): e(f"v_mul_f32 v{40+k}, v{40+k}, v88")
        lab(f"L_k{n}")
        e("v_fma_f32 v72, v72, s48, -v9"); e("v_exp_f32 v72, v72"); e("s_nop 0")
        e("v_cvt_pk_bf16_f32 v76, v72, v72"); e("v_add_f32 v10, v10, v72"); e("s_nop 0")
        for j in range(4):
            e(f"v_and_b32_dpp v{80+2*j}, v76, v4 row_newbcast:{4*j} {DPP}")
            e(f"v_and_b32_dpp v{81+2*j}, v76, v5 row_newbcast:{4*j} {DPP}")
        pv(b0, 40, on)
    def step_gqa(b0):
        pick_mask(b0)
        for j in range(4):
            r = RING + 4 * (b0 + j)
            e(f"v_mfma_f32_16x16x32_bf16 v[{56+4*j}:{59+4*j}], v[{r}:{r+3}], v[32:35], 0")
            wi(b0 + j, True)
        for j in range(4): diag(72 + j, 56 + 4 * j)
        n = u()
        e("v_max3_f32 v88, v72, v73, v74"); e("v_max_f32 v88, v88, v75")
        e("v_cmp_gt_f32 vcc, v88, v11"); e(f"s_cbranch_vccz L_k{n}")
        c("running max grew: rescale")
        xrow_max(88, 89)
        e("v_max_f32 v11, v11, v88"); e("v_mul_f32 v89, s48, v11"); e("v_sub_f32 v88, v12, v89"); e("v_exp_f32 v88, v88")
        e("v_mov_b32 v12, v89"); e("v_mul_f32 v13, v13, v88")
        for k in range(4):
            e(f"v_mov_b32_dpp v89, v88 row_newbcast:{4*k} row_mask:{1<<k:#x} bank_mask:0xf")
        for k in range(8): e(f"v_mul_f32 v{48+k}, v{48+k}, v89")
        lab(f"L_k{n}")
        for j in range(4): e(f"v_fma_f32 v{72+j}, v{72+j}, s48, -v12")
        for j in range(4): e(f"v_exp_f32 v{72+j}, v{72+j}")
        e("s_nop 0")
        for j in range(4): e(f"v_cvt_pk_bf16_f32 v{76+j}, v{72+j}, v{72+j}")
        for j in range(4):
            e(f"v_and_b32 v{80+2*j}, v{76+j}, v4"); e(f"v_and_b32 v{81+2*j}, v{76+j}, v5")
        for j in range(4): e(f"v_add_f32 v13, v13, v{72+j}")
        pv(b0, 48, True)

    lab("L_mha")
    e("s_sub_u32 s50, s47, s46")
    e("s_cmp_lg_u32 s50, 1"); e("s_cbranch_scc1 L_mha_go")
    c("issue side moves on to the B unit")
    e("s_mov_b32 s49, s44")
    e("s_lshr_b32 s51, s31, 4"); e("s_lshl3_add_u32 s51, s51, s30")
    e("s_lshl_b32 s50, s51, 22")
    set_unit(16, 18)
    e("s_and_b32 s44, s31, 15"); e("s_lshl2_add_u32 s44, s44, s3")
    e(f"s_mul_i32 s50, s51, {st2//4}"); e("s_add_u32 s44, s44, s50"); e("s_lshl_b32 s44, s44, 22"); e("s_lshr_b32 s44, s44, 10")
    e("s_mov_b32 s45, 0x40000")
    lab("L_mha_go")
    for k in range(4): step_mha(8 * k, True)
    e("s_sub_u32 s47, s47, 1"); e("s_cmp_lg_u32 s47, 0"); e("s_cbranch_scc1 L_mha")
    e("s_cmp_eq_u32 s46, 0"); e("s_cbranch_scc1 L_bseg")
    stamp(4)
    c("addresses for the end game")
    e(f"s_mul_i32 s50, s3, {RECA}"); e(f"s_add_u32 s50, s50, {L_RECA}")
    e("v_add_u32 v6, s50, v3"); e("v_lshl_add_u32 v7, v0, 2, s50")
    e("s_lshl_b32 s50, s3, 2"); e("v_mov_b32 v14, s50")
    e(f"s_add_u32 s36, s28, {wsoff<<20:#x}"); e("s_addc_u32 s37, s29, 0")
    e("s_mov_b32 s40, s24"); e("s_mov_b32 s41, s25"); e("s_mov_b32 s42, 4096")
    for k in range(4): step_mha(8 * k, False)
    c("A partial of this wave -> LDS")
    e(f"v_add_f32_dpp v10, v10, v10 row_ror:4 {DPP}")
    e(f"ds_write_b32 v14, v9 offset:{L_MA}")
    e("s_nop 0")
    e(f"v_add_f32_dpp v10, v10, v10 row_ror:8 {DPP}")
    e("ds_write_b32 v7, v10 offset:256")
    e("s_nop 1")
    e("s_mov_b64 exec, 0xffff")
    for k in range(4): e(f"v_cvt_pk_bf16_f32 v{40+k}, v{40+2*k}, v{41+2*k}")
    e("ds_write_b128 v6, v[40:43]")
    e("s_mov_b64 exec, -1")
    e("s_waitcnt lgkmcnt(0)")
    stamp(5)
    e("s_barrier")
    stamp(0, 2); stamp(1, 2); stamp(2, 2); stamp(3, 2)
    e("s_cmp_lg_u32 s3, 0"); e("s_cbranch_scc1 L_red")
    c("wave 0 publishes (M, L) of the workgroup: lane = (w, row)")
    e("v_and_b32 v6, 12, v0"); e("v_and_b32 v7, 3, v0"); e("v_lshlrev_b32 v7, 6, v7")
    e(f"s_movk_i32 s50, {RECA//4}"); e("v_mad_u32_u24 v7, v6, s50, v7")
    e(f"ds_read_b32 v16, v6 offset:{L_MA}"); e(f"ds_read_b32 v17, v7 offset:{L_RECA+256}")
    e("s_and_b32 s51, s31, 3"); e("s_lshl2_add_u32 s50, s35, s51")
    lm = mlr.bit_length() - 1
    e(f"s_lshl_b32 s50, s50, {7+lm}"); e(f"s_add_u32 s50, s50, {MLA:#x}")
    e("v_mov_b32 v19, s55"); e("v_lshrrev_b32 v22, 16, v19"); e("v_lshrrev_b32 v23, 24, v19")
    e("s_waitcnt lgkmcnt(0)")
    e(f"v_max_f32_dpp v20, v16, v16 row_ror:4 {DPP}"); e("s_nop 1")
    e(f"v_max_f32_dpp v20, v20, v20 row_ror:8 {DPP}")
    e("v_perm_b32 v20, v20, v19, s56")
    e("v_sub_f32 v16, v16, v20"); e("v_exp_f32 v16, v16"); e("s_nop 0"); e("v_mul_f32 v21, v16, v17"); e("s_nop 1")
    for d in ("quad_perm:[1,0,3,2]", "quad_perm:[2,3,0,1]", "row_ror:4", "row_ror:8"):
        e(f"v_add_f32_dpp v21, v21, v21 {d} {DPP}")
        if d != "row_ror:8": e("s_nop 1")
    e("v_perm_b32 v21, v21, v19, s57")
    if mlr < 4: e(f"s_mov_b64 exec, {(1 << (8*mlr)) - 1:#x}")
    elif mlr == 4: e("s_mov_b32 exec_hi, 0")
    e("buffer_store_dwordx4 v[20:23], v3, s[36:39], s50 offen sc1")
    e("s_mov_b64 exec, -1")
    lab("L_red")
    e("s_cmp_ge_u32 s2, 64"); e("s_cbranch_scc1 L_sdone")
    c("reducers: b = (id>>4)&1, one 128-byte line of every contribution; lane = (row, granule)")
    e("v_lshrrev_b32 v6, 3, v0"); e("v_and_b32 v14, 7, v0")
    e("v_bfe_u32 v8, v0, 4, 1"); e("v_lshrrev_b32 v9, 5, v0"); e("v_lshl_add_u32 v8, v8, 1, v9")
    e("v_lshlrev_b32 v10, 3, v0")
    e("s_bfe_u32 s48, s2, 0x10004"); e("s_bfe_u32 s49, s2, 0x20002")
    e("s_lshl_b32 s44, s48, 11"); e("s_lshl_b32 s45, s49, 8"); e("s_add_u32 s44, s44, s45")
    e(f"s_lshl_b32 s54, s3, 7")
    e(f"s_mov_b32 s50, {rspin}")
    e("s_cmp_ge_u32 s2, 32"); e("s_cbranch_scc1 L_redb")
    c("branch A: wave = 8 heads x 4 splits; column = quarter*128 + half*64 + k*16 + (id&1)*8 + granule")
    e("s_lshl_b32 s51, s48, 5"); e("s_lshl3_add_u32 s51, s3, s51")
    e("v_add_u32 v6, s51, v6")
    e(f"v_lshlrev_b32 v7, {9+lm}, v6")
    e("v_lshlrev_b32 v6, 13, v6"); e("v_lshl_add_u32 v6, v14, 4, v6")
    e("s_and_b32 s51, s2, 15"); e("s_lshl_b32 s51, s51, 7")
    e(f"s_add_u32 s52, s51, {YA:#x}"); e("s_add_u32 s53, s52, 4096")
    e(f"s_and_b32 s51, s51, {(mlr-1)*128}"); e(f"s_add_u32 s51, s51, {MLA:#x}")
    def ra_loads():
        for q in range(4): e(f"buffer_load_dwordx4 v[{40+4*q}:{43+4*q}], v7, s[36:39], s51 offen offset:{128*mlr*q} sc1")
        for q in range(4): e(f"buffer_load_dwordx4 v[{24+4*q}:{27+4*q}], v6, s[36:39], s{52+q//2} offen offset:{2048*(q%2)} sc1")
    if pd: ra_loads()
    e("v_lshl_add_u32 v8, v8, 3, v14"); e("v_lshl_add_u32 v8, v8, 2, s54")
    e("v_lshrrev_b32 v9, 2, v0"); e("v_lshlrev_b32 v9, 5, v9"); e("v_and_b32 v11, 3, v0"); e("v_lshl_add_u32 v9, v11, 2, v9")
    e("s_and_b32 s45, s2, 2"); e("s_lshl_b32 s45, s45, 6"); e("s_add_u32 s44, s44, s45")
    e("s_and_b32 s45, s2, 1"); e("s_lshl4_add_u32 s44, s45, s44")
    if pd: e(f"s_sleep {pd}")
    lab("L_rpoll")
    ra_loads()
    e("s_mov_b64 s[46:47], exec")
    W = 8 if pd else 0
    e(f"s_waitcnt vmcnt({W+4})")
    for q in range(4): get_tag(16 + q, 40 + 4 * q)
    for q in range(4):
        e(f"s_waitcnt vmcnt({W+3-q})"); get_tag(20 + q, 24 + 4 * q)
    for q in range(8): e(f"v_cmpx_eq_u32 vcc, s55, v{16+q}")
    e("s_sub_u32 s50, s50, 1"); e("s_cbranch_scc1 L_rdone")
    if rsl:
        e("s_andn2_b64 exec, s[46:47], vcc"); e("s_cbranch_scc0 L_rdone"); e(f"s_sleep {rsl}"); e("s_branch L_rpoll")
    else:
        e("s_andn2_b64 exec, s[46:47], vcc"); e("s_cbranch_scc1 L_rpoll")
    lab("L_rdone")
    stamp(1, 2)
    e("s_mov_b64 exec, -1")
    e("v_max3_f32 v15, v40, v44, v48"); e("v_max_f32 v15, v15, v52")
    for q in range(4): e(f"v_sub_f32 v{16+q}, v{40+4*q}, v15")
    for q in range(4): e(f"v_exp_f32 v{16+q}, v{16+q}")
    e("v_mul_f32 v15, v16, v41")
    for q in range(1, 4): e(f"v_fmac_f32 v15, v{16+q}, v{41+4*q}")
    e("v_rcp_f32 v15, v15")
    for k in range(4): e(f"v_mul_f32 v{56+k}, v16, v{24+k}")
    for q in range(1, 4):
        for k in range(4): e(f"v_fmac_f32 v{56+k}, v{16+q}, v{24+4*q+k}")
    for k in range(4): e(f"v_mul_f32 v{56+k}, v15, v{56+k}")
    lab("L_rsum")
    c("sum v[56:59] over lane bits 5,4,3: row r ends with component [0,2,1,3][r]")
    e("s_nop 0")
    e("v_permlane32_swap_b32 v56, v57"); e("v_permlane32_swap_b32 v58, v59")
    e("v_add_f32 v56, v56, v57"); e("v_add_f32 v58, v58, v59"); e("s_nop 1")
    e("v_permlane16_swap_b32 v56, v58")
    e("v_add_f32 v56, v56, v58"); e("s_nop 1")
    e(f"v_add_f32_dpp v56, v56, v56 row_ror:8 {DPP}")
    e(f"ds_write_b32 v8, v56 offset:{L_RED}")
    e("s_waitcnt lgkmcnt(0)")
    e("s_barrier")
    stamp(2, 2)
    e("s_cmp_lg_u32 s3, 0"); e("s_cbranch_scc1 L_sdone")
    e("s_mov_b64 exec, 0xffff")
    for w in range(4): e(f"ds_read_b64 v[{60+2*w}:{61+2*w}], v10 offset:{L_RED + w*128}")
    e("s_waitcnt lgkmcnt(2)")
    e("v_add_f32 v60, v60, v62"); e("v_add_f32 v61, v61, v63")
    e("s_waitcnt lgkmcnt(0)")
    e("v_add_f32 v64, v64, v66"); e("v_add_f32 v65, v65, v67")
    e("v_add_f32 v60, v60, v64"); e("v_add_f32 v61, v61, v65")
    e("v_cvt_pk_bf16_f32 v60, v60, v61")
    e("buffer_store_dword v60, v9, s[40:43], s44 offen")
    stamp(3, 2)
    c("workgroup 32 has seen data that depends on every workgroup, so all have read the old tag: leave the new one")
    e("s_cmp_lg_u32 s2, 32"); e("s_cbranch_scc1 L_sdone")
    e(f"s_mov_b32 s50, {EPOCH:#x}"); e("v_mov_b32 v61, s55")
    e("s_mov_b64 exec, 1"); e("buffer_store_dword v61, off, s[36:39], s50 sc1")
    lab("L_sdone")
    if diagw:
        lab("L_diag")
        e("s_memrealtime s[62:63]"); e("s_waitcnt lgkmcnt(0)")
        e("s_sub_u32 s62, s62, s60"); e(f"s_cmp_lt_u32 s62, {diagw*100}"); e("s_cbranch_scc1 L_diag")
    if stamps:
        e("s_cmp_lg_u32 s3, 0"); e("s_cbranch_scc1 L_end")
        e("s_waitcnt vmcnt(0)")
        e("s_memrealtime s[62:63]"); e("s_getreg_b32 s50, hwreg(HW_REG_XCC_ID)"); e("s_waitcnt lgkmcnt(0)")
        e("s_mov_b64 exec, 1"); e("s_mov_b32 s36, s28"); e("s_mov_b32 s37, s29")
        for k in range(4): e(f"v_mov_b32 v{16+k}, s{60+k}")
        e("s_lshl_b32 s51, s2, 4"); e("buffer_store_dwordx4 v[16:19], off, s[36:39], s51")
        e("v_mov_b32 v20, s50"); e("s_lshl_b32 s51, s2, 2"); e("s_add_u32 s51, s51, 0x10000")
        e("buffer_store_dword v20, off, s[36:39], s51")
        for k in range(12): e(f"v_mov_b32 v{24+k}, s{64+k}")
        e("s_lshl_b32 s51, s2, 7"); e("s_add_u32 s51, s51, 0x20000")
        for k in range(3): e(f"buffer_store_dwordx4 v[{24+4*k}:{27+4*k}], off, s[36:39], s51 offset:{16*k}")
    e("s_endpgm")
    lab("L_redb")
    c("branch B: wave = 16 terms; column = 512 + quarter*128 + ((id&1)*8 + granule)*8 + half*4 + k")
    e("v_lshlrev_b32 v6, 12, v6"); e("v_lshl_add_u32 v6, v14, 4, v6")
    e("s_lshl_b32 s52, s49, 10"); e("s_lshl_b32 s51, s48, 9"); e("s_add_u32 s52, s52, s51")
    e("s_and_b32 s51, s2, 3"); e("s_lshl_b32 s51, s51, 7"); e("s_add_u32 s52, s52, s51")
    e("s_lshl_b32 s51, s3, 16"); e("s_add_u32 s52, s52, s51")
    e(f"s_add_u32 s52, s52, {YB:#x}"); e("s_add_u32 s53, s52, 0x8000")
    e("v_lshl_add_u32 v8, v14, 2, v8"); e("v_lshl_add_u32 v8, v8, 2, s54")
    e("v_lshrrev_b32 v9, 1, v0"); e("v_lshlrev_b32 v9, 4, v9"); e("v_and_b32 v11, 1, v0"); e("v_lshl_add_u32 v9, v11, 2, v9")
    e("s_and_b32 s45, s2, 1"); e("s_lshl_b32 s45, s45, 7"); e("s_add_u32 s44, s44, s45")
    e("s_and_b32 s45, s2, 2"); e("s_lshl2_add_u32 s44, s45, s44"); e("s_add_u32 s44, s44, 1024")
    lab("L_bpoll")
    e("buffer_load_dwordx4 v[24:27], v6, s[36:39], s52 offen sc1")
    e("buffer_load_dwordx4 v[28:31], v6, s[36:39], s53 offen sc1")
    e("s_mov_b64 s[46:47], exec")
    e("s_waitcnt vmcnt(1)"); get_tag(16, 24); e("s_waitcnt vmcnt(0)"); get_tag(17, 28)
    e("v_cmpx_eq_u32 vcc, s55, v16"); e("v_cmpx_eq_u32 vcc, s55, v17")
    e("s_sub_u32 s50, s50, 1"); e("s_cbranch_scc1 L_bdone")
    e("s_andn2_b64 exec, s[46:47], vcc"); e("s_cbranch_scc1 L_bpoll")
    lab("L_bdone")
    stamp(1, 2)
    e("s_mov_b64 exec, -1")
    for k in range(4): e(f"v_add_f32 v{56+k}, v{24+k}, v{28+k}")
    e("s_branch L_rsum")

    lab("L_bseg")
    stamp(2)
    e(f"s_mov_b32 s50, {spin}")
    lab("L_wqb")
    e("ds_read_b32 v7, v14"); e(f"ds_read_b128 v[32:35], v2 offset:{L_QB}")
    e("s_waitcnt lgkmcnt(0)")
    e("v_readfirstlane_b32 s51, v7"); e("s_sub_u32 s50, s50, 1")
    e("s_cbranch_scc1 L_wqb_done")
    e("s_cmp_eq_u32 s51, 0"); e("s_cbranch_scc1 L_wqb")
    lab("L_wqb_done")
    e("s_mov_b32 s47, 4")
    lab("L_gqa")
    e("s_cmp_lg_u32 s47, 1"); e("s_cbranch_scc1 L_gqa_go")
    c("issue side returns to the A unit")
    e("s_lshl_b32 s50, s35, 22")
    set_unit(6, 8)
    e("s_mov_b32 s44, s49"); e("s_mov_b32 s45, 0x10000")
    lab("L_gqa_go")
    for k in range(4): step_gqa(8 * k)
    e("s_sub_u32 s47, s47, 1"); e("s_cmp_lg_u32 s47, 0"); e("s_cbranch_scc1 L_gqa")
    c("hand the B partial of this wave to the agent through LDS")
    e(f"s_mul_i32 s50, s3, {RECB}"); e(f"s_add_u32 s50, s50, {L_RECB}")
    e("v_lshl_add_u32 v6, v0, 5, s50"); e("v_lshl_add_u32 v7, v0, 2, s50")
    e("ds_write_b128 v6, v[48:51]"); e("ds_write_b128 v6, v[52:55] offset:16")
    e("ds_write_b32 v7, v12 offset:2048"); e("ds_write_b32 v7, v13 offset:2304")
    e("ds_add_u32 v14, v15 offset:4")
    e("s_mov_b32 s46, 64"); e(f"s_mov_b32 s47, {NA2-1}")
    stamp(3)
    e("s_branch L_mha")

    lab("L_helper")
    e(f"v_mov_b32 v41, {L_FLAG}")
    for k in range(4): e(f"v_mov_b32 v{28+k}, 0")
    e("ds_write_b128 v41, v[28:31]"); e("ds_write_b64 v41, v[28:29] offset:16")
    e("s_sub_u32 s33, s3, 4")
    e("s_and_b32 s54, s31, 7")
    e("v_and_b32 v1, 15, v0")
    e("v_lshrrev_b32 v2, 4, v0")
    e("v_bfe_u32 v34, v0, 3, 1")
    e("v_lshlrev_b32 v3, 17, v2"); e("v_lshl_add_u32 v3, v1, 4, v3")
    e("v_lshlrev_b32 v35, 10, v34"); e("v_lshl_add_u32 v35, v2, 5, v35")
    e("s_lshl_b32 s50, s32, 8"); e("s_lshl_b32 s51, s54, 19"); e("s_add_u32 s50, s50, s51"); e("s_lshl_b32 s51, s54, 7")
    e("s_movk_i32 s38, 2048")
    e("s_waitcnt lgkmcnt(0)")
    e("s_mov_b32 s36, s4"); e("s_mov_b32 s37, s5"); e("s_mov_b32 s40, s10"); e("s_mov_b32 s41, s11")
    e("s_barrier")
    e("s_cmp_lg_u32 s33, 0"); e("s_cbranch_scc1 L_hc")
    c("helper 0: 64 of the 512 rows of the q projection of head h (branch A)")
    for k in range(2): e(f"buffer_load_dwordx4 v[{8+4*k}:{11+4*k}], v35, s[36:39], s51 offen offset:{16*k}")
    for t in range(16):
        e(f"buffer_load_dwordx4 v[{64+4*t}:{67+4*t}], v3, s[40:43], s50 offen nt")
        if t < 15: e("s_addk_i32 s50, 0x2000")
    e(f"s_add_u32 s52, s28, {(wsoff<<20) + EPOCH:#x}"); e("s_addc_u32 s53, s29, 0")
    e("s_load_dword s55, s[52:53], 0")
    lab("L_hc")
    c("diagonal masks m_i: e=l&7 ; (e>>1==i) ? half(e&1) : 0")
    e("v_and_b32 v24, 1, v0"); e("v_lshlrev_b32 v24, 4, v24"); e("v_mov_b32 v25, 0xffff"); e("v_lshlrev_b32 v24, v24, v25")
    e("v_bfe_u32 v25, v0, 1, 2")
    for i in range(4):
        e(f"v_cmp_eq_u32 vcc, {i}, v25"); e("s_nop 1"); e(f"v_cndmask_b32 v{4+i}, 0, v24, vcc")
    e("v_lshlrev_b32 v40, 4, v0")
    e(f"s_add_u32 s44, s28, {wsoff<<20:#x}"); e("s_addc_u32 s45, s29, 0"); e("s_mov_b32 s46, s42"); e("s_mov_b32 s47, s43")
    tag_consts()
    def lds_wait(off, val, sl=16):
        n = u()
        e(f"s_mov_b32 s50, {spin}")
        lab(f"L_p{n}")
        e(f"ds_read_b32 v24, v41 offset:{off}"); e("s_waitcnt lgkmcnt(0)")
        e("v_readfirstlane_b32 s51, v24"); e("s_sub_u32 s50, s50, 1"); e(f"s_cbranch_scc1 L_pd{n}")
        e(f"s_cmp_ge_u32 s51, {val}"); e(f"s_cbranch_scc1 L_pd{n}")
        e(f"s_sleep {sl}"); e(f"s_branch L_p{n}")
        lab(f"L_pd{n}")
    e("s_cmp_lg_u32 s33, 0"); e("s_cbranch_scc1 L_hb")
    e("s_waitcnt lgkmcnt(0)")
    e("s_add_u32 s55, s55, 0x04030201"); e("v_mov_b32 v63, s55"); e("v_mov_b32 v62, 1")
    def rows_mfma(waits):
        e("s_mov_b32 s52, 0x01000100"); e("s_mov_b32 s53, 0x03020302")
        if waits: e("s_waitcnt vmcnt(16)")
        for s_ in range(16):
            e(f"v_perm_b32 v32, v{8 + s_//2}, v{8 + s_//2}, s{52 + s_%2}")
            for i in range(4): e(f"v_and_b32 v{24+i}, v32, v{4+i}")
            if waits: e(f"s_waitcnt vmcnt({15-s_})"); e("s_nop 0")
            else: e("s_nop 1")
            e(f"v_mfma_f32_16x16x32_bf16 v[56:59], v[24:27], v[{64+4*s_}:{67+4*s_}], {'v[56:59]' if s_ else '0'}")
    rows_mfma(True)
    e("s_lshl_b32 s50, s32, 13"); e(f"s_add_u32 s50, s50, {QPA:#x}")
    e("s_lshl_b32 s51, s54, 10"); e("s_add_u32 s51, s51, s50")
    e("s_nop 3")
    put_tag(56, 63)
    e("buffer_store_dwordx4 v[56:59], v40, s[44:47], s51 offen sc1")
    def poll_begin(g=None):
        n = u(); e(f"s_mov_b32 s79, {gspin if g is None else g}"); lab(f"L_g{n}"); return n
    def poll_end(n, sl):
        e("s_not_b64 s[80:81], vcc"); e("s_mov_b64 exec, -1"); e(f"s_cbranch_scc0 L_gd{n}")
        e("s_sub_u32 s79, s79, 1"); e(f"s_cbranch_scc1 L_gd{n}")
        if sl: e(f"s_sleep {sl}")
        e(f"s_branch L_g{n}")
        lab(f"L_gd{n}")
    if stamps: e("s_memrealtime s[86:87]")
    c("helper 0 adds up the eight slices for this workgroup's batch")
    e("v_and_b32 v42, 31, v0"); e("v_lshlrev_b32 v42, 4, v42"); e("v_lshrrev_b32 v24, 5, v0"); e("v_lshl_add_u32 v42, v24, 10, v42")
    e("v_lshlrev_b32 v43, 4, v1"); e("v_lshl_add_u32 v43, v24, 2, v43"); e("v_and_b32 v24, 1, v2"); e("v_lshl_add_u32 v43, v24, 3, v43")
    e("s_and_b32 s51, s2, 32"); e("s_lshl4_add_u32 s50, s51, s50"); e("s_add_u32 s51, s50, 0x1000")
    e("s_waitcnt vmcnt(0)")
    if stamps: e("s_memrealtime s[88:89]")
    n = poll_begin(spin)
    for t in range(4): e(f"buffer_load_dwordx4 v[{8+4*t}:{11+4*t}], v42, s[44:47], s{50+t//2} offen offset:{2048*(t%2)} sc1")
    for t in range(4):
        e(f"s_waitcnt vmcnt({3-t})"); get_tag(24 + t, 8 + 4 * t)
    for t in range(4): e(f"v_cmpx_eq_u32 vcc, s55, v{24+t}")
    poll_end(n, qslp)
    for k in range(4): e(f"v_add_f32 v{8+k}, v{8+k}, v{12+k}")
    for k in range(4): e(f"v_add_f32 v{16+k}, v{16+k}, v{20+k}")
    for k in range(4): e(f"v_add_f32 v{8+k}, v{8+k}, v{16+k}")
    e("s_nop 0")
    e("v_permlane32_swap_b32 v8, v10"); e("v_permlane32_swap_b32 v9, v11")
    e("v_add_f32 v8, v8, v10"); e("v_add_f32 v9, v9, v11")
    e("v_cvt_pk_bf16_f32 v8, v8, v9")
    e(f"ds_write_b32 v43, v8 offset:{L_QA}")
    e("ds_write_b64 v41, v[62:63] offset:16")
    if stamps: e("s_memrealtime s[82:83]")
    lab("L_hb")
    lds_wait(16, 1, 4)
    e("ds_read_b32 v63, v41 offset:20")
    c("wo_A: rows h*128.., columns hw*128.. -> LDS image [128][128] -> MFMA operand tiles in v[128:255]")
    e("s_lshl_b32 s50, s32, 17"); e("s_lshl_b32 s51, s33, 8"); e("s_add_u32 s50, s50, s51")
    e("v_lshlrev_b32 v33, 10, v2"); e("v_lshl_add_u32 v33, v1, 4, v33")
    e("s_mov_b32 s40, s12"); e("s_mov_b32 s41, s13")
    e("s_lshl_b32 s52, s33, 15"); e(f"s_add_u32 s52, s52, {L_WO}"); e("s_mov_b32 m0, s52")
    e("s_waitcnt lgkmcnt(0)")
    e("v_readfirstlane_b32 s55, v63")
    for s_ in range(32):
        if s_ >= wth: e(f"s_waitcnt vmcnt({wth-1})")
        e(f"buffer_load_dwordx4 v33, s[40:43], s50 offen {wpol} lds")
        if s_ < 31: e("s_addk_i32 m0, 0x400"); e("s_addk_i32 s50, 0x1000")
    e("v_lshrrev_b32 v33, 2, v1"); e("v_lshl_add_u32 v33, v2, 3, v33"); e("v_lshlrev_b32 v33, 8, v33")
    e("v_and_b32 v24, 3, v0"); e("v_lshl_add_u32 v33, v24, 3, v33"); e("v_add_u32 v33, s52, v33")
    e("s_waitcnt vmcnt(0)")
    for nb in range(8):
        for kb in range(4):
            r = 128 + 4 * (nb * 4 + kb)
            for hh in range(2):
                e(f"ds_read_b64_tr_b16 v[{r+2*hh}:{r+2*hh+1}], v33 offset:{kb*8192 + hh*1024 + nb*32}")
        e("s_waitcnt lgkmcnt(0)")
    if ms:
        e("s_cmp_eq_u32 s33, 2"); e("s_cbranch_scc1 L_pacer")
    e("s_cmp_lg_u32 s33, 1"); e("s_cbranch_scc1 L_hfinal")

    c("job 0: 64 of the 512 rows of the q projection of head h (branch B)")
    e("s_lshl_b32 s50, s32, 8"); e("s_lshl_b32 s51, s54, 19"); e("s_add_u32 s50, s50, s51"); e("s_lshl_b32 s51, s54, 7")
    e("s_mov_b32 s36, s14"); e("s_mov_b32 s37, s15"); e("s_mov_b32 s40, s20"); e("s_mov_b32 s41, s21")
    for k in range(2): e(f"buffer_load_dwordx4 v[{8+4*k}:{11+4*k}], v35, s[36:39], s51 offen offset:{16*k}")
    for t in range(16):
        e(f"s_waitcnt vmcnt({bth-1})")
        e(f"buffer_load_dwordx4 v[{64+4*t}:{67+4*t}], v3, s[40:43], s50 offen nt")
        if t < 15: e("s_addk_i32 s50, 0x2000")
    rows_mfma(True)
    e("s_lshl_b32 s50, s32, 13"); e(f"s_add_u32 s50, s50, {QPB:#x}")
    e("s_lshl_b32 s51, s54, 10"); e("s_add_u32 s51, s51, s50")
    e("s_lshl_b32 s52, s54, 7"); e("s_add_u32 s52, s52, s50")
    e("s_nop 1")
    put_tag(56, 63)
    e("buffer_store_dwordx4 v[56:59], v40, s[44:47], s51 offen sc1")
    c("job 1: add up line j of the eight slices of head h")
    e("v_lshrrev_b32 v42, 3, v0"); e("v_lshlrev_b32 v42, 10, v42"); e("v_and_b32 v24, 7, v0"); e("v_lshl_add_u32 v42, v24, 4, v42")
    if T1: lds_wait(8, 256 * T1)
    n = poll_begin()
    e("buffer_load_dwordx4 v[8:11], v42, s[44:47], s52 offen sc1")
    e("s_waitcnt vmcnt(0)")
    get_tag(16, 8); e("v_cmp_eq_u32 vcc, s55, v16")
    poll_end(n, slp)
    for k in range(4): e(f"v_add_f32_dpp v{8+k}, v{8+k}, v{8+k} row_ror:8 {DPP}")
    for sw in (16, 32):
        for k in range(4): e(f"v_mov_b32 v{12+k}, v{8+k}")
        e("s_nop 0")
        for k in range(4): e(f"v_permlane{sw}_swap_b32 v{8+k}, v{12+k}")
        for k in range(4): e(f"v_add_f32 v{8+k}, v{8+k}, v{12+k}")
    put_tag(8, 63)
    e("s_lshl3_add_u32 s50, s32, s54"); e("s_lshl_b32 s50, s50, 7"); e(f"s_add_u32 s50, s50, {QB:#x}")
    e("s_mov_b64 exec, 0xff"); e("buffer_store_dwordx4 v[8:11], v40, s[44:47], s50 offen sc1"); e("s_mov_b64 exec, -1")
    c("job 2: q of the four heads of this workgroup's B unit -> LDS; lane = (head&1, half, c)")
    e("v_and_b32 v42, 31, v0"); e("v_lshlrev_b32 v42, 4, v42"); e("v_lshrrev_b32 v24, 5, v0"); e("v_lshl_add_u32 v42, v24, 10, v42")
    e("v_lshlrev_b32 v43, 4, v1"); e("v_lshl_add_u32 v43, v24, 8, v43"); e("v_and_b32 v24, 1, v2"); e("v_lshl_add_u32 v43, v24, 3, v43")
    e("s_lshl_b32 s52, s30, 12"); e("s_lshr_b32 s51, s31, 4"); e("s_lshl_b32 s51, s51, 9"); e("s_add_u32 s52, s52, s51")
    e(f"s_add_u32 s52, s52, {QB:#x}")
    lds_wait(8, 256 * T2)
    n = poll_begin()
    e("buffer_load_dwordx4 v[8:11], v42, s[44:47], s52 offen sc1")
    e("buffer_load_dwordx4 v[12:15], v42, s[44:47], s52 offen offset:2048 sc1")
    e("s_waitcnt vmcnt(0)")
    get_tag(16, 8); get_tag(17, 12)
    e("v_cmpx_eq_u32 vcc, s55, v16"); e("v_cmpx_eq_u32 vcc, s55, v17")
    poll_end(n, slp)
    for q in range(4): e(f"v_cvt_pk_bf16_f32 v{16+q}, v{8+2*q}, v{9+2*q}")
    e(f"ds_write_b64 v43, v[16:17] offset:{L_QB}"); e(f"ds_write_b64 v43, v[18:19] offset:{L_QB+512}")
    e("v_mov_b32 v25, 1")
    e("s_waitcnt lgkmcnt(0)")
    e("ds_write_b32 v41, v25")
    c("wo_B slice: rows h*128 + kq*64 + 16g + s, columns cq*128..")
    e("s_lshr_b32 s48, s54, 2"); e("s_and_b32 s49, s54, 3")
    e("s_lshl_b32 s50, s32, 17"); e("s_lshl_b32 s51, s48, 16"); e("s_add_u32 s50, s50, s51")
    e("s_lshl_b32 s51, s49, 8"); e("s_add_u32 s50, s50, s51")
    e("v_lshlrev_b32 v3, 14, v2"); e("v_lshl_add_u32 v3, v1, 4, v3")
    e("s_mov_b32 s40, s22"); e("s_mov_b32 s41, s23")
    for s_ in range(16):
        e(f"s_waitcnt vmcnt({bth-1})")
        e(f"buffer_load_dwordx4 v[{64+4*s_}:{67+4*s_}], v3, s[40:43], s50 offen offset:{(s_%4)*1024} nt")
        if s_ % 4 == 3 and s_ < 15: e("s_addk_i32 s50, 0x1000")
    c("job 3: merge the four waves' B partials, publish (outputs first, then the tagged max/sum line)")
    lds_wait(4, 256)
    e("v_lshlrev_b32 v42, 4, v2")
    e("v_lshlrev_b32 v43, 5, v0")
    for w in range(4): e(f"ds_read_b32 v{8+w}, v42 offset:{L_RECB + w*RECB + 2048}")
    e("s_waitcnt lgkmcnt(0)")
    for w in range(4):
        for a in range(4): e(f"ds_read_b32 v{12+4*w+a}, v42 offset:{L_RECB + w*RECB + 2304 + 64*a}")
        e("s_waitcnt lgkmcnt(0)")
    e("v_max3_f32 v44, v8, v9, v10"); e("v_max_f32 v44, v44, v11")
    for w in range(4): e(f"v_sub_f32 v{8+w}, v{8+w}, v44")
    for w in range(4): e(f"v_exp_f32 v{8+w}, v{8+w}")
    e("v_mov_b32 v45, 0"); e("v_mov_b32 v46, 0"); e("v_mov_b32 v47, v63")
    for w in range(4):
        for a in range(4): e(f"v_fmac_f32 v45, v{8+w}, v{12+4*w+a}")
    for k in range(8): e(f"v_mov_b32 v{48+k}, 0")
    for w in range(4):
        e(f"ds_read_b128 v[12:15], v43 offset:{L_RECB + w*RECB}")
        e(f"ds_read_b128 v[16:19], v43 offset:{L_RECB + w*RECB + 16}")
        e("s_waitcnt lgkmcnt(0)")
        for k in range(8): e(f"v_fmac_f32 v{48+k}, v{8+w}, v{12+k}")
    for k in range(4): e(f"v_cvt_pk_bf16_f32 v{48+k}, v{48+2*k}, v{49+2*k}")
    e("s_lshr_b32 s52, s31, 4"); e("s_lshl3_add_u32 s52, s52, s30")
    e("s_and_b32 s51, s31, 15"); e("s_lshl4_add_u32 s52, s52, s51")
    e("s_lshl_b32 s50, s52, 10"); e(f"s_add_u32 s50, s50, {PBO:#x}")
    e("buffer_store_dwordx4 v[48:51], v40, s[44:47], s50 offen sc1")
    e("s_lshl_b32 s50, s52, 7"); e(f"s_add_u32 s50, s50, {PBML:#x}")
    e("v_lshlrev_b32 v42, 5, v2"); e("v_lshl_add_u32 v42, v1, 4, v42")
    e("s_waitcnt vmcnt(0)")
    e("s_mov_b32 exec_lo, 0x00030003"); e("s_mov_b32 exec_hi, 0x00030003")
    e("buffer_store_dwordx4 v[44:47], v42, s[44:47], s50 offen sc1")
    e("s_mov_b64 exec, -1")
    c("job 4: finish half of the dims of head h (both batches), multiply by the wo slice")
    e("v_lshrrev_b32 v42, 5, v0")
    e("v_lshlrev_b32 v43, 14, v42"); e("v_lshl_add_u32 v43, v1, 7, v43")
    e("v_bfe_u32 v33, v0, 3, 2")
    e("v_lshlrev_b32 v35, 17, v42"); e("v_lshl_add_u32 v35, v33, 10, v35")
    e("v_and_b32 v32, 7, v0"); e("v_lshl_add_u32 v35, v32, 4, v35")
    e("v_lshl_add_u32 v33, v42, 5, v33"); e("v_lshlrev_b32 v33, 2, v33")
    e("s_lshr_b32 s51, s31, 3")
    e("s_lshl_b32 s52, s30, 11"); e("s_lshl_b32 s53, s51, 5"); e("s_add_u32 s52, s52, s53"); e(f"s_add_u32 s52, s52, {PBML:#x}")
    e("s_lshl_b32 s53, s30, 14"); e("s_lshl_b32 s51, s51, 8"); e("s_add_u32 s53, s53, s51")
    e("s_lshl_b32 s51, s48, 7"); e("s_add_u32 s53, s53, s51"); e(f"s_add_u32 s53, s53, {PBO:#x}")
    lds_wait(8, 256 * (NA1 + 4 + T4))
    n = poll_begin()
    e("buffer_load_dwordx4 v[8:11], v43, s[44:47], s52 offen sc1")
    e("s_waitcnt vmcnt(0)")
    e("v_cmp_eq_u32 vcc, s55, v11")
    poll_end(n, slp)
    for t in range(4):
        e(f"buffer_load_dwordx4 v[{44+4*t}:{47+4*t}], v35, s[44:47], s53 offen sc1")
        if t < 3: e("s_addk_i32 s53, 0x1000")
    e(f"v_max_f32_dpp v12, v8, v8 quad_perm:[1,0,3,2] {DPP}"); e("s_nop 1")
    for d in ("quad_perm:[2,3,0,1]", "row_ror:4", "row_ror:8"):
        e(f"v_max_f32_dpp v12, v12, v12 {d} {DPP}"); e("s_nop 1")
    e("v_sub_f32 v8, v8, v12"); e("v_exp_f32 v8, v8"); e("s_nop 0"); e("v_mul_f32 v9, v8, v9"); e("s_nop 1")
    for d in ("quad_perm:[1,0,3,2]", "quad_perm:[2,3,0,1]", "row_ror:4", "row_ror:8"):
        e(f"v_add_f32_dpp v9, v9, v9 {d} {DPP}"); e("s_nop 1")
    e("v_rcp_f32 v9, v9"); e("s_nop 0"); e("v_mul_f32 v8, v8, v9")
    for t in range(4): e(f"ds_bpermute_b32 v{12+t}, v33, v8 offset:{16*t}")
    for k in range(8): e(f"v_mov_b32 v{16+k}, 0")
    e("s_waitcnt vmcnt(0) lgkmcnt(0)")
    for t in range(4):
        for k in range(4):
            e(f"v_lshlrev_b32 v24, 16, v{44+4*t+k}"); e(f"v_and_b32 v25, 0xffff0000, v{44+4*t+k}")
            e(f"v_fmac_f32 v{16+2*k}, v{12+t}, v24"); e(f"v_fmac_f32 v{17+2*k}, v{12+t}, v25")
    e("s_nop 1")
    for k in range(4): e(f"v_permlane16_swap_b32 v{16+k}, v{20+k}")
    for k in range(4): e(f"v_add_f32 v{16+k}, v{16+k}, v{20+k}")
    for k in range(4): e(f"v_add_f32_dpp v{16+k}, v{16+k}, v{16+k} row_ror:8 {DPP}")
    e("v_cvt_pk_bf16_f32 v16, v16, v17"); e("v_cvt_pk_bf16_f32 v17, v18, v19")
    e("v_lshlrev_b32 v46, 7, v42"); e("v_lshl_add_u32 v46, v32, 4, v46"); e("v_and_b32 v47, 1, v2"); e("v_lshl_add_u32 v46, v47, 3, v46")
    e(f"ds_write_b64 v46, v[16:17] offset:{L_SCR}")
    e("v_lshlrev_b32 v46, 7, v34"); e("v_lshl_add_u32 v46, v2, 5, v46")
    e("s_waitcnt lgkmcnt(0)")
    for k in range(2): e(f"ds_read_b128 v[{8+4*k}:{11+4*k}], v46 offset:{L_SCR + 16*k}")
    e("s_waitcnt lgkmcnt(0)")
    rows_mfma(False)
    e("s_lshl1_add_u32 s52, s32, s48"); e("s_lshl2_add_u32 s52, s52, s49")
    e("s_lshl_b32 s52, s52, 10"); e(f"s_add_u32 s52, s52, {YB:#x}")
    e("s_nop 3")
    put_tag(56, 63)
    if YBT >= 0:
        if YBT: lds_wait(8, 256 * YBT)
        e("buffer_store_dwordx4 v[56:59], v40, s[44:47], s52 offen sc1")

    lab("L_hfinal")
    e("v_and_b32 v8, 3, v0"); e(f"v_mul_u32_u24 v8, {RECA}, v8"); e("v_lshl_add_u32 v8, v2, 4, v8"); e("v_mov_b32 v9, 0")
    e("s_and_b32 s50, s31, 3"); e("s_lshl2_add_u32 s50, s35, s50")
    e("s_lshl2_add_u32 s50, s50, s33"); e("s_lshl_b32 s50, s50, 9"); e(f"s_add_u32 s50, s50, {YA:#x}")
    e("s_waitcnt vmcnt(0) lgkmcnt(0)")
    e("s_barrier")
    if stamps >= 2: e("s_memrealtime s[86:87]"); e("s_waitcnt lgkmcnt(0)")
    for kb in range(4): e(f"ds_read_b128 v[{16+4*kb}:{19+4*kb}], v8 offset:{L_RECA + kb*64}")
    e(f"ds_read_b128 v[12:15], v9 offset:{L_MA}")
    if YBT < 0:
        e("s_cmp_lg_u32 s33, 1"); e("s_cbranch_scc1 L_hf2")
        e("buffer_store_dwordx4 v[56:59], v40, s[44:47], s52 offen sc1")
        lab("L_hf2")
    def tile(nb, kb):
        d = 64 + 4 * nb; r = 128 + 4 * (nb * 4 + kb)
        e(f"v_mfma_f32_16x16x32_bf16 v[{d}:{d+3}], v[{16+4*kb}:{19+4*kb}], v[{r}:{r+3}], {f'v[{d}:{d+3}]' if kb else '0'}")
    fill = []
    fill += ["s_waitcnt lgkmcnt(0)", "v_max3_f32 v11, v12, v13, v14", "v_max_f32 v11, v11, v15", "v_perm_b32 v11, v11, v63, s56"]
    fill += [f"v_sub_f32 v{12+w}, v{12+w}, v11" for w in range(4)]
    fill += [f"v_exp_f32 v{12+w}, v{12+w}" for w in range(4)]
    def comb(nb):
        d = 64 + 4 * nb; y = 32 + nb
        return [f"v_mul_f32 v{y}, v12, v{d}"] + [f"v_fmac_f32 v{y}, v{12+w}, v{d+w}" for w in range(1, 4)] + \
               [f"v_perm_b32 v{y}, v{y}, v63, s{56 + nb % 4}"]
    for nb in range(8):
        if nb >= 2: fill += comb(nb - 2)
        for kb in range(4):
            if nb == 0: e(f"s_waitcnt lgkmcnt({4-kb})")
            tile(nb, kb)
            if nb >= 1:
                for _ in range(2):
                    if fill: e(fill.pop(0))
    for x in fill: e(x)
    e("s_mov_b64 exec, 0xffff")
    e("buffer_store_dwordx4 v[32:35], v40, s[44:47], s50 offen sc1")
    for x in comb(6): e(x)
    e("s_nop 0")
    for x in comb(7): e(x)
    e("buffer_store_dwordx4 v[36:39], v40, s[44:47], s50 offen offset:256 sc1")
    if stamps:
        e("s_cmp_lg_u32 s33, 0"); e("s_cbranch_scc1 L_end")
        e("s_memrealtime s[84:85]"); e("s_waitcnt lgkmcnt(0)")
        e("s_mov_b64 exec, 1"); e("s_mov_b32 s44, s28"); e("s_mov_b32 s45, s29")
        for k in range(8): e(f"v_mov_b32 v{16+k}, s{82+k}")
        e("s_lshl_b32 s51, s2, 7"); e("s_add_u32 s51, s51, 0x20030")
        e("buffer_store_dwordx4 v[16:19], off, s[44:47], s51")
        e("buffer_store_dwordx4 v[20:23], off, s[44:47], s51 offset:16")
    lab("L_end")
    e("s_endpgm")
    if ms:
        lab("L_pacer")
        c("pacer: a workgroup that reaches a milestone after most of its peers gets a deeper load queue for a while")
        ng = 256 // G
        mss = [int(z) for z in ms.split(".")]
        e(f"s_and_b32 s52, s31, {ng - 1}"); e("s_mul_i32 s52, s52, 4352"); e(f"s_add_u32 s52, s52, {PROG:#x}")
        e("v_lshlrev_b32 v42, 8, v0"); e("v_mov_b32 v12, 0")
        e(f"s_cmp_ge_u32 s31, {ng}"); e("s_cbranch_scc1 L_pz"); e("s_cmp_lg_u32 s30, 0"); e("s_cbranch_scc1 L_pz")
        e(f"s_mov_b64 exec, {(1 << len(mss)) - 1:#x}")
        e("buffer_store_dword v12, v42, s[44:47], s52 offen sc1")
        e("s_mov_b64 exec, -1")
        lab("L_pz")
        for q, k in enumerate(mss):
            e("v_mov_b32 v12, 1")
            lds_wait(8, 256 * k - 128, 2)
            e("s_mov_b64 exec, 1")
            e(f"buffer_atomic_add v12, off, s[44:47], s52 offset:{256*q} sc0 sc1")
            e("s_waitcnt vmcnt(0)")
            e("v_readfirstlane_b32 s48, v12"); e("s_mov_b64 exec, -1")
            e(f"s_sub_i32 s48, s48, {r0}"); e("s_max_i32 s48, s48, 0"); e(f"s_mul_i32 s48, s48, {rk}"); e("s_min_u32 s48, s48, 32")
            e("s_mov_b32 s50, 0"); e("s_mov_b32 s51, -1"); e("s_lshr_b64 s[50:51], s[50:51], s48")
            e("v_mov_b32 v12, s50"); e("ds_write_b32 v41, v12 offset:12")
            if k + 1 not in mss and k < 19:
                lds_wait(8, 256 * (k + 1), 8)
                e("v_mov_b32 v12, 0"); e("ds_write_b32 v41, v12 offset:12")
        e("s_branch L_hfinal")

    if drop:
        job = None
        for k, t in enumerate(L):
            if t.startswith("  ; job "): job = t[8]
            if t.startswith("  ; wo_B slice"): job = "b"
            if t.startswith("  ; wo_A:"): job = "a"
            if t.startswith("L_hfinal"): job = "f"
            if job is not None and "buffer_" in t and "off," not in t:
                if job + ("s" if "store" in t else "l") in drop.split("."): L[k] = "  s_nop 0"
    L.append('.section .rodata,"a"'); L.append(".p2align 6")
    L.append(f".amdhsa_kernel {NAME}_kernel")
    for s in ("next_free_vgpr 256", "next_free_sgpr 96", "accum_offset 256", "group_segment_fixed_size 0",
              "kernarg_size 104", "user_sgpr_count 2", "user_sgpr_kernarg_segment_ptr 1",
              "system_sgpr_workgroup_id_x 1", "float_denorm_mode_32 3"):
        L.append("  .amdhsa_" + s)
    L.append(".end_amdhsa_kernel")
    return "\n".join(L) + "\n"

if __name__ == "__main__":
    import os
    names = []
    os.makedirs("k", exist_ok=True)
    for spec in sys.argv[1:]:
        p = {}
        for x in spec.split(","):
            if not x: continue
            k, v = x.split("=")
            p[k] = v.replace("+", " ") if k in ("wpol", "drop", "ms") else int(v)
            if k == "wpol" and v == "def": p[k] = ""
        fn = "k/k_" + (spec.replace(",", "_").replace("=", "").replace("+", "") or "base") + ".s"
        open(fn, "w").write(gen(**p))
        names.append("dev/" + fn)
    print(" ".join(names))
```

```python
import sys, math, struct
NAME = "concat_heads__mha_block_cached__gqa_block_cached__decode"

HEADER = """; Kernarg layout for this problem (104 bytes, ptrs only, base s[0:1]):
"""

def f2u(x): return struct.unpack("<I", struct.pack("<f", x))[0]

WSB  = 0x100000
EPOCH = WSB
QB   = WSB + 0x010000
PBO  = WSB + 0x040000
PBML = WSB + 0x0C0000
YB   = WSB + 0x0D0000
YBS  = 8192 + 256
YA   = WSB + 0x140000
YAS  = 16384 + 256
MLA  = WSB + 0x1E0000
MLS  = 2048 + 256
QPA  = WSB + 0x200000
QPB  = WSB + 0x240000
PROG = WSB + 0x280000
WSSZ = 0x400000
L_QA   = 0x0000
L_QB   = 0x0400
L_FLAG = 0x0800
L_SCR  = 0x0900
L_MA   = 0x0A00
L_RED  = 0x0A40
L_RECA = 0x0D00; RECA = 576
L_RECB = 0x1800; RECB = 2560
L_WO   = 0x4000
LDS_BYTES = L_WO + 0x20000

def gen(inf=5, inf0=5, NA1=8, st1=576, st2=768, wpol="nt", stamps=0, spin=1 << 20, slp=64, wsoff=0,
        T1=5, T2=7, T4=2, YBT=-1, qslp=0, wth=2, bth=4, rspin=1 << 20, gspin=1 << 20, drop="",
        hi=7, lo=4, pace=1, n0=1, e0=80, gs=2, xk=1, xp=4, ls=0, xs=0, wk=4, w0=1, rot=0, bs=1, diagw=0, mlr=4, rsl=0, rw=1, rd=0, wb0=2, wb2=0, wb3=2, ot=4, st2b=0):
    L = []
    def e(s): L.append("  " + s)
    def lab(s): L.append(s + ":")
    def c(s): L.append("  ; " + s)
    uid = [0]
    def u():
        uid[0] += 1; return uid[0]
    SC = f2u(128 ** -0.5 * math.log2(math.e))
    NA2 = 16 - NA1
    DPP = "row_mask:0xf bank_mask:0xf"

    L.append(HEADER.rstrip("\n"))
    L.append(f"; @launch grid=(256,1,1) block=(512,1,1) lds={LDS_BYTES}")
    L.append('.amdgcn_target "amdgcn-amd-amdhsa--gfx950"')
    L.append(".text"); L.append(f".globl {NAME}_kernel"); L.append(".p2align 8")
    L.append(f".type {NAME}_kernel,@function"); L.append(f"{NAME}_kernel:")

    def stamp(k, lvl=1):
        if stamps >= lvl: e(f"s_memrealtime s[{64+2*k}:{65+2*k}]")
    def tag_consts():
        for k in range(4): e(f"s_mov_b32 s{56+k}, {0x07060500 + k:#x}")
        e("s_mov_b32 s76, 0x0c0c0400"); e("s_mov_b32 s77, 0x0c040100"); e("s_mov_b32 s78, 0x04020100")
    def put_tag(r, vn):
        for k in range(4): e(f"v_perm_b32 v{r+k}, v{r+k}, v{vn}, s{56+k}")
    def get_tag(t, r):
        e(f"v_perm_b32 v{t}, v{r+1}, v{r}, s76"); e(f"v_perm_b32 v{t}, v{r+2}, v{t}, s77"); e(f"v_perm_b32 v{t}, v{r+3}, v{t}, s78")

    e("s_cmp_ge_u32 s2, 256"); e("s_cbranch_scc1 L_end")
    e("s_load_dwordx16 s[4:19], s[0:1], 0")
    e("s_load_dwordx8 s[20:27], s[0:1], 64")
    e("s_load_dwordx2 s[28:29], s[0:1], 96")
    if stamps or diagw: e("s_memrealtime s[60:61]")
    e("v_lshrrev_b32 v1, 6, v0")
    e("s_and_b32 s30, s2, 7")
    e("v_readfirstlane_b32 s3, v1")
    e("s_lshr_b32 s31, s2, 3")
    e("v_and_b32 v0, 63, v0")
    e("s_lshr_b32 s33, s2, 6"); e("s_lshl2_add_u32 s32, s30, s33")
    e("s_and_b32 s35, s2, 32"); e("s_add_u32 s35, s35, s32")
    e("s_mov_b32 s42, 0x400000"); e("s_mov_b32 s43, 0x20000"); e("s_mov_b32 s39, s43")
    e("s_cmp_ge_u32 s3, 4"); e("s_cbranch_scc1 L_helper")

    RING = 128
    def issue(p):
        r = RING + 4 * p; j = p % 8
        if j < 4: e(f"buffer_load_dwordx4 v[{r}:{r+3}], v2, s[36:39], s44 offen offset:{j*1024} nt")
        else:     e(f"buffer_load_dwordx4 v[{r}:{r+3}], v3, s[40:43], s44 offen offset:{(j-4)*1024} nt")
        if j == 7:
            e("s_add_u32 s44, s44, s45"); e("s_and_b32 s44, s44, 0x3fffff")
    def set_unit(kb, vb):
        e(f"s_add_u32 s36, s{kb}, s50"); e(f"s_addc_u32 s37, s{kb+1}, 0")
        e(f"s_add_u32 s40, s{vb}, s50"); e(f"s_addc_u32 s41, s{vb+1}, 0")
    c("K lane offset: key=(l>>2)&3, d=(l>>4)*32+(l&3)*8 ; V lane offset: l*16")
    e("v_lshlrev_b32 v3, 4, v0")
    e("v_and_b32 v2, 48, v3"); e("v_and_b32 v4, 12, v0"); e("v_lshl_add_u32 v2, v4, 6, v2")
    e("v_and_b32 v5, 48, v0"); e("v_lshl_add_u32 v2, v5, 2, v2")
    e("s_and_b32 s44, s31, 3"); e("s_lshl2_add_u32 s44, s44, s3")
    e(f"s_mul_i32 s50, s35, {st1//4}"); e("s_add_u32 s44, s44, s50"); e("s_lshl_b32 s44, s44, 22"); e("s_lshr_b32 s44, s44, 10")
    e("s_mov_b32 s38, s42"); e("s_lshl_b32 s50, s35, 22")
    e("s_waitcnt lgkmcnt(0)")
    set_unit(6, 8)
    assert inf0 <= 7
    for p in range(inf0): issue(p)
    e("s_barrier")
    e("s_mov_b32 s45, 0x10000")
    c("constants while the first loads fly")
    e("v_and_b32 v6, 1, v0"); e("v_lshlrev_b32 v6, 4, v6"); e("v_mov_b32 v7, 0xffff"); e("v_lshlrev_b32 v6, v6, v7")
    e("v_and_b32 v7, 2, v0"); e("v_cmp_eq_u32 vcc, 0, v7")
    e(f"s_mov_b32 s48, {SC:#x}")
    e("v_mov_b32 v8, 0xff800000")
    e("v_cndmask_b32 v4, 0, v6, vcc")
    e("v_xor_b32 v5, v4, v6")
    e("v_mov_b32 v9, v8"); e("v_mov_b32 v10, 0")
    e("v_mov_b32 v11, v8"); e("v_mov_b32 v12, v8"); e("v_mov_b32 v13, 0")
    for r in range(40, 56): e(f"v_mov_b32 v{r}, 0")
    c("LDS address of the q operand: (g*32 + (l&3)*8)*2")
    e("v_and_b32 v6, 0xff, v2")
    e("v_bfe_u32 v7, v0, 2, 2")
    for s in range(4): e(f"v_cmp_eq_u32 s[{84+2*s}:{85+2*s}], {s}, v7")
    tag_consts()
    e(f"v_mov_b32 v14, {L_FLAG}"); e("v_mov_b32 v15, 1"); e("v_mov_b32 v90, 0"); e("v_mov_b32 v91, 0xffffff40")
    e("s_mov_b32 s33, 0"); e("s_movk_i32 s34, -256")
    e("s_mov_b32 s46, 0")
    e(f"s_mov_b32 s47, {NA1}")
    e(f"s_mov_b32 s50, {spin}")
    for p in range(inf0, 32):
        e(f"s_waitcnt vmcnt({inf0-1})"); issue(p)
    stamp(0)
    lab("L_wqa")
    e("ds_read_b64 v[108:109], v14 offset:16"); e(f"ds_read_b128 v[104:107], v6 offset:{L_QA}")
    e("s_waitcnt lgkmcnt(0)")
    e("v_readfirstlane_b32 s51, v108"); e("v_readfirstlane_b32 s55, v109"); e("s_sub_u32 s50, s50, 1")
    e("s_cbranch_scc1 L_wqa_done")
    e("s_cmp_eq_u32 s51, 0"); e("s_cbranch_scc1 L_wqa")
    lab("L_wqa_done")
    for s in range(4):
        for k in range(4): e(f"v_cndmask_b32 v{16+4*s+k}, 0, v{104+k}, s[{84+2*s}:{85+2*s}]")
    stamp(1)

    def wi(p, on, mha=False):
        if on:
            if pace:
                n = u(); j = p % 8
                if mha and p >= 32 - ot:
                    e("s_cmp_eq_u32 s92, 65"); e(f"s_cbranch_scc1 L_v{n}")
                e(f"s_bitcmp1_b32 s33, {j}"); e(f"s_cbranch_scc1 L_t{n}")
                e(f"s_bitcmp0_b32 s33, {8+j}"); e(f"s_cbranch_scc1 L_u{n}")
                e(f"s_waitcnt vmcnt({lo-1})")
                lab(f"L_u{n}")
                e(f"s_waitcnt vmcnt({inf-1})")
                lab(f"L_t{n}")
                e(f"s_waitcnt vmcnt({hi-1})")
                if mha and p >= 32 - ot: lab(f"L_v{n}")
            else:
                e(f"s_waitcnt vmcnt({inf-1})")
            issue(p)
    def need(p, on):
        if not on and p >= 32 - max(inf, hi) - ot: e(f"s_waitcnt vmcnt({31-p})")
    def diag(t, d):
        e(f"v_mov_b32_dpp v{t}, v{d} quad_perm:[0,0,0,0] {DPP}")
        for k in range(1, 4):
            e(f"v_add_f32_dpp v{t}, v{d+k}, v{t} quad_perm:[{k},{k},{k},{k}] {DPP}")
    def xrow_max(v, t):
        e(f"v_mov_b32 v{t}, v{v}"); e("s_nop 1"); e(f"v_permlane16_swap_b32 v{v}, v{t}"); e("s_nop 1")
        e(f"v_max_f32 v{v}, v{v}, v{t}")
        e(f"v_mov_b32 v{t}, v{v}"); e("s_nop 1"); e(f"v_permlane32_swap_b32 v{v}, v{t}"); e("s_nop 1")
        e(f"v_max_f32 v{v}, v{v}, v{t}")
    def pv(b0, O, on):
        for j in range(4):
            r = RING + 4 * (b0 + 4 + j)
            need(b0 + 4 + j, on)
            e(f"v_mfma_f32_16x16x16_bf16 v[{O}:{O+3}], v[{80+2*j}:{81+2*j}], v[{r}:{r+1}], v[{O}:{O+3}]")
            e(f"v_mfma_f32_16x16x16_bf16 v[{O+4}:{O+7}], v[{80+2*j}:{81+2*j}], v[{r+2}:{r+3}], v[{O+4}:{O+7}]")
            wi(b0 + 4 + j, on, O == 40)
    def pick_mask(b0, mha=False):
        if pace:
            c("queue depth for this step: bits 0-7 deeper, bits 8-15 shallower; late waves of the workgroup go a bit deeper")
            e("s_waitcnt lgkmcnt(0)"); e("v_readfirstlane_b32 s33, v90"); e("v_readfirstlane_b32 s50, v91")
            e("ds_read_b32 v90, v14 offset:12"); e("ds_add_rtn_u32 v91, v14, v15 offset:8")
            e("s_sub_i32 s50, s50, s34"); e("s_addk_i32 s34, 256")
            if wb0:
                e("s_cmp_lt_i32 s50, 64"); e(f"s_cselect_b32 s51, {((1 << wb0) - 1) << 8:#x}, 0"); e("s_or_b32 s33, s33, s51")
            if wb2:
                e("s_cmp_ge_i32 s50, 128"); e(f"s_cselect_b32 s51, {(1 << wb2) - 1:#x}, 0"); e("s_or_b32 s33, s33, s51")
            if wb3:
                e("s_cmp_ge_i32 s50, 192"); e(f"s_cselect_b32 s51, {(1 << wb3) - 1:#x}, 0"); e("s_or_b32 s33, s33, s51")
        else:
            e("ds_add_u32 v14, v15 offset:8")
    def step_mha(b0, on):
        if on: pick_mask(b0, True)
        for j in range(4):
            r = RING + 4 * (b0 + j)
            need(b0 + j, on)
            e(f"v_mfma_f32_16x16x32_bf16 v[56:59], v[{r}:{r+3}], v[{16+4*j}:{19+4*j}], {'v[56:59]' if j else '0'}")
            wi(b0 + j, on, True)
        e(f"s_nop {(4 if pace else 5) if on else 7}")
        diag(72, 56)
        n = u()
        e("v_cmp_gt_f32 vcc, v72, v8"); e(f"s_cbranch_vccz L_k{n}")
        c("running max grew: rescale")
        e(f"v_max_f32_dpp v88, v72, v72 row_ror:4 {DPP}"); e("s_nop 1")
        e(f"v_max_f32_dpp v88, v88, v88 row_ror:8 {DPP}")
        xrow_max(88, 89)
        e("v_max_f32 v8, v8, v88"); e("v_mul_f32 v89, s48, v8"); e("v_sub_f32 v88, v9, v89"); e("v_exp_f32 v88, v88")
        e("v_mov_b32 v9, v89"); e("v_mul_f32 v10, v10, v88")
        for k in range(8): e(f"v_mul_f32 v{40+k}, v{40+k}, v88")
        lab(f"L_k{n}")
        e("v_fma_f32 v72, v72, s48, -v9"); e("v_exp_f32 v72, v72"); e("s_nop 0")
        e("v_cvt_pk_bf16_f32 v76, v72, v72"); e("v_add_f32 v10, v10, v72"); e("s_nop 0")
        for j in range(4):
            e(f"v_and_b32_dpp v{80+2*j}, v76, v4 row_newbcast:{4*j} {DPP}")
            e(f"v_and_b32_dpp v{81+2*j}, v76, v5 row_newbcast:{4*j} {DPP}")
        pv(b0, 40, on)
    def step_gqa(b0):
        pick_mask(b0)
        for j in range(4):
            r = RING + 4 * (b0 + j)
            e(f"v_mfma_f32_16x16x32_bf16 v[{56+4*j}:{59+4*j}], v[{r}:{r+3}], v[32:35], 0")
            wi(b0 + j, True)
        for j in range(4): diag(72 + j, 56 + 4 * j)
        n = u()
        e("v_max3_f32 v88, v72, v73, v74"); e("v_max_f32 v88, v88, v75")
        e("v_cmp_gt_f32 vcc, v88, v11"); e(f"s_cbranch_vccz L_k{n}")
        c("running max grew: rescale")
        xrow_max(88, 89)
        e("v_max_f32 v11, v11, v88"); e("v_mul_f32 v89, s48, v11"); e("v_sub_f32 v88, v12, v89"); e("v_exp_f32 v88, v88")
        e("v_mov_b32 v12, v89"); e("v_mul_f32 v13, v13, v88")
        for k in range(4):
            e(f"v_mov_b32_dpp v89, v88 row_newbcast:{4*k} row_mask:{1<<k:#x} bank_mask:0xf")
        for k in range(8): e(f"v_mul_f32 v{48+k}, v{48+k}, v89")
        lab(f"L_k{n}")
        for j in range(4): e(f"v_fma_f32 v{72+j}, v{72+j}, s48, -v12")
        for j in range(4): e(f"v_exp_f32 v{72+j}, v{72+j}")
        e("s_nop 0")
        for j in range(4): e(f"v_cvt_pk_bf16_f32 v{76+j}, v{72+j}, v{72+j}")
        for j in range(4):
            e(f"v_and_b32 v{80+2*j}, v{76+j}, v4"); e(f"v_and_b32 v{81+2*j}, v{76+j}, v5")
        for j in range(4): e(f"v_add_f32 v13, v13, v{72+j}")
        pv(b0, 48, True)

    lab("L_mha")
    e("s_sub_u32 s50, s47, s46")
    e("s_cmp_lg_u32 s50, 1"); e("s_cbranch_scc1 L_mha_go")
    c("issue side moves on to the B unit")
    e("s_mov_b32 s49, s44")
    e("s_lshr_b32 s51, s31, 4"); e("s_lshl3_add_u32 s51, s51, s30")
    e("s_lshl_b32 s50, s51, 22")
    set_unit(16, 18)
    e("s_and_b32 s44, s31, 15"); e("s_lshl2_add_u32 s44, s44, s3")
    if st2b:
        e("s_lshr_b32 s50, s31, 4"); e(f"s_mul_i32 s50, s50, {st2b//4}"); e("s_add_u32 s44, s44, s50")
    e(f"s_mul_i32 s50, s51, {st2//4}"); e("s_add_u32 s44, s44, s50"); e("s_lshl_b32 s44, s44, 22"); e("s_lshr_b32 s44, s44, 10")
    e("s_mov_b32 s45, 0x40000")
    lab("L_mha_go")
    e("s_add_u32 s92, s47, s46")
    for k in range(4): step_mha(8 * k, True)
    e("s_sub_u32 s47, s47, 1"); e("s_cmp_lg_u32 s47, 0"); e("s_cbranch_scc1 L_mha")
    e("s_cmp_eq_u32 s46, 0"); e("s_cbranch_scc1 L_bseg")
    stamp(4)
    c("addresses for the end game")
    e(f"s_mul_i32 s50, s3, {RECA}"); e(f"s_add_u32 s50, s50, {L_RECA}")
    e("v_add_u32 v6, s50, v3"); e("v_lshl_add_u32 v7, v0, 2, s50")
    e("s_lshl_b32 s50, s3, 2"); e("v_mov_b32 v14, s50")
    e(f"s_add_u32 s36, s28, {wsoff<<20:#x}"); e("s_addc_u32 s37, s29, 0")
    e("s_mov_b32 s40, s24"); e("s_mov_b32 s41, s25"); e("s_mov_b32 s42, 4096")
    for k in range(4): step_mha(8 * k, False)
    c("A partial of this wave -> LDS")
    e(f"v_add_f32_dpp v10, v10, v10 row_ror:4 {DPP}")
    e(f"ds_write_b32 v14, v9 offset:{L_MA}")
    e("s_nop 0")
    e(f"v_add_f32_dpp v10, v10, v10 row_ror:8 {DPP}")
    e("ds_write_b32 v7, v10 offset:256")
    e("s_nop 1")
    e("s_mov_b64 exec, 0xffff")
    for k in range(4): e(f"v_cvt_pk_bf16_f32 v{40+k}, v{40+2*k}, v{41+2*k}")
    e("ds_write_b128 v6, v[40:43]")
    e("s_mov_b64 exec, -1")
    e("s_waitcnt lgkmcnt(0)")
    stamp(5)
    e("s_barrier")
    stamp(0, 2); stamp(1, 2); stamp(2, 2); stamp(3, 2)
    e("s_cmp_lg_u32 s3, 0"); e("s_cbranch_scc1 L_red")
    c("wave 0 publishes (M, L) of the workgroup: lane = (w, row)")
    e("v_and_b32 v6, 12, v0"); e("v_and_b32 v7, 3, v0"); e("v_lshlrev_b32 v7, 6, v7")
    e(f"s_movk_i32 s50, {RECA//4}"); e("v_mad_u32_u24 v7, v6, s50, v7")
    e(f"ds_read_b32 v16, v6 offset:{L_MA}"); e(f"ds_read_b32 v17, v7 offset:{L_RECA+256}")
    e("s_and_b32 s51, s31, 3"); e("s_lshl2_add_u32 s50, s32, s51"); e("s_lshl_b32 s50, s50, 4")
    e("s_bfe_u32 s51, s2, 0x10005"); e(f"s_mul_i32 s51, s51, {MLS*mlr}"); e("s_add_u32 s50, s50, s51"); e(f"s_add_u32 s50, s50, {MLA:#x}")
    e(f"v_mul_u32_u24 v18, {MLS}, v0")
    e("v_mov_b32 v19, s55"); e("v_lshrrev_b32 v22, 16, v19"); e("v_lshrrev_b32 v23, 24, v19")
    e("s_waitcnt lgkmcnt(0)")
    e(f"v_max_f32_dpp v20, v16, v16 row_ror:4 {DPP}"); e("s_nop 1")
    e(f"v_max_f32_dpp v20, v20, v20 row_ror:8 {DPP}")
    e("v_perm_b32 v20, v20, v19, s56")
    e("v_sub_f32 v16, v16, v20"); e("v_exp_f32 v16, v16"); e("s_nop 0"); e("v_mul_f32 v21, v16, v17"); e("s_nop 1")
    for d in ("quad_perm:[1,0,3,2]", "quad_perm:[2,3,0,1]", "row_ror:4", "row_ror:8"):
        e(f"v_add_f32_dpp v21, v21, v21 {d} {DPP}")
        if d != "row_ror:8": e("s_nop 1")
    e("v_perm_b32 v21, v21, v19, s57")
    e(f"s_mov_b64 exec, {(1 << mlr) - 1:#x}")
    e("buffer_store_dwordx4 v[20:23], v18, s[36:39], s50 offen sc1")
    e("s_mov_b64 exec, -1")
    lab("L_red")
    e("s_cmp_ge_u32 s2, 64"); e("s_cbranch_scc1 L_sdone")
    c("reducers: b = (id>>4)&1, one 128-byte line of every contribution; lane = (row, granule)")
    e("v_lshrrev_b32 v6, 3, v0"); e("v_and_b32 v14, 7, v0")
    e("v_bfe_u32 v8, v0, 4, 1"); e("v_lshrrev_b32 v9, 5, v0"); e("v_lshl_add_u32 v8, v8, 1, v9")
    e("v_lshlrev_b32 v10, 3, v0")
    e("s_bfe_u32 s48, s2, 0x10004"); e("s_bfe_u32 s49, s2, 0x20002")
    e("s_lshl_b32 s44, s48, 11"); e("s_lshl_b32 s45, s49, 8"); e("s_add_u32 s44, s44, s45")
    e(f"s_lshl_b32 s54, s3, 7")
    e(f"s_mov_b32 s50, {rspin}")
    e("s_cmp_ge_u32 s2, 32"); e("s_cbranch_scc1 L_redb")
    c("branch A: wave = 8 heads x 4 splits; column = quarter*128 + half*64 + k*16 + (id&1)*8 + granule")
    e("v_and_b32 v11, 3, v0")
    e("v_lshlrev_b32 v7, 6, v6"); e("v_lshl_add_u32 v7, v11, 4, v7")
    e(f"s_mul_i32 s52, s2, {YAS}"); e("s_lshl_b32 s51, s3, 10"); e("s_add_u32 s52, s52, s51"); e(f"s_add_u32 s52, s52, {YA:#x}")
    for q in range(1, 4): e(f"s_add_u32 s{[0,53,62,63][q]}, s52, {4096*q}")
    e(f"s_and_b32 s51, s2, {mlr-1}"); e(f"s_mul_i32 s45, s48, {mlr}"); e("s_add_u32 s51, s51, s45"); e(f"s_mul_i32 s51, s51, {MLS}")
    e("s_lshl_b32 s45, s3, 9"); e("s_add_u32 s51, s51, s45"); e(f"s_add_u32 s51, s51, {MLA:#x}")
    e("v_lshl_add_u32 v8, v8, 3, v14"); e("v_lshl_add_u32 v8, v8, 2, s54")
    e("v_lshrrev_b32 v9, 2, v0"); e("v_lshlrev_b32 v9, 5, v9"); e("v_lshl_add_u32 v9, v11, 2, v9")
    e("s_and_b32 s45, s2, 2"); e("s_lshl_b32 s45, s45, 6"); e("s_add_u32 s44, s44, s45")
    e("s_and_b32 s45, s2, 1"); e("s_lshl4_add_u32 s44, s45, s44")
    if rw: e("s_barrier")
    if rd: e(f"s_sleep {rd}")
    lab("L_rpoll")
    e("buffer_load_dwordx4 v[40:43], v7, s[36:39], s51 offen sc1")
    for q in range(4): e(f"buffer_load_dwordx4 v[{24+4*q}:{27+4*q}], v3, s[36:39], s{[52,53,62,63][q]} offen sc1")
    e("s_mov_b64 s[46:47], exec")
    e("s_waitcnt vmcnt(4)"); get_tag(16, 40)
    for q in range(4):
        e(f"s_waitcnt vmcnt({3-q})"); get_tag(17 + q, 24 + 4 * q)
    for q in range(5): e(f"v_cmpx_eq_u32 vcc, s55, v{16+q}")
    e("s_sub_u32 s50, s50, 1"); e("s_cbranch_scc1 L_rdone")
    if rsl:
        e("s_andn2_b64 exec, s[46:47], vcc"); e("s_cbranch_scc0 L_rdone"); e(f"s_sleep {rsl}"); e("s_branch L_rpoll")
    else:
        e("s_andn2_b64 exec, s[46:47], vcc"); e("s_cbranch_scc1 L_rpoll")
    lab("L_rdone")
    stamp(1, 2)
    if stamps >= 3:
        e(f"s_sub_u32 s72, {rspin}, s50"); e("s_mul_i32 s72, s72, 100"); e("s_add_u32 s72, s72, s60"); e("s_addc_u32 s73, s61, 0")
    e("s_mov_b64 exec, -1"); e("s_nop 1")
    e(f"v_max_f32_dpp v15, v40, v40 quad_perm:[1,0,3,2] {DPP}"); e("s_nop 1")
    e(f"v_max_f32_dpp v15, v15, v15 quad_perm:[2,3,0,1] {DPP}")
    e("v_sub_f32 v16, v40, v15"); e("v_exp_f32 v16, v16"); e("s_nop 0"); e("v_mul_f32 v15, v16, v41")
    e(f"v_mul_f32_dpp v56, v16, v24 quad_perm:[0,0,0,0] {DPP}"); e(f"v_mul_f32_dpp v57, v16, v25 quad_perm:[0,0,0,0] {DPP}")
    e(f"v_add_f32_dpp v15, v15, v15 quad_perm:[1,0,3,2] {DPP}")
    e(f"v_mul_f32_dpp v58, v16, v26 quad_perm:[0,0,0,0] {DPP}"); e(f"v_mul_f32_dpp v59, v16, v27 quad_perm:[0,0,0,0] {DPP}")
    e(f"v_add_f32_dpp v15, v15, v15 quad_perm:[2,3,0,1] {DPP}")
    e("v_rcp_f32 v15, v15")
    for q in range(1, 4):
        for k in range(4): e(f"v_fmac_f32_dpp v{56+k}, v16, v{24+4*q+k} quad_perm:[{q},{q},{q},{q}] {DPP}")
    for k in range(4): e(f"v_mul_f32 v{56+k}, v15, v{56+k}")
    lab("L_rsum")
    c("sum v[56:59] over lane bits 5,4,3: row r ends with component [0,2,1,3][r]")
    e("s_nop 0")
    e("v_permlane32_swap_b32 v56, v57"); e("v_permlane32_swap_b32 v58, v59")
    e("v_add_f32 v56, v56, v57"); e("v_add_f32 v58, v58, v59"); e("s_nop 1")
    e("v_permlane16_swap_b32 v56, v58")
    e("v_add_f32 v56, v56, v58"); e("s_nop 1")
    e(f"v_add_f32_dpp v56, v56, v56 row_ror:8 {DPP}")
    e(f"ds_write_b32 v8, v56 offset:{L_RED}")
    e("s_waitcnt lgkmcnt(0)")
    e("s_barrier")
    stamp(2, 2)
    e("s_cmp_lg_u32 s3, 0"); e("s_cbranch_scc1 L_sdone")
    e("s_mov_b64 exec, 0xffff")
    for w in range(4): e(f"ds_read_b64 v[{60+2*w}:{61+2*w}], v10 offset:{L_RED + w*128}")
    e("s_waitcnt lgkmcnt(2)")
    e("v_add_f32 v60, v60, v62"); e("v_add_f32 v61, v61, v63")
    e("s_waitcnt lgkmcnt(0)")
    e("v_add_f32 v64, v64, v66"); e("v_add_f32 v65, v65, v67")
    e("v_add_f32 v60, v60, v64"); e("v_add_f32 v61, v61, v65")
    e("v_cvt_pk_bf16_f32 v60, v60, v61")
    e("buffer_store_dword v60, v9, s[40:43], s44 offen")
    stamp(3, 2)
    c("workgroup 32 has seen data that depends on every workgroup, so all have read the old tag: leave the new one")
    e("s_cmp_lg_u32 s2, 32"); e("s_cbranch_scc1 L_sdone")
    e(f"s_mov_b32 s50, {EPOCH:#x}"); e("v_mov_b32 v61, s55")
    e("s_mov_b64 exec, 1"); e("buffer_store_dword v61, off, s[36:39], s50 sc1")
    lab("L_sdone")
    if diagw:
        lab("L_diag")
        e("s_memrealtime s[62:63]"); e("s_waitcnt lgkmcnt(0)")
        e("s_sub_u32 s62, s62, s60"); e(f"s_cmp_lt_u32 s62, {diagw*100}"); e("s_cbranch_scc1 L_diag")
    if stamps:
        e("s_cmp_lg_u32 s3, 0"); e("s_cbranch_scc1 L_end")
        e("s_waitcnt vmcnt(0)")
        e("s_memrealtime s[62:63]"); e("s_getreg_b32 s50, hwreg(HW_REG_XCC_ID)"); e("s_waitcnt lgkmcnt(0)")
        e("s_mov_b64 exec, 1"); e("s_mov_b32 s36, s28"); e("s_mov_b32 s37, s29")
        for k in range(4): e(f"v_mov_b32 v{16+k}, s{60+k}")
        e("s_lshl_b32 s51, s2, 4"); e("buffer_store_dwordx4 v[16:19], off, s[36:39], s51")
        e("v_mov_b32 v20, s50"); e("s_lshl_b32 s51, s2, 2"); e("s_add_u32 s51, s51, 0x10000")
        e("buffer_store_dword v20, off, s[36:39], s51")
        for k in range(12): e(f"v_mov_b32 v{24+k}, s{64+k}")
        e("s_lshl_b32 s51, s2, 7"); e("s_add_u32 s51, s51, 0x20000")
        for k in range(3): e(f"buffer_store_dwordx4 v[{24+4*k}:{27+4*k}], off, s[36:39], s51 offset:{16*k}")
    e("s_endpgm")
    lab("L_redb")
    c("branch B: wave = 16 terms; column = 512 + quarter*128 + ((id&1)*8 + granule)*8 + half*4 + k")
    e(f"s_mul_i32 s52, s2, {YBS}"); e("s_lshl_b32 s51, s3, 11"); e("s_add_u32 s52, s52, s51"); e(f"s_add_u32 s52, s52, {YB - 32*YBS:#x}")
    e("v_lshl_add_u32 v8, v14, 2, v8"); e("v_lshl_add_u32 v8, v8, 2, s54")
    e("v_lshrrev_b32 v9, 1, v0"); e("v_lshlrev_b32 v9, 4, v9"); e("v_and_b32 v11, 1, v0"); e("v_lshl_add_u32 v9, v11, 2, v9")
    e("s_and_b32 s45, s2, 1"); e("s_lshl_b32 s45, s45, 7"); e("s_add_u32 s44, s44, s45")
    e("s_and_b32 s45, s2, 2"); e("s_lshl2_add_u32 s44, s45, s44"); e("s_add_u32 s44, s44, 1024")
    lab("L_bpoll")
    e("buffer_load_dwordx4 v[24:27], v3, s[36:39], s52 offen sc1")
    e("buffer_load_dwordx4 v[28:31], v3, s[36:39], s52 offen offset:1024 sc1")
    e("s_mov_b64 s[46:47], exec")
    e("s_waitcnt vmcnt(1)"); get_tag(16, 24); e("s_waitcnt vmcnt(0)"); get_tag(17, 28)
    e("v_cmpx_eq_u32 vcc, s55, v16"); e("v_cmpx_eq_u32 vcc, s55, v17")
    e("s_sub_u32 s50, s50, 1"); e("s_cbranch_scc1 L_bdone")
    e("s_andn2_b64 exec, s[46:47], vcc"); e("s_cbranch_scc1 L_bpoll")
    lab("L_bdone")
    stamp(1, 2)
    e("s_mov_b64 exec, -1")
    for k in range(4): e(f"v_add_f32 v{56+k}, v{24+k}, v{28+k}")
    e("s_branch L_rsum")

    lab("L_bseg")
    stamp(2)
    e(f"s_mov_b32 s50, {spin}")
    lab("L_wqb")
    e("ds_read_b32 v7, v14"); e(f"ds_read_b128 v[32:35], v2 offset:{L_QB}")
    e("s_waitcnt lgkmcnt(0)")
    e("v_readfirstlane_b32 s51, v7"); e("s_sub_u32 s50, s50, 1")
    e("s_cbranch_scc1 L_wqb_done")
    e("s_cmp_eq_u32 s51, 0"); e("s_cbranch_scc1 L_wqb")
    lab("L_wqb_done")
    e("s_mov_b32 s47, 4")
    lab("L_gqa")
    e("s_cmp_lg_u32 s47, 1"); e("s_cbranch_scc1 L_gqa_go")
    c("issue side returns to the A unit")
    e("s_lshl_b32 s50, s35, 22")
    set_unit(6, 8)
    e("s_mov_b32 s44, s49"); e("s_mov_b32 s45, 0x10000")
    lab("L_gqa_go")
    for k in range(4): step_gqa(8 * k)
    e("s_sub_u32 s47, s47, 1"); e("s_cmp_lg_u32 s47, 0"); e("s_cbranch_scc1 L_gqa")
    c("hand the B partial of this wave to the agent through LDS")
    e(f"s_mul_i32 s50, s3, {RECB}"); e(f"s_add_u32 s50, s50, {L_RECB}")
    e("v_lshl_add_u32 v6, v0, 5, s50"); e("v_lshl_add_u32 v7, v0, 2, s50")
    e("ds_write_b128 v6, v[48:51]"); e("ds_write_b128 v6, v[52:55] offset:16")
    e("ds_write_b32 v7, v12 offset:2048"); e("ds_write_b32 v7, v13 offset:2304")
    e("ds_add_u32 v14, v15 offset:4")
    e("s_mov_b32 s46, 64"); e(f"s_mov_b32 s47, {NA2-1}")
    stamp(3)
    e("s_branch L_mha")

    lab("L_helper")
    e(f"v_mov_b32 v41, {L_FLAG}")
    for k in range(4): e(f"v_mov_b32 v{28+k}, 0")
    e("ds_write_b128 v41, v[28:31]"); e("ds_write_b128 v41, v[28:31] offset:16")
    e("s_sub_u32 s33, s3, 4")
    e("s_and_b32 s54, s31, 7")
    e("v_and_b32 v1, 15, v0")
    e("v_lshrrev_b32 v2, 4, v0")
    e("v_bfe_u32 v34, v0, 3, 1")
    e("v_lshlrev_b32 v3, 17, v2"); e("v_lshl_add_u32 v3, v1, 4, v3")
    e("v_lshlrev_b32 v35, 10, v34"); e("v_lshl_add_u32 v35, v2, 5, v35")
    e("s_lshl_b32 s50, s32, 8"); e("s_lshl_b32 s51, s54, 19"); e("s_add_u32 s50, s50, s51"); e("s_lshl_b32 s51, s54, 7")
    e("s_movk_i32 s38, 2048")
    e("s_waitcnt lgkmcnt(0)")
    e("s_mov_b32 s36, s4"); e("s_mov_b32 s37, s5"); e("s_mov_b32 s40, s10"); e("s_mov_b32 s41, s11")
    e("s_barrier")
    e("s_cmp_lg_u32 s33, 0"); e("s_cbranch_scc1 L_hc")
    c("helper 0: 64 of the 512 rows of the q projection of head h (branch A)")
    for k in range(2): e(f"buffer_load_dwordx4 v[{8+4*k}:{11+4*k}], v35, s[36:39], s51 offen offset:{16*k}")
    for t in range(16):
        e(f"buffer_load_dwordx4 v[{64+4*t}:{67+4*t}], v3, s[40:43], s50 offen nt")
        if t < 15: e("s_addk_i32 s50, 0x2000")
    e(f"s_add_u32 s52, s28, {(wsoff<<20) + EPOCH:#x}"); e("s_addc_u32 s53, s29, 0")
    e("s_load_dword s55, s[52:53], 0")
    lab("L_hc")
    c("diagonal masks m_i: e=l&7 ; (e>>1==i) ? half(e&1) : 0")
    e("v_and_b32 v24, 1, v0"); e("v_lshlrev_b32 v24, 4, v24"); e("v_mov_b32 v25, 0xffff"); e("v_lshlrev_b32 v24, v24, v25")
    e("v_bfe_u32 v25, v0, 1, 2")
    for i in range(4):
        e(f"v_cmp_eq_u32 vcc, {i}, v25"); e("s_nop 1"); e(f"v_cndmask_b32 v{4+i}, 0, v24, vcc")
    e("v_lshlrev_b32 v40, 4, v0"); e("v_mov_b32 v60, 0")
    e(f"s_add_u32 s44, s28, {wsoff<<20:#x}"); e("s_addc_u32 s45, s29, 0"); e("s_mov_b32 s46, s42"); e("s_mov_b32 s47, s43")
    tag_consts()
    def lds_wait(off, val, sl=16):
        n = u()
        e(f"s_mov_b32 s50, {spin}")
        lab(f"L_p{n}")
        e(f"ds_read_b32 v24, v41 offset:{off}"); e("s_waitcnt lgkmcnt(0)")
        e("v_readfirstlane_b32 s51, v24"); e("s_sub_u32 s50, s50, 1"); e(f"s_cbranch_scc1 L_pd{n}")
        e(f"s_cmp_ge_u32 s51, {val}"); e(f"s_cbranch_scc1 L_pd{n}")
        e(f"s_sleep {sl}"); e(f"s_branch L_p{n}")
        lab(f"L_pd{n}")
    e("s_cmp_lg_u32 s33, 0"); e("s_cbranch_scc1 L_hb")
    e("s_waitcnt lgkmcnt(0)")
    e("s_add_u32 s55, s55, 0x04030201"); e("v_mov_b32 v63, s55"); e("v_mov_b32 v62, 1")
    def rows_mfma(waits):
        e("s_mov_b32 s52, 0x01000100"); e("s_mov_b32 s53, 0x03020302")
        if waits: e("s_waitcnt vmcnt(16)")
        for s_ in range(16):
            e(f"v_perm_b32 v32, v{8 + s_//2}, v{8 + s_//2}, s{52 + s_%2}")
            for i in range(4): e(f"v_and_b32 v{24+i}, v32, v{4+i}")
            if waits: e(f"s_waitcnt vmcnt({15-s_})"); e("s_nop 0")
            else: e("s_nop 1")
            e(f"v_mfma_f32_16x16x32_bf16 v[56:59], v[24:27], v[{64+4*s_}:{67+4*s_}], {'v[56:59]' if s_ else '0'}")
    rows_mfma(True)
    e("s_lshl_b32 s50, s32, 13"); e(f"s_add_u32 s50, s50, {QPA:#x}")
    e("s_lshl_b32 s51, s54, 10"); e("s_add_u32 s51, s51, s50")
    e("s_nop 3")
    put_tag(56, 63)
    e("buffer_store_dwordx4 v[56:59], v40, s[44:47], s51 offen sc1")
    def poll_begin(g=None):
        n = u(); e(f"s_mov_b32 s79, {gspin if g is None else g}"); lab(f"L_g{n}"); return n
    def poll_end(n, sl):
        e("s_not_b64 s[80:81], vcc"); e("s_mov_b64 exec, -1"); e(f"s_cbranch_scc0 L_gd{n}")
        e("s_sub_u32 s79, s79, 1"); e(f"s_cbranch_scc1 L_gd{n}")
        if sl: e(f"s_sleep {sl}")
        e(f"s_branch L_g{n}")
        lab(f"L_gd{n}")
    if stamps: e("s_memrealtime s[86:87]")
    c("helper 0 adds up the eight slices for this workgroup's batch")
    e("v_and_b32 v42, 31, v0"); e("v_lshlrev_b32 v42, 4, v42"); e("v_lshrrev_b32 v24, 5, v0"); e("v_lshl_add_u32 v42, v24, 10, v42")
    e("v_lshlrev_b32 v43, 4, v1"); e("v_lshl_add_u32 v43, v24, 2, v43"); e("v_and_b32 v24, 1, v2"); e("v_lshl_add_u32 v43, v24, 3, v43")
    e("s_and_b32 s51, s2, 32"); e("s_lshl4_add_u32 s50, s51, s50"); e("s_add_u32 s51, s50, 0x1000")
    e("s_waitcnt vmcnt(0)")
    if stamps: e("s_memrealtime s[88:89]")
    n = poll_begin(spin)
    for t in range(4): e(f"buffer_load_dwordx4 v[{8+4*t}:{11+4*t}], v42, s[44:47], s{50+t//2} offen offset:{2048*(t%2)} sc1")
    for t in range(4):
        e(f"s_waitcnt vmcnt({3-t})"); get_tag(24 + t, 8 + 4 * t)
    for t in range(4): e(f"v_cmpx_eq_u32 vcc, s55, v{24+t}")
    poll_end(n, qslp)
    for k in range(4): e(f"v_add_f32 v{8+k}, v{8+k}, v{12+k}")
    for k in range(4): e(f"v_add_f32 v{16+k}, v{16+k}, v{20+k}")
    for k in range(4): e(f"v_add_f32 v{8+k}, v{8+k}, v{16+k}")
    e("s_nop 0")
    e("v_permlane32_swap_b32 v8, v10"); e("v_permlane32_swap_b32 v9, v11")
    e("v_add_f32 v8, v8, v10"); e("v_add_f32 v9, v9, v11")
    e("v_cvt_pk_bf16_f32 v8, v8, v9")
    e(f"ds_write_b32 v43, v8 offset:{L_QA}")
    e("ds_write_b64 v41, v[62:63] offset:16")
    if stamps: e("s_memrealtime s[82:83]")
    lab("L_hb")
    e("s_cmp_eq_u32 s33, 2"); e("s_cbranch_scc1 L_pacer")
    lds_wait(16, 1, 4)
    e("ds_read_b32 v63, v41 offset:20"); e("s_waitcnt lgkmcnt(0)")
    e("v_readfirstlane_b32 s55, v63")
    def wo_tiles():
        e("s_lshl_b32 s50, s33, 15"); e(f"s_add_u32 s50, s50, {L_WO}")
        e("v_lshrrev_b32 v33, 2, v1"); e("v_lshl_add_u32 v33, v2, 3, v33"); e("v_lshlrev_b32 v33, 8, v33")
        e("v_and_b32 v24, 3, v0"); e("v_lshl_add_u32 v33, v24, 3, v33"); e("v_add_u32 v33, s50, v33")
        for nb in range(8):
            for kb in range(4):
                r = 128 + 4 * (nb * 4 + kb)
                for hh in range(2):
                    e(f"ds_read_b64_tr_b16 v[{r+2*hh}:{r+2*hh+1}], v33 offset:{kb*8192 + hh*1024 + nb*32}")
            e("s_waitcnt lgkmcnt(0)")
    e("s_cmp_lg_u32 s33, 1"); e("s_cbranch_scc1 L_htiles")

    c("job 0: 64 of the 512 rows of the q projection of head h (branch B)")
    if bs: lds_wait(8, 256 * bs)
    e("s_lshl_b32 s50, s32, 8"); e("s_lshl_b32 s51, s54, 19"); e("s_add_u32 s50, s50, s51"); e("s_lshl_b32 s51, s54, 7")
    e("s_mov_b32 s36, s14"); e("s_mov_b32 s37, s15"); e("s_mov_b32 s40, s20"); e("s_mov_b32 s41, s21")
    for k in range(2): e(f"buffer_load_dwordx4 v[{8+4*k}:{11+4*k}], v35, s[36:39], s51 offen offset:{16*k}")
    for t in range(16):
        e(f"s_waitcnt vmcnt({bth-1})")
        e(f"buffer_load_dwordx4 v[{64+4*t}:{67+4*t}], v3, s[40:43], s50 offen nt")
        if t < 15: e("s_addk_i32 s50, 0x2000")
    rows_mfma(True)
    e("s_lshl_b32 s50, s32, 13"); e(f"s_add_u32 s50, s50, {QPB:#x}")
    e("s_lshl_b32 s51, s54, 10"); e("s_add_u32 s51, s51, s50")
    e("s_lshl_b32 s52, s54, 7"); e("s_add_u32 s52, s52, s50")
    e("s_nop 1")
    put_tag(56, 63)
    e("buffer_store_dwordx4 v[56:59], v40, s[44:47], s51 offen sc1")
    c("job 1: add up line j of the eight slices of head h")
    e("v_lshrrev_b32 v42, 3, v0"); e("v_lshlrev_b32 v42, 10, v42"); e("v_and_b32 v24, 7, v0"); e("v_lshl_add_u32 v42, v24, 4, v42")
    if T1: lds_wait(8, 4 * 256 * T1 - 768)
    n = poll_begin()
    e("buffer_load_dwordx4 v[8:11], v42, s[44:47], s52 offen sc1")
    e("s_waitcnt vmcnt(0)")
    get_tag(16, 8); e("v_cmp_eq_u32 vcc, s55, v16")
    poll_end(n, slp)
    for k in range(4): e(f"v_add_f32_dpp v{8+k}, v{8+k}, v{8+k} row_ror:8 {DPP}")
    for sw in (16, 32):
        for k in range(4): e(f"v_mov_b32 v{12+k}, v{8+k}")
        e("s_nop 0")
        for k in range(4): e(f"v_permlane{sw}_swap_b32 v{8+k}, v{12+k}")
        for k in range(4): e(f"v_add_f32 v{8+k}, v{8+k}, v{12+k}")
    put_tag(8, 63)
    e("s_lshl3_add_u32 s50, s32, s54"); e("s_lshl_b32 s50, s50, 7"); e(f"s_add_u32 s50, s50, {QB:#x}")
    e("s_mov_b64 exec, 0xff"); e("buffer_store_dwordx4 v[8:11], v40, s[44:47], s50 offen sc1"); e("s_mov_b64 exec, -1")
    c("job 2: q of the four heads of this workgroup's B unit -> LDS; lane = (head&1, half, c)")
    e("v_and_b32 v42, 31, v0"); e("v_lshlrev_b32 v42, 4, v42"); e("v_lshrrev_b32 v24, 5, v0"); e("v_lshl_add_u32 v42, v24, 10, v42")
    e("v_lshlrev_b32 v43, 4, v1"); e("v_lshl_add_u32 v43, v24, 8, v43"); e("v_and_b32 v24, 1, v2"); e("v_lshl_add_u32 v43, v24, 3, v43")
    e("s_lshl_b32 s52, s30, 12"); e("s_lshr_b32 s51, s31, 4"); e("s_lshl_b32 s51, s51, 9"); e("s_add_u32 s52, s52, s51")
    e(f"s_add_u32 s52, s52, {QB:#x}")
    lds_wait(8, 4 * 256 * T2 - 768)
    n = poll_begin()
    e("buffer_load_dwordx4 v[8:11], v42, s[44:47], s52 offen sc1")
    e("buffer_load_dwordx4 v[12:15], v42, s[44:47], s52 offen offset:2048 sc1")
    e("s_waitcnt vmcnt(0)")
    get_tag(16, 8); get_tag(17, 12)
    e("v_cmpx_eq_u32 vcc, s55, v16"); e("v_cmpx_eq_u32 vcc, s55, v17")
    poll_end(n, slp)
    for q in range(4): e(f"v_cvt_pk_bf16_f32 v{16+q}, v{8+2*q}, v{9+2*q}")
    e(f"ds_write_b64 v43, v[16:17] offset:{L_QB}"); e(f"ds_write_b64 v43, v[18:19] offset:{L_QB+512}")
    e("v_mov_b32 v25, 1")
    e("s_waitcnt lgkmcnt(0)")
    e("ds_write_b32 v41, v25")
    c("wo_B slice: rows h*128 + kq*64 + 16g + s, columns cq*128..")
    e("s_lshr_b32 s48, s54, 2"); e("s_and_b32 s49, s54, 3")
    e("s_lshl_b32 s50, s32, 17"); e("s_lshl_b32 s51, s48, 16"); e("s_add_u32 s50, s50, s51")
    e("s_lshl_b32 s51, s49, 8"); e("s_add_u32 s50, s50, s51")
    e("v_lshlrev_b32 v3, 14, v2"); e("v_lshl_add_u32 v3, v1, 4, v3")
    e("s_mov_b32 s40, s22"); e("s_mov_b32 s41, s23")
    for s_ in range(16):
        e(f"s_waitcnt vmcnt({bth-1})")
        e(f"buffer_load_dwordx4 v[{64+4*s_}:{67+4*s_}], v3, s[40:43], s50 offen offset:{(s_%4)*1024} nt")
        if s_ % 4 == 3 and s_ < 15: e("s_addk_i32 s50, 0x1000")
    c("job 3: merge the four waves' B partials, publish (outputs first, then the tagged max/sum line)")
    lds_wait(4, 256)
    e("v_lshlrev_b32 v42, 4, v2")
    e("v_lshlrev_b32 v43, 5, v0")
    for w in range(4): e(f"ds_read_b32 v{8+w}, v42 offset:{L_RECB + w*RECB + 2048}")
    e("s_waitcnt lgkmcnt(0)")
    for w in range(4):
        for a in range(4): e(f"ds_read_b32 v{12+4*w+a}, v42 offset:{L_RECB + w*RECB + 2304 + 64*a}")
        e("s_waitcnt lgkmcnt(0)")
    e("v_max3_f32 v44, v8, v9, v10"); e("v_max_f32 v44, v44, v11")
    for w in range(4): e(f"v_sub_f32 v{8+w}, v{8+w}, v44")
    for w in range(4): e(f"v_exp_f32 v{8+w}, v{8+w}")
    e("v_mov_b32 v45, 0"); e("v_mov_b32 v46, 0"); e("v_mov_b32 v47, v63")
    for w in range(4):
        for a in range(4): e(f"v_fmac_f32 v45, v{8+w}, v{12+4*w+a}")
    for k in range(8): e(f"v_mov_b32 v{48+k}, 0")
    for w in range(4):
        e(f"ds_read_b128 v[12:15], v43 offset:{L_RECB + w*RECB}")
        e(f"ds_read_b128 v[16:19], v43 offset:{L_RECB + w*RECB + 16}")
        e("s_waitcnt lgkmcnt(0)")
        for k in range(8): e(f"v_fmac_f32 v{48+k}, v{8+w}, v{12+k}")
    for k in range(4): e(f"v_cvt_pk_bf16_f32 v{48+k}, v{48+2*k}, v{49+2*k}")
    e("s_lshr_b32 s52, s31, 4"); e("s_lshl3_add_u32 s52, s52, s30")
    e("s_and_b32 s51, s31, 15"); e("s_lshl4_add_u32 s52, s52, s51")
    e("s_lshl_b32 s50, s52, 10"); e(f"s_add_u32 s50, s50, {PBO:#x}")
    e("buffer_store_dwordx4 v[48:51], v40, s[44:47], s50 offen sc1")
    e("s_lshl_b32 s50, s52, 7"); e(f"s_add_u32 s50, s50, {PBML:#x}")
    e("v_lshlrev_b32 v42, 5, v2"); e("v_lshl_add_u32 v42, v1, 4, v42")
    e("s_waitcnt vmcnt(0)")
    e("s_mov_b32 exec_lo, 0x00030003"); e("s_mov_b32 exec_hi, 0x00030003")
    e("buffer_store_dwordx4 v[44:47], v42, s[44:47], s50 offen sc1")
    e("s_mov_b64 exec, -1")
    c("job 4: finish half of the dims of head h (both batches), multiply by the wo slice")
    e("v_lshrrev_b32 v42, 5, v0")
    e("v_lshlrev_b32 v43, 14, v42"); e("v_lshl_add_u32 v43, v1, 7, v43")
    e("v_bfe_u32 v33, v0, 3, 2")
    e("v_lshlrev_b32 v35, 17, v42"); e("v_lshl_add_u32 v35, v33, 10, v35")
    e("v_and_b32 v32, 7, v0"); e("v_lshl_add_u32 v35, v32, 4, v35")
    e("v_lshl_add_u32 v33, v42, 5, v33"); e("v_lshlrev_b32 v33, 2, v33")
    e("s_lshr_b32 s51, s31, 3")
    e("s_lshl_b32 s52, s30, 11"); e("s_lshl_b32 s53, s51, 5"); e("s_add_u32 s52, s52, s53"); e(f"s_add_u32 s52, s52, {PBML:#x}")
    e("s_lshl_b32 s53, s30, 14"); e("s_lshl_b32 s51, s51, 8"); e("s_add_u32 s53, s53, s51")
    e("s_lshl_b32 s51, s48, 7"); e("s_add_u32 s53, s53, s51"); e(f"s_add_u32 s53, s53, {PBO:#x}")
    lds_wait(8, 4 * 256 * (NA1 + 4 + T4) - 768)
    n = poll_begin()
    e("buffer_load_dwordx4 v[8:11], v43, s[44:47], s52 offen sc1")
    e("s_waitcnt vmcnt(0)")
    e("v_cmp_eq_u32 vcc, s55, v11")
    poll_end(n, slp)
    for t in range(4):
        e(f"buffer_load_dwordx4 v[{44+4*t}:{47+4*t}], v35, s[44:47], s53 offen sc1")
        if t < 3: e("s_addk_i32 s53, 0x1000")
    e(f"v_max_f32_dpp v12, v8, v8 quad_perm:[1,0,3,2] {DPP}"); e("s_nop 1")
    for d in ("quad_perm:[2,3,0,1]", "row_ror:4", "row_ror:8"):
        e(f"v_max_f32_dpp v12, v12, v12 {d} {DPP}"); e("s_nop 1")
    e("v_sub_f32 v8, v8, v12"); e("v_exp_f32 v8, v8"); e("s_nop 0"); e("v_mul_f32 v9, v8, v9"); e("s_nop 1")
    for d in ("quad_perm:[1,0,3,2]", "quad_perm:[2,3,0,1]", "row_ror:4", "row_ror:8"):
        e(f"v_add_f32_dpp v9, v9, v9 {d} {DPP}"); e("s_nop 1")
    e("v_rcp_f32 v9, v9"); e("s_nop 0"); e("v_mul_f32 v8, v8, v9")
    for t in range(4): e(f"ds_bpermute_b32 v{12+t}, v33, v8 offset:{16*t}")
    for k in range(8): e(f"v_mov_b32 v{16+k}, 0")
    e("s_waitcnt vmcnt(0) lgkmcnt(0)")
    for t in range(4):
        for k in range(4):
            e(f"v_lshlrev_b32 v24, 16, v{44+4*t+k}"); e(f"v_and_b32 v25, 0xffff0000, v{44+4*t+k}")
            e(f"v_fmac_f32 v{16+2*k}, v{12+t}, v24"); e(f"v_fmac_f32 v{17+2*k}, v{12+t}, v25")
    e("s_nop 1")
    for k in range(4): e(f"v_permlane16_swap_b32 v{16+k}, v{20+k}")
    for k in range(4): e(f"v_add_f32 v{16+k}, v{16+k}, v{20+k}")
    for k in range(4): e(f"v_add_f32_dpp v{16+k}, v{16+k}, v{16+k} row_ror:8 {DPP}")
    e("v_cvt_pk_bf16_f32 v16, v16, v17"); e("v_cvt_pk_bf16_f32 v17, v18, v19")
    e("v_lshlrev_b32 v46, 7, v42"); e("v_lshl_add_u32 v46, v32, 4, v46"); e("v_and_b32 v47, 1, v2"); e("v_lshl_add_u32 v46, v47, 3, v46")
    e(f"ds_write_b64 v46, v[16:17] offset:{L_SCR}")
    e("v_lshlrev_b32 v46, 7, v34"); e("v_lshl_add_u32 v46, v2, 5, v46")
    e("s_waitcnt lgkmcnt(0)")
    for k in range(2): e(f"ds_read_b128 v[{8+4*k}:{11+4*k}], v46 offset:{L_SCR + 16*k}")
    e("s_waitcnt lgkmcnt(0)")
    rows_mfma(False)
    c("line (b, cq*4 + ((l>>3)&3)) of term h*2 + kq")
    e("s_lshl1_add_u32 s52, s32, s48"); e("s_lshl_b32 s52, s52, 7"); e(f"s_mul_i32 s51, s49, {4*YBS}")
    e("s_add_u32 s52, s52, s51"); e(f"s_add_u32 s52, s52, {YB:#x}")
    e("v_bfe_u32 v60, v0, 3, 2"); e("v_lshl_add_u32 v60, v42, 4, v60"); e(f"v_mul_u32_u24 v60, {YBS}, v60")
    e("v_and_b32 v24, 7, v0"); e("v_lshl_add_u32 v60, v24, 4, v60")
    put_tag(56, 63)
    if YBT >= 0:
        if YBT: lds_wait(8, 4 * 256 * YBT - 768)
        e("buffer_store_dwordx4 v[56:59], v60, s[44:47], s52 offen sc1")

    lab("L_htiles")
    lds_wait(24, 1, 32)
    wo_tiles()
    lab("L_hfinal")
    e("v_and_b32 v8, 3, v0"); e(f"v_mul_u32_u24 v8, {RECA}, v8"); e("v_lshl_add_u32 v8, v2, 4, v8"); e("v_mov_b32 v9, 0")
    e("s_and_b32 s50, s31, 3"); e("s_lshl_b32 s50, s50, 5"); e("s_add_u32 s50, s50, s32"); e("s_lshl_b32 s50, s50, 7")
    e("s_bfe_u32 s51, s2, 0x10005"); e("s_lshl2_add_u32 s51, s51, s33"); e(f"s_mul_i32 s51, s51, {4*YAS}")
    e("s_add_u32 s50, s50, s51"); e(f"s_add_u32 s50, s50, {YA:#x}"); e(f"s_add_u32 s51, s50, {2*YAS}")
    e(f"v_mul_u32_u24 v10, {YAS}, v34"); e("v_and_b32 v11, 7, v0"); e("v_lshl_add_u32 v10, v11, 4, v10")
    e("s_waitcnt vmcnt(0) lgkmcnt(0)")
    e("s_barrier")
    if stamps >= 2: e("s_memrealtime s[86:87]"); e("s_waitcnt lgkmcnt(0)")
    for kb in range(4): e(f"ds_read_b128 v[{16+4*kb}:{19+4*kb}], v8 offset:{L_RECA + kb*64}")
    e(f"ds_read_b128 v[12:15], v9 offset:{L_MA}")
    if YBT < 0:
        e("s_cmp_lg_u32 s33, 1"); e("s_cbranch_scc1 L_hf2")
        e("buffer_store_dwordx4 v[56:59], v60, s[44:47], s52 offen sc1")
        lab("L_hf2")
    def tile(nb, kb):
        d = 64 + 4 * nb; r = 128 + 4 * (nb * 4 + kb)
        e(f"v_mfma_f32_16x16x32_bf16 v[{d}:{d+3}], v[{16+4*kb}:{19+4*kb}], v[{r}:{r+3}], {f'v[{d}:{d+3}]' if kb else '0'}")
    fill = []
    fill += ["s_waitcnt lgkmcnt(0)", "v_max3_f32 v11, v12, v13, v14", "v_max_f32 v11, v11, v15", "v_perm_b32 v11, v11, v63, s56"]
    fill += [f"v_sub_f32 v{12+w}, v{12+w}, v11" for w in range(4)]
    fill += [f"v_exp_f32 v{12+w}, v{12+w}" for w in range(4)]
    def comb(nb):
        d = 64 + 4 * nb; y = 32 + nb
        return [f"v_mul_f32 v{y}, v12, v{d}"] + [f"v_fmac_f32 v{y}, v{12+w}, v{d+w}" for w in range(1, 4)] + \
               [f"v_perm_b32 v{y}, v{y}, v63, s{56 + nb % 4}"]
    for nb in range(8):
        if nb >= 2: fill += comb(nb - 2)
        for kb in range(4):
            if nb == 0: e(f"s_waitcnt lgkmcnt({4-kb})")
            tile(nb, kb)
            if nb >= 1:
                for _ in range(2):
                    if fill: e(fill.pop(0))
    for x in fill: e(x)
    e("s_mov_b64 exec, 0xffff")
    e("buffer_store_dwordx4 v[32:35], v10, s[44:47], s50 offen sc1")
    for x in comb(6): e(x)
    e("s_nop 0")
    for x in comb(7): e(x)
    e("buffer_store_dwordx4 v[36:39], v10, s[44:47], s51 offen sc1")
    if stamps:
        e("s_cmp_lg_u32 s33, 0"); e("s_cbranch_scc1 L_end")
        e("s_memrealtime s[84:85]"); e("s_waitcnt lgkmcnt(0)")
        e("s_mov_b64 exec, 1"); e("s_mov_b32 s44, s28"); e("s_mov_b32 s45, s29")
        for k in range(8): e(f"v_mov_b32 v{16+k}, s{82+k}")
        e("s_lshl_b32 s51, s2, 7"); e("s_add_u32 s51, s51, 0x20030")
        e("buffer_store_dwordx4 v[16:19], off, s[44:47], s51")
        e("buffer_store_dwordx4 v[20:23], off, s[44:47], s51 offset:16")
    lab("L_end")
    e("s_endpgm")
    lab("L_pacer")
    c("pacer: once per step it brings a few rows of wo_A into LDS, and (speed only) compares this workgroup's")
    c("progress with its neighbours' to set the depth of the load queue")
    e("s_mul_i32 s52, s30, 4352"); e(f"s_add_u32 s52, s52, {PROG:#x}")
    e("s_lshl1_add_u32 s53, s31, s52")
    e("v_lshlrev_b32 v42, 1, v0"); e("v_mov_b32 v12, 0")
    e("s_mov_b64 exec, 1")
    e("buffer_store_short v12, off, s[44:47], s53")
    e("s_cmp_lg_u32 s31, 0"); e("s_cbranch_scc1 L_pi")
    e("buffer_store_short v12, off, s[44:47], s52 offset:64")
    e("s_cmp_lg_u32 s30, 0"); e("s_cbranch_scc1 L_pi")
    e("s_mov_b64 exec, -1")
    e("v_mul_u32_u24 v13, 0x1100, v0"); e(f"s_mov_b32 s50, {PROG + 0x10000:#x}")
    e("buffer_store_dword v12, v13, s[44:47], s50 offen sc1")
    lab("L_pi")
    e("s_mov_b64 exec, -1")
    c("wo_A: one load = one 1 KiB row; lane -> image (l>>4), 16 B piece (l&15) is not lane-linear, so load 4 rows x 256 B")
    e("v_lshlrev_b32 v33, 10, v2"); e("v_lshl_add_u32 v33, v1, 4, v33")
    e("s_mov_b32 s40, s12"); e("s_mov_b32 s41, s13")
    e("s_lshl_b32 s62, s32, 17")
    e(f"s_mul_i32 s63, s54, {16*rot}"); e("s_mov_b32 s36, 128")
    e(f"s_mov_b32 s49, {256*n0 - 128}"); e(f"s_mov_b32 s79, {spin}")
    e("s_mov_b32 s60, 0"); e("s_mov_b32 s61, 0")
    lab("L_pl")
    e("ds_read_b32 v24, v41 offset:8"); e("s_waitcnt lgkmcnt(0)")
    e("v_readfirstlane_b32 s51, v24"); e("s_sub_i32 s79, s79, 1"); e("s_cmp_lt_i32 s79, 0"); e("s_cbranch_scc1 L_pt")
    e("s_cmp_ge_u32 s51, s49"); e("s_cbranch_scc1 L_pt")
    e("s_sleep 2"); e("s_branch L_pl")
    lab("L_pt")
    e("s_add_u32 s48, s51, 128"); e("s_lshr_b32 s48, s48, 8")
    e("s_lshl_b32 s49, s48, 8"); e("s_add_u32 s49, s49, 128"); e(f"s_min_u32 s49, s49, {76*256}")
    e("v_mov_b32 v12, s48")
    e("s_mov_b32 exec_hi, 1")
    e("buffer_load_sshort v13, v42, s[44:47], s52 offen nt")
    e("s_mov_b64 exec, 1")
    e("buffer_store_short v12, off, s[44:47], s53")
    if xk:
        c("column leaders rank the columns every few steps")
        e("s_cmp_lg_u32 s31, 0"); e("s_cbranch_scc1 L_pn")
        e(f"s_lshr_b32 s50, s48, {xp.bit_length()-1}"); e("s_cmp_eq_u32 s50, s60"); e("s_cbranch_scc1 L_pn")
        e("s_mov_b32 s60, s50"); e("s_mul_i32 s50, s50, 0x1100"); e(f"s_add_u32 s50, s50, {PROG + 0x10000:#x}")
        e("v_mov_b32 v14, 2")
        e("buffer_atomic_add v14, off, s[44:47], s50 sc0 sc1")
        e("s_waitcnt vmcnt(0)")
        e("v_readfirstlane_b32 s50, v14"); e("s_sub_i32 s50, s50, 7"); e(f"s_mul_i32 s50, s50, {xk}")
        if ls:
            e(f"s_ashr_i32 s51, s61, {ls}"); e("s_sub_i32 s61, s61, s51"); e("s_add_i32 s61, s61, s50"); e(f"s_ashr_i32 s50, s61, {xs}")
        e("v_mov_b32 v14, s50")
        e("buffer_store_short v14, off, s[44:47], s52 offset:64")
        lab("L_pn")
    e("s_mov_b32 exec_lo, -1")
    e("s_waitcnt vmcnt(1)")
    e("v_readlane_b32 s50, v13, 32")
    e("v_subrev_u32 v13, s48, v13")
    for d in range(-2, 3):
        e(f"v_cmp_le_i32 vcc, {d}, v13"); e("s_bcnt1_i32_b64 s51, vcc"); e("s_add_i32 s50, s50, s51")
    e("s_mov_b64 exec, -1")
    e(f"s_sub_i32 s50, s50, {e0}"); e("s_abs_i32 s51, s50"); e(f"s_lshr_b32 s51, s51, {gs}"); e("s_min_u32 s51, s51, 8")
    e("s_bfm_b32 s51, s51, 0")
    e("s_cmp_lt_i32 s50, 0"); e("s_cselect_b32 s50, 8, 0"); e("s_lshl_b32 s51, s51, s50")
    e("v_mov_b32 v12, s51"); e("ds_write_b32 v41, v12 offset:12")
    e(f"s_cmp_lt_u32 s48, {w0}"); e("s_cbranch_scc1 L_pl")
    e("s_cmp_lt_i32 s36, 0"); e("s_cbranch_scc1 L_pe")
    e("s_cmp_eq_u32 s36, 0"); e("s_cbranch_scc1 L_pw")
    c("wo_A: piece p = (row group p>>2, image p&3)")
    for k in range(wk):
        e("s_lshr_b32 s50, s63, 2"); e("s_and_b32 s51, s63, 3")
        e("s_lshl_b32 s37, s50, 10"); e("s_lshl_b32 s38, s51, 15"); e("s_add_u32 s37, s37, s38"); e(f"s_add_u32 m0, s37, {L_WO}")
        e("s_lshl_b32 s50, s50, 12"); e("s_lshl_b32 s51, s51, 8"); e("s_add_u32 s50, s50, s51"); e("s_add_u32 s50, s50, s62")
        e(f"buffer_load_dwordx4 v33, s[40:43], s50 offen {wpol} lds")
        e("s_add_u32 s63, s63, 1"); e("s_and_b32 s63, s63, 127")
    e(f"s_sub_u32 s36, s36, {wk}")
    e("s_branch L_pl")
    lab("L_pw")
    e("v_mov_b32 v12, 1"); e("s_waitcnt vmcnt(0)"); e("ds_write_b32 v41, v12 offset:24")
    e("ds_read_b32 v63, v41 offset:20")
    wo_tiles()
    e("s_mov_b32 s36, -1")
    lab("L_pe")
    e("s_cmp_lt_u32 s48, 75"); e("s_cbranch_scc0 L_hfinal")
    e("s_cmp_lt_i32 s79, 0"); e("s_cbranch_scc0 L_pl")
    e("s_branch L_hfinal")

    if drop:
        job = None
        for k, t in enumerate(L):
            if t.startswith("  ; job "): job = t[8]
            if t.startswith("  ; wo_B slice"): job = "b"
            if t.startswith("  ; wo_A: piece"): job = "a"
            if t.startswith("L_hfinal"): job = "f"
            if t.startswith("L_pacer"): job = None
            if job is not None and "buffer_" in t and "off," not in t:
                if job + ("s" if "store" in t else "l") in drop.split("."): L[k] = "  s_nop 0"
    L.append('.section .rodata,"a"'); L.append(".p2align 6")
    L.append(f".amdhsa_kernel {NAME}_kernel")
    for s in ("next_free_vgpr 256", "next_free_sgpr 96", "accum_offset 256", "group_segment_fixed_size 0",
              "kernarg_size 104", "user_sgpr_count 2", "user_sgpr_kernarg_segment_ptr 1",
              "system_sgpr_workgroup_id_x 1", "float_denorm_mode_32 3"):
        L.append("  .amdhsa_" + s)
    L.append(".end_amdhsa_kernel")
    return "\n".join(L) + "\n"

if __name__ == "__main__":
    import os
    names = []
    os.makedirs("k", exist_ok=True)
    for spec in sys.argv[1:]:
        p = {}
        for x in spec.split(","):
            if not x: continue
            k, v = x.split("=")
            p[k] = v.replace("+", " ") if k in ("wpol", "drop", "ms") else int(v)
            if k == "wpol" and v == "def": p[k] = ""
            if k == "ms" and v == "no": p[k] = ""
        fn = "k/k_" + (spec.replace(",", "_").replace("=", "").replace("+", "") or "base") + ".s"
        open(fn, "w").write(gen(**p))
        names.append("dev/" + fn)
    print(" ".join(names))
```

```python
import sys, math, struct
NAME = "concat_heads__mha_block_cached__gqa_block_cached__decode"

HEADER = """; Kernarg layout for this problem (104 bytes, ptrs only, base s[0:1]):
; One persistent workgroup per CU: waves 0-3 stream K/V (flash-decoding, online softmax), waves 4-7 do the
"""

def f2u(x): return struct.unpack("<I", struct.pack("<f", x))[0]

WSB  = 0x100000
EPOCH = WSB
QB   = WSB + 0x010000
PBO  = WSB + 0x040000
PBML = WSB + 0x0C0000
YB   = WSB + 0x0D0000
YBS  = 4096 + 256
YA   = WSB + 0x140000
YAS  = 16384 + 256
MLA  = WSB + 0x1E0000
MLS  = 2048 + 256
QPA  = WSB + 0x200000
QPB  = WSB + 0x240000
PROG = WSB + 0x280000
WSSZ = 0x400000
L_QA   = 0x0000
L_QB   = 0x0400
L_FLAG = 0x0800
L_SCR  = 0x0100
L_MA   = 0x0A00
L_RED  = 0x0A40
L_RECA = 0x0D00; RECA = 576
L_RECB = 0x1800; RECB = 2560
L_WO   = 0x4000
L_S    = L_WO + 0x20000
LDS_BYTES = L_S + 0x4000

def gen(inf=5, inf0=5, st1=448, st2=1792, wpol="", stamps=0, spin=1 << 20, slp=64, wsoff=0,
        T1=5, T2=7, TW=0, NS=4, T4=2, YBT=-1, qslp=0, wth=32, bth=16, rspin=1 << 20, gspin=1 << 20, drop="",
        hi=7, lo=4, pace=1, n0=1, e0=80, gs=2, xk=1, xp=4, ls=0, xs=0, wk=8, w0=1, rot=2, early=3, bs=1, es=1, ot2=16, e1=76, g2=2, hr=5, hx=0, wp=1, q1=24, db=0, tl=0, plain='', kvp='nt', diagw=0, mlr=4, rsl=0, rw=1, rd=0, rwb=1, rdb=0, pd=0, pn=1, wb0=2, wb2=0, wb3=2, ot=1, st2b=0):
    L = []
    def e(s): L.append("  " + s)
    def lab(s): L.append(s + ":")
    def c(s): L.append("  ; " + s)
    uid = [0]
    def u():
        uid[0] += 1; return uid[0]
    SC = f2u(128 ** -0.5 * math.log2(math.e))
    NA1 = 8
    DPP = "row_mask:0xf bank_mask:0xf"

    L.append(HEADER.rstrip("\n"))
    L.append(f"; @launch grid=(256,1,1) block=(512,1,1) lds={LDS_BYTES}")
    L.append('.amdgcn_target "amdgcn-amd-amdhsa--gfx950"')
    L.append(".text"); L.append(f".globl {NAME}_kernel"); L.append(".p2align 8")
    L.append(f".type {NAME}_kernel,@function"); L.append(f"{NAME}_kernel:")

    def stamp(k, lvl=1):
        if stamps >= lvl: e(f"s_memrealtime s[{64+2*k}:{65+2*k}]")
    def tag_consts():
        for k in range(4): e(f"s_mov_b32 s{56+k}, {0x07060500 + k:#x}")
        e("s_mov_b32 s76, 0x0c0c0400"); e("s_mov_b32 s77, 0x0c040100"); e("s_mov_b32 s78, 0x04020100")
        e("s_movk_i32 s94, 0xff00")
    def put_tag(r, vn):
        for k in range(4): e(f"v_perm_b32 v{r+k}, v{r+k}, v{vn}, s{56+k}")
    def get_tag(t, r, n=4):
        e(f"v_perm_b32 v{t}, v{r+1}, v{r}, s76"); e(f"v_perm_b32 v{t}, v{r+2}, v{t}, s77"); e(f"v_perm_b32 v{t}, v{r+3}, v{t}, s78")
        for k in range(n): e(f"v_and_b32 v{r+k}, s94, v{r+k}")

    e("s_cmp_ge_u32 s2, 256"); e("s_cbranch_scc1 L_end")
    e("s_load_dwordx16 s[4:19], s[0:1], 0")
    e("s_load_dwordx8 s[20:27], s[0:1], 64")
    e("s_load_dwordx2 s[28:29], s[0:1], 96")
    if stamps or diagw: e("s_memrealtime s[60:61]")
    e("v_lshrrev_b32 v1, 6, v0")
    e("s_and_b32 s30, s2, 7")
    e("v_readfirstlane_b32 s3, v1")
    e("s_lshr_b32 s31, s2, 3")
    e("v_and_b32 v0, 63, v0")
    e("s_lshr_b32 s33, s2, 6"); e("s_lshl2_add_u32 s32, s30, s33")
    e("s_and_b32 s35, s2, 32"); e("s_add_u32 s35, s35, s32")
    e("s_mov_b32 s42, 0x400000"); e("s_mov_b32 s43, 0x20000"); e("s_mov_b32 s39, s43")
    e("s_cmp_ge_u32 s3, 4"); e("s_cbranch_scc1 L_helper")

    RING = 128
    def issue(p):
        r = RING + 4 * p; j = p % 8
        if j == 4: e("s_xor_b32 s44, s44, 0x200000")
        e(f"buffer_load_dwordx4 v[{r}:{r+3}], v36, s[36:39], s44 offen offset:{(j%4)*1024} {kvp}")
        if j == 7:
            e("s_add_u32 s44, s44, s45"); e("s_and_b32 s44, s44, 0x1fffff")
    def set_src(ptr, unit, voff):
        e(f"s_add_u32 s36, s{ptr}, s{unit}"); e(f"s_addc_u32 s37, s{ptr+1}, 0")
        if voff: e(f"v_mov_b32 v36, v{voff}")
    c("K lane offset: key=(l>>2)&3, d=(l>>4)*32+(l&3)*8 ; V lane offset: l*16")
    e("v_lshlrev_b32 v3, 4, v0")
    e("v_and_b32 v2, 48, v3"); e("v_and_b32 v4, 12, v0"); e("v_lshl_add_u32 v2, v4, 6, v2")
    e("v_and_b32 v5, 48, v0"); e("v_lshl_add_u32 v36, v5, 2, v2")
    e("s_and_b32 s44, s31, 3"); e("s_lshl2_add_u32 s44, s44, s3")
    e(f"s_mul_i32 s50, s35, {st1//4}"); e("s_add_u32 s44, s44, s50"); e("s_lshl_b32 s44, s44, 23"); e("s_lshr_b32 s44, s44, 11")
    e("s_mov_b32 s38, s42"); e("s_lshl_b32 s40, s35, 22"); e("s_mov_b32 s49, s44")
    e("s_waitcnt lgkmcnt(0)")
    set_src(6, 40, 0)
    assert inf0 <= 7
    for p in range(inf0): issue(p)
    e("s_barrier")
    e("s_mov_b32 s45, 0x10000"); e("v_mov_b32 v2, v36")
    c("score buffer addresses: v37 write / v38 read (one head), v39 both (four heads)")
    e("s_lshl_b32 s50, s3, 12"); e(f"s_add_u32 s95, s50, {L_S}")
    e("v_add_u32 v38, s95, v5"); e("v_add_u32 v37, v38, v4")
    e("v_and_b32 v39, 60, v0"); e("v_lshl_add_u32 v39, v39, 2, s95")
    c("constants while the first loads fly")
    e("v_and_b32 v6, 1, v0"); e("v_lshlrev_b32 v6, 4, v6"); e("v_mov_b32 v7, 0xffff"); e("v_lshlrev_b32 v6, v6, v7")
    e("v_and_b32 v7, 2, v0"); e("v_cmp_eq_u32 vcc, 0, v7")
    e(f"s_mov_b32 s48, {SC:#x}")
    e("v_mov_b32 v8, 0xff800000")
    e("v_cndmask_b32 v4, 0, v6, vcc")
    e("v_xor_b32 v5, v4, v6")
    e("v_mov_b32 v9, v8"); e("v_mov_b32 v10, 0")
    e("v_mov_b32 v11, v8"); e("v_mov_b32 v13, 0")
    for r in range(40, 56): e(f"v_mov_b32 v{r}, 0")
    c("LDS address of the q operand: (g*32 + (l&3)*8)*2")
    e("v_and_b32 v6, 0xff, v2")
    e("v_bfe_u32 v7, v0, 2, 2")
    for s in range(4): e(f"v_cmp_eq_u32 s[{84+2*s}:{85+2*s}], {s}, v7")
    tag_consts()
    e(f"v_mov_b32 v14, {L_FLAG}"); e("v_mov_b32 v15, 1"); e("v_mov_b32 v90, 0"); e("v_mov_b32 v91, 0xffffff40")
    e("s_mov_b32 s33, 0"); e("s_movk_i32 s34, -256")
    e("s_mov_b32 s46, 0")
    e("s_mov_b32 s92, 0")
    e(f"s_mov_b32 s50, {spin}")
    for p in range(inf0, 32):
        e(f"s_waitcnt vmcnt({inf0-1})"); issue(p)
    stamp(0)
    lab("L_wqa")
    e("ds_read_b64 v[108:109], v14 offset:16"); e(f"ds_read_b128 v[104:107], v6 offset:{L_QA}")
    e("s_waitcnt lgkmcnt(0)")
    e("v_readfirstlane_b32 s51, v108"); e("v_readfirstlane_b32 s55, v109"); e("s_sub_u32 s50, s50, 1")
    e("s_cbranch_scc1 L_wqa_done")
    e("s_cmp_eq_u32 s51, 0"); e("s_cbranch_scc1 L_wqa")
    lab("L_wqa_done")
    for s in range(4):
        for k in range(4): e(f"v_cndmask_b32 v{16+4*s+k}, 0, v{104+k}, s[{84+2*s}:{85+2*s}]")
    stamp(1)

    def wi(p, on, mha=False):
        if on:
            if pace:
                n = u(); j = p % 8
                if mha and p >= 32 - ot:
                    e("s_cmp_eq_u32 s92, 65"); e(f"s_cbranch_scc1 L_v{n}")
                elif mha and p >= 32 - ot2:
                    e(f"s_bitcmp1_b32 s93, {16+31-p}"); e(f"s_cbranch_scc1 L_v{n}")
                e(f"s_bitcmp1_b32 s33, {j}"); e(f"s_cbranch_scc1 L_t{n}")
                e(f"s_bitcmp0_b32 s33, {8+j}"); e(f"s_cbranch_scc1 L_u{n}")
                e(f"s_waitcnt vmcnt({lo-1})")
                lab(f"L_u{n}")
                e(f"s_waitcnt vmcnt({inf-1})")
                lab(f"L_t{n}")
                e(f"s_waitcnt vmcnt({hi-1})")
                if mha and p >= 32 - max(ot, ot2): lab(f"L_v{n}")
            else:
                e(f"s_waitcnt vmcnt({inf-1})")
            issue(p)
    def need(p, on):
        if not on and p >= 32 - max(inf, hi) - max(ot, ot2): e(f"s_waitcnt vmcnt({31-p})")
    def diag(t, d):
        e(f"v_mov_b32_dpp v{t}, v{d} quad_perm:[0,0,0,0] {DPP}")
        for k in range(1, 4):
            e(f"v_add_f32_dpp v{t}, v{d+k}, v{t} quad_perm:[{k},{k},{k},{k}] {DPP}")
    def xrow_max(v, t):
        e(f"v_mov_b32 v{t}, v{v}"); e("s_nop 1"); e(f"v_permlane16_swap_b32 v{v}, v{t}"); e("s_nop 1")
        e(f"v_max_f32 v{v}, v{v}, v{t}")
        e(f"v_mov_b32 v{t}, v{v}"); e("s_nop 1"); e(f"v_permlane32_swap_b32 v{v}, v{t}"); e("s_nop 1")
        e(f"v_max_f32 v{v}, v{v}, v{t}")
    def pick_mask(b0, mha=False):
        if pace:
            c("queue depth for this step: bits 0-7 deeper, bits 8-15 shallower; late waves of the workgroup go a bit deeper")
            e("s_waitcnt lgkmcnt(0)"); e("v_readfirstlane_b32 s33, v90"); e("v_readfirstlane_b32 s50, v91")
            e("ds_read_b32 v90, v14 offset:12"); e("ds_add_rtn_u32 v91, v14, v15 offset:8")
            e("s_sub_i32 s50, s50, s34"); e("s_addk_i32 s34, 256")
            if mha and b0 + 8 > 32 - ot2:
                e("s_cmp_eq_u32 s92, 65"); e("s_cselect_b32 s93, s33, 0")
            if wb0:
                e("s_cmp_lt_i32 s50, 64"); e(f"s_cselect_b32 s51, {((1 << wb0) - 1) << 8:#x}, 0"); e("s_or_b32 s33, s33, s51")
            if wb2:
                e("s_cmp_ge_i32 s50, 128"); e(f"s_cselect_b32 s51, {(1 << wb2) - 1:#x}, 0"); e("s_or_b32 s33, s33, s51")
            if wb3:
                e("s_cmp_ge_i32 s50, 192"); e(f"s_cselect_b32 s51, {(1 << wb3) - 1:#x}, 0"); e("s_or_b32 s33, s33, s51")
        else:
            e("ds_add_u32 v14, v15 offset:8")
    def k_iter(gqa):
        for st in range(8):
            if st % 2 == 0: pick_mask(4 * st)
            for j in range(4):
                r = RING + 4 * (4 * st + j)
                if gqa: e(f"v_mfma_f32_16x16x32_bf16 v[{56+4*j}:{59+4*j}], v[{r}:{r+3}], v[32:35], 0")
                else:   e(f"v_mfma_f32_16x16x32_bf16 v[56:59], v[{r}:{r+3}], v[{16+4*j}:{19+4*j}], {'v[56:59]' if j else '0'}")
                wi(4 * st + j, True)
            if gqa:
                for j in range(4): diag(72 + j, 56 + 4 * j)
                e(f"ds_write_b128 v1, v[72:75] offset:{256*st}")
                e("v_max3_f32 v11, v11, v72, v73"); e("v_max3_f32 v11, v11, v74, v75")
            else:
                e(f"s_nop {3 if pace else 5}")
                diag(72, 56)
                e(f"ds_write_b32 v1, v72 offset:{64*st}")
                e("v_max_f32 v8, v8, v72")
        e(f"v_add_u32 v1, {2048 if gqa else 512}, v1")
    def probs(sr, a, Mc, l):
        x = [f"v_fma_f32 v{sr+j}, v{sr+j}, s48, -v{Mc}" for j in range(4)]
        x += [f"v_exp_f32 v{sr+j}, v{sr+j}" for j in range(4)]
        x += [f"v_cvt_pk_bf16_f32 v{a+2*j+1}, v{sr+j}, v{sr+j}" for j in range(4)]
        for j in range(4): x += [f"v_and_b32 v{a+2*j}, v{a+2*j+1}, v4", f"v_and_b32 v{a+2*j+1}, v{a+2*j+1}, v5"]
        x += [f"v_add_f32 v{l}, v{l}, v{sr+j}" for j in range(4)]
        return x
    def pv_mfma(O, a, p, hf):
        r = RING + 4 * p
        e(f"v_mfma_f32_16x16x16_bf16 v[{O+4*hf}:{O+4*hf+3}], v[{a}:{a+1}], v[{r+2*hf}:{r+2*hf+1}], v[{O+4*hf}:{O+4*hf+3}]")
    def v_iter(gqa):
        O, Mc, l, stride = (48, 12, 13, 256) if gqa else (40, 9, 10, 64)
        for st in range(8):
            if st % 2 == 0: pick_mask(4 * st, not gqa)
            if st % 2 or not pace: e("s_waitcnt lgkmcnt(0)")
            nx = 76 + 4 * ((st + 1) % 2)
            e(f"ds_read_b128 v[{nx}:{nx+3}], v1 offset:{stride*(st+1)}")
            for x in probs(76 + 4 * (st % 2), 96, Mc, l): e(x)
            for j in range(4):
                pv_mfma(O, 96 + 2 * j, 4 * st + j, 0); pv_mfma(O, 96 + 2 * j, 4 * st + j, 1)
                wi(4 * st + j, True, not gqa)
        e(f"v_add_u32 v1, {8*stride}, v1")

    lab("L_ablock")
    c("---- branch A, one block of 512 keys per wave: all K first")
    e("s_mov_b32 s47, 4"); e("v_mov_b32 v1, v37")
    lab("L_km")
    e("s_cmp_lg_u32 s47, 1"); e("s_cbranch_scc1 L_km_go")
    set_src(8, 40, 3); e("s_mov_b32 s44, s49")
    lab("L_km_go")
    k_iter(False)
    e("s_sub_u32 s47, s47, 1"); e("s_cmp_lg_u32 s47, 0"); e("s_cbranch_scc1 L_km")
    c("v8 = running max over all keys so far; rescale what the previous block left")
    e("ds_read_b128 v[76:79], v38"); e("v_mov_b32 v1, v38")
    e(f"v_max_f32_dpp v8, v8, v8 row_ror:4 {DPP}"); e("s_nop 1")
    e(f"v_max_f32_dpp v8, v8, v8 row_ror:8 {DPP}")
    xrow_max(8, 89)
    e("v_mul_f32 v89, s48, v8"); e("v_sub_f32 v88, v9, v89"); e("v_exp_f32 v88, v88")
    e("v_mov_b32 v9, v89"); e("v_mul_f32 v10, v10, v88")
    for k in range(8): e(f"v_mul_f32 v{40+k}, v{40+k}, v88")
    e("s_lshr_b32 s47, s46, 6"); e("s_sub_u32 s47, 4, s47")
    lab("L_vm")
    e("s_add_u32 s92, s47, s46")
    e("s_cmp_lg_u32 s92, 1"); e("s_cbranch_scc1 L_vm_go")
    c("issue side moves on to K of the B unit")
    e("s_mov_b32 s49, s44")
    e("s_lshr_b32 s51, s31, 4"); e("s_lshl3_add_u32 s51, s51, s30")
    e("s_lshl_b32 s41, s51, 22")
    set_src(16, 41, 2)
    e("s_and_b32 s44, s31, 15"); e("s_lshl2_add_u32 s44, s44, s3")
    if st2b:
        e("s_lshr_b32 s50, s31, 4"); e(f"s_mul_i32 s50, s50, {st2b//4}"); e("s_add_u32 s44, s44, s50")
    e(f"s_mul_i32 s50, s51, {st2//4}"); e("s_add_u32 s44, s44, s50"); e("s_lshl_b32 s44, s44, 23"); e("s_lshr_b32 s44, s44, 11")
    e("s_mov_b32 s45, 0x40000")
    lab("L_vm_go")
    v_iter(False)
    e("s_sub_u32 s47, s47, 1"); e("s_cmp_lg_u32 s47, 0"); e("s_cbranch_scc1 L_vm")
    e("s_cmp_eq_u32 s46, 0"); e("s_cbranch_scc1 L_bseg")
    stamp(4)
    c("last 8 steps: nothing left to issue; operands of step s+1 are built under the MFMAs of step s")
    for st in range(1, 5): e(f"ds_read_b128 v[{52+4*st}:{55+4*st}], v1 offset:{64*st}")
    e(f"s_mul_i32 s50, s3, {RECA}"); e(f"s_add_u32 s50, s50, {L_RECA}")
    e("v_add_u32 v6, s50, v3"); e("v_lshl_add_u32 v7, v0, 2, s50")
    e("s_lshl_b32 s50, s3, 2"); e("v_mov_b32 v14, s50")
    e(f"s_add_u32 s36, s28, {wsoff<<20:#x}"); e("s_addc_u32 s37, s29, 0")
    e("s_mov_b32 s40, s24"); e("s_mov_b32 s41, s25"); e("s_mov_b32 s42, 4096")
    for st in range(5, 8): e(f"ds_read_b128 v[{92+4*st}:{95+4*st}], v1 offset:{64*st}")
    e(f"ds_write_b32 v14, v9 offset:{L_MA}")
    e("s_waitcnt lgkmcnt(8)")
    sreg = [76, 56, 60, 64, 68, 112, 116, 120]
    for x in probs(76, 96, 9, 10): e(x)
    e("s_waitcnt lgkmcnt(0)")
    for st in range(8):
        fill = probs(sreg[st + 1], 96 + 8 * ((st + 1) % 2), 9, 10) if st < 7 else []
        if st == 7: e("ds_write_b32 v7, v10 offset:256")
        for j in range(4):
            need(4 * st + j, False)
            for hf in range(2):
                pv_mfma(40, 96 + 8 * (st % 2) + 2 * j, 4 * st + j, hf)
                for _ in range(3):
                    if fill: e(fill.pop(0))
    c("A partial of this wave -> LDS")
    e("s_nop 5")
    e("s_mov_b64 exec, 0xffff")
    for k in range(4): e(f"v_cvt_pk_bf16_f32 v{40+k}, v{40+2*k}, v{41+2*k}")
    e("ds_write_b128 v6, v[40:43]")
    e("s_mov_b64 exec, -1")
    e("s_waitcnt lgkmcnt(0)")
    stamp(5)
    e("s_barrier")
    stamp(0, 2); stamp(1, 2); stamp(2, 2); stamp(3, 2)
    e("s_cmp_lg_u32 s3, 0"); e("s_cbranch_scc1 L_red")
    c("wave 0 publishes (M, L) of the workgroup: lane = (w, row)")
    e("v_and_b32 v6, 12, v0"); e("v_and_b32 v7, 3, v0"); e("v_lshlrev_b32 v7, 6, v7")
    e(f"s_movk_i32 s50, {RECA//4}"); e("v_mad_u32_u24 v7, v6, s50, v7")
    e(f"ds_read_b32 v16, v6 offset:{L_MA}"); e(f"ds_read_b32 v17, v7 offset:{L_RECA+256}")
    e("s_and_b32 s51, s31, 3"); e("s_lshl2_add_u32 s50, s32, s51"); e("s_lshl_b32 s50, s50, 4")
    e("s_bfe_u32 s51, s2, 0x10005"); e(f"s_mul_i32 s51, s51, {MLS*mlr}"); e("s_add_u32 s50, s50, s51"); e(f"s_add_u32 s50, s50, {MLA:#x}")
    e(f"v_mul_u32_u24 v18, {MLS}, v0")
    e("v_mov_b32 v19, s55"); e("v_lshrrev_b32 v22, 16, v19"); e("v_lshrrev_b32 v23, 24, v19")
    e("s_waitcnt lgkmcnt(0)")
    e(f"v_max_f32_dpp v20, v16, v16 row_ror:4 {DPP}"); e("s_nop 1")
    e(f"v_max_f32_dpp v20, v20, v20 row_ror:8 {DPP}")
    e("v_and_b32 v20, s94, v20")
    e("v_sub_f32 v16, v16, v20"); e("v_exp_f32 v16, v16"); e("v_perm_b32 v20, v20, v19, s56"); e("v_mul_f32 v21, v16, v17"); e("s_nop 1")
    for d in ("quad_perm:[1,0,3,2]", "quad_perm:[2,3,0,1]", "row_ror:4", "row_ror:8"):
        e(f"v_add_f32_dpp v21, v21, v21 {d} {DPP}")
        if d != "row_ror:8": e("s_nop 1")
    e("v_perm_b32 v21, v21, v19, s57")
    e(f"s_mov_b64 exec, {(1 << mlr) - 1:#x}")
    e("buffer_store_dwordx4 v[20:23], v18, s[36:39], s50 offen sc1")
    e("s_mov_b64 exec, -1")
    lab("L_red")
    e("s_cmp_ge_u32 s2, 64"); e("s_cbranch_scc1 L_sdone")
    c("reducers: b = (id>>4)&1, one 128-byte line of every contribution; lane = (row, granule)")
    e("v_lshrrev_b32 v6, 3, v0"); e("v_and_b32 v14, 7, v0")
    e("v_bfe_u32 v8, v0, 4, 1"); e("v_lshrrev_b32 v9, 5, v0"); e("v_lshl_add_u32 v8, v8, 1, v9")
    e("v_lshlrev_b32 v10, 3, v0")
    e("s_bfe_u32 s48, s2, 0x10004"); e("s_bfe_u32 s49, s2, 0x20002")
    e("s_lshl_b32 s44, s48, 11"); e("s_lshl_b32 s45, s49, 8"); e("s_add_u32 s44, s44, s45")
    e(f"s_lshl_b32 s54, s3, 7")
    e(f"s_mov_b32 s50, {rspin}")
    e("s_cmp_ge_u32 s2, 32"); e("s_cbranch_scc1 L_redb")
    c("branch A: wave = 8 heads x 4 splits; column = quarter*128 + half*64 + k*16 + (id&1)*8 + granule")
    e("v_and_b32 v11, 3, v0")
    e("v_lshlrev_b32 v7, 6, v6"); e("v_lshl_add_u32 v7, v11, 4, v7")
    e(f"s_mul_i32 s52, s2, {YAS}"); e("s_lshl_b32 s51, s3, 10"); e("s_add_u32 s52, s52, s51"); e(f"s_add_u32 s52, s52, {YA:#x}")
    for q in range(1, 4): e(f"s_add_u32 s{[0,53,62,63][q]}, s52, {4096*q}")
    e(f"s_and_b32 s51, s2, {mlr-1}"); e(f"s_mul_i32 s45, s48, {mlr}"); e("s_add_u32 s51, s51, s45"); e(f"s_mul_i32 s51, s51, {MLS}")
    e("s_lshl_b32 s45, s3, 9"); e("s_add_u32 s51, s51, s45"); e(f"s_add_u32 s51, s51, {MLA:#x}")
    e("v_lshl_add_u32 v8, v8, 3, v14"); e("v_lshl_add_u32 v8, v8, 2, s54")
    e("v_lshrrev_b32 v9, 2, v0"); e("v_lshlrev_b32 v9, 5, v9"); e("v_lshl_add_u32 v9, v11, 2, v9")
    e("s_and_b32 s45, s2, 2"); e("s_lshl_b32 s45, s45, 6"); e("s_add_u32 s44, s44, s45")
    e("s_and_b32 s45, s2, 1"); e("s_lshl4_add_u32 s44, s45, s44")
    if rw: e("s_barrier")
    if rd: e(f"s_sleep {rd}")
    def ra_loads():
        e("buffer_load_dwordx4 v[40:43], v7, s[36:39], s51 offen sc1")
        for q in range(4): e(f"buffer_load_dwordx4 v[{24+4*q}:{27+4*q}], v3, s[36:39], s{[52,53,62,63][q]} offen sc1")
    def ra_check(W):
        e("s_mov_b64 s[46:47], exec")
        e(f"s_waitcnt vmcnt({W+4})"); get_tag(16, 40, 0)
        for k in range(2): e(f"v_and_b32 v{80+k}, s94, v{40+k}")
        for q in range(4):
            e(f"s_waitcnt vmcnt({W+3-q})"); get_tag(17 + q, 24 + 4 * q, 0)
            for k in range(4): e(f"v_and_b32 v{64+4*q+k}, s94, v{24+4*q+k}")
        for q in range(5): e(f"v_cmpx_eq_u32 vcc, s55, v{16+q}")
    if pd:
        ra_loads(); ra_check(0)
        e("s_andn2_b64 exec, s[46:47], vcc"); e("s_cbranch_scc0 L_rdone")
        for _ in range(pn):
            ra_loads(); e(f"s_sleep {pd}")
    lab("L_rpoll")
    ra_loads(); ra_check(5 * pn if pd else 0)
    e("s_sub_u32 s50, s50, 1"); e("s_cbranch_scc1 L_rdone")
    if rsl:
        e("s_andn2_b64 exec, s[46:47], vcc"); e("s_cbranch_scc0 L_rdone"); e(f"s_sleep {rsl}"); e("s_branch L_rpoll")
    else:
        e("s_andn2_b64 exec, s[46:47], vcc"); e("s_cbranch_scc1 L_rpoll")
    lab("L_rdone")
    stamp(1, 2)
    if stamps >= 3:
        e(f"s_sub_u32 s72, {rspin}, s50"); e("s_mul_i32 s72, s72, 100"); e("s_add_u32 s72, s72, s60"); e("s_addc_u32 s73, s61, 0")
    e("s_mov_b64 exec, -1"); e("s_nop 1")
    e(f"v_max_f32_dpp v15, v80, v80 quad_perm:[1,0,3,2] {DPP}"); e("s_nop 1")
    e(f"v_max_f32_dpp v15, v15, v15 quad_perm:[2,3,0,1] {DPP}")
    e("v_sub_f32 v16, v80, v15"); e("v_exp_f32 v16, v16"); e("s_nop 0"); e("v_mul_f32 v15, v16, v81")
    e(f"v_mul_f32_dpp v56, v16, v64 quad_perm:[0,0,0,0] {DPP}"); e(f"v_mul_f32_dpp v57, v16, v65 quad_perm:[0,0,0,0] {DPP}")
    e(f"v_add_f32_dpp v15, v15, v15 quad_perm:[1,0,3,2] {DPP}")
    e(f"v_mul_f32_dpp v58, v16, v66 quad_perm:[0,0,0,0] {DPP}"); e(f"v_mul_f32_dpp v59, v16, v67 quad_perm:[0,0,0,0] {DPP}")
    e(f"v_add_f32_dpp v15, v15, v15 quad_perm:[2,3,0,1] {DPP}")
    e("v_rcp_f32 v15, v15")
    for q in range(1, 4):
        for k in range(4): e(f"v_fmac_f32_dpp v{56+k}, v16, v{64+4*q+k} quad_perm:[{q},{q},{q},{q}] {DPP}")
    for k in range(4): e(f"v_mul_f32 v{56+k}, v15, v{56+k}")
    lab("L_rsum")
    c("sum v[56:59] over lane bits 5,4,3: row r ends with component [0,2,1,3][r]")
    e("s_nop 0")
    e("v_permlane32_swap_b32 v56, v57"); e("v_permlane32_swap_b32 v58, v59")
    e("v_add_f32 v56, v56, v57"); e("v_add_f32 v58, v58, v59"); e("s_nop 1")
    e("v_permlane16_swap_b32 v56, v58")
    e("v_add_f32 v56, v56, v58"); e("s_nop 1")
    e(f"v_add_f32_dpp v56, v56, v56 row_ror:8 {DPP}")
    e(f"ds_write_b32 v8, v56 offset:{L_RED}")
    e("s_waitcnt lgkmcnt(0)")
    e("s_barrier")
    stamp(2, 2)
    e("s_cmp_lg_u32 s3, 0"); e("s_cbranch_scc1 L_sdone")
    e("s_mov_b64 exec, 0xffff")
    for w in range(4): e(f"ds_read_b64 v[{60+2*w}:{61+2*w}], v10 offset:{L_RED + w*128}")
    e("s_waitcnt lgkmcnt(2)")
    e("v_add_f32 v60, v60, v62"); e("v_add_f32 v61, v61, v63")
    e("s_waitcnt lgkmcnt(0)")
    e("v_add_f32 v64, v64, v66"); e("v_add_f32 v65, v65, v67")
    e("v_add_f32 v60, v60, v64"); e("v_add_f32 v61, v61, v65")
    e("v_cvt_pk_bf16_f32 v60, v60, v61")
    e("buffer_store_dword v60, v9, s[40:43], s44 offen")
    stamp(3, 2)
    c("workgroup 32 has seen data that depends on every workgroup, so all have read the old tag: leave the new one")
    e("s_cmp_lg_u32 s2, 32"); e("s_cbranch_scc1 L_sdone")
    e(f"s_mov_b32 s50, {EPOCH:#x}"); e("v_mov_b32 v61, s55")
    e("s_mov_b64 exec, 1"); e("buffer_store_dword v61, off, s[36:39], s50 sc1")
    lab("L_sdone")
    if diagw:
        lab("L_diag")
        e("s_memrealtime s[62:63]"); e("s_waitcnt lgkmcnt(0)")
        e("s_sub_u32 s62, s62, s60"); e(f"s_cmp_lt_u32 s62, {diagw*100}"); e("s_cbranch_scc1 L_diag")
    if stamps:
        e("s_cmp_lg_u32 s3, 0"); e("s_cbranch_scc1 L_end")
        e("s_waitcnt vmcnt(0)")
        e("s_memrealtime s[62:63]"); e("s_getreg_b32 s50, hwreg(HW_REG_XCC_ID)"); e("s_waitcnt lgkmcnt(0)")
        e("s_mov_b64 exec, 1"); e("s_mov_b32 s36, s28"); e("s_mov_b32 s37, s29")
        for k in range(4): e(f"v_mov_b32 v{16+k}, s{60+k}")
        e("s_lshl_b32 s51, s2, 4"); e("buffer_store_dwordx4 v[16:19], off, s[36:39], s51")
        e("v_mov_b32 v20, s50"); e("s_lshl_b32 s51, s2, 2"); e("s_add_u32 s51, s51, 0x10000")
        e("buffer_store_dword v20, off, s[36:39], s51")
        for k in range(12): e(f"v_mov_b32 v{24+k}, s{64+k}")
        e("s_lshl_b32 s51, s2, 7"); e("s_add_u32 s51, s51, 0x20000")
        for k in range(3): e(f"buffer_store_dwordx4 v[{24+4*k}:{27+4*k}], off, s[36:39], s51 offset:{16*k}")
    e("s_endpgm")
    lab("L_redb")
    c("branch B: wave = 8 heads; column = 512 + quarter*128 + ((id&1)*8 + granule)*8 + half*4 + k")
    e(f"s_mul_i32 s52, s2, {YBS}"); e("s_lshl_b32 s51, s3, 10"); e("s_add_u32 s52, s52, s51"); e(f"s_add_u32 s52, s52, {YB - 32*YBS:#x}")
    e("v_lshl_add_u32 v8, v14, 2, v8"); e("v_lshl_add_u32 v8, v8, 2, s54")
    e("v_lshrrev_b32 v9, 1, v0"); e("v_lshlrev_b32 v9, 4, v9"); e("v_and_b32 v11, 1, v0"); e("v_lshl_add_u32 v9, v11, 2, v9")
    e("s_and_b32 s45, s2, 1"); e("s_lshl_b32 s45, s45, 7"); e("s_add_u32 s44, s44, s45")
    e("s_and_b32 s45, s2, 2"); e("s_lshl2_add_u32 s44, s45, s44"); e("s_add_u32 s44, s44, 1024")
    if rwb: e("s_barrier")
    if rdb: e(f"s_sleep {rdb}")
    lab("L_bpoll")
    e("buffer_load_dwordx4 v[56:59], v3, s[36:39], s52 offen sc1")
    e("s_waitcnt vmcnt(0)"); get_tag(16, 56)
    e("v_cmp_ne_u32 vcc, s55, v16")
    e("s_sub_u32 s50, s50, 1"); e("s_cbranch_scc1 L_bdone")
    e("s_and_b64 exec, exec, vcc"); e("s_cbranch_scc1 L_bpoll")
    lab("L_bdone")
    stamp(1, 2)
    e("s_mov_b64 exec, -1")
    e("s_branch L_rsum")

    lab("L_bseg")
    stamp(2)
    e(f"s_mov_b32 s50, {spin}")
    lab("L_wqb")
    e("ds_read_b32 v7, v14"); e(f"ds_read_b128 v[32:35], v2 offset:{L_QB}")
    e("s_waitcnt lgkmcnt(0)")
    e("v_readfirstlane_b32 s51, v7"); e("s_sub_u32 s50, s50, 1")
    e("s_cbranch_scc1 L_wqb_done")
    e("s_cmp_eq_u32 s51, 0"); e("s_cbranch_scc1 L_wqb")
    lab("L_wqb_done")
    e("s_mov_b32 s47, 2"); e("v_mov_b32 v1, v39")
    lab("L_kg")
    e("s_cmp_lg_u32 s47, 1"); e("s_cbranch_scc1 L_kg_go")
    set_src(18, 41, 3)
    lab("L_kg_go")
    k_iter(True)
    e("s_sub_u32 s47, s47, 1"); e("s_cmp_lg_u32 s47, 0"); e("s_cbranch_scc1 L_kg")
    e("ds_read_b128 v[76:79], v39"); e("v_mov_b32 v1, v39")
    xrow_max(11, 89)
    e("v_mul_f32 v12, s48, v11")
    e("s_mov_b32 s47, 2")
    lab("L_vg")
    e("s_cmp_lg_u32 s47, 1"); e("s_cbranch_scc1 L_vg_go")
    set_src(6, 40, 2); e("s_mov_b32 s44, s49"); e("s_mov_b32 s45, 0x10000")
    lab("L_vg_go")
    v_iter(True)
    e("s_sub_u32 s47, s47, 1"); e("s_cmp_lg_u32 s47, 0"); e("s_cbranch_scc1 L_vg")
    c("hand the B partial of this wave to the agent through LDS")
    e(f"s_mul_i32 s50, s3, {RECB}"); e(f"s_add_u32 s50, s50, {L_RECB}")
    e("v_lshl_add_u32 v6, v0, 5, s50"); e("v_lshl_add_u32 v7, v0, 2, s50")
    e("ds_write_b128 v6, v[48:51]"); e("ds_write_b128 v6, v[52:55] offset:16")
    e("ds_write_b32 v7, v12 offset:2048"); e("ds_write_b32 v7, v13 offset:2304")
    e("ds_add_u32 v14, v15 offset:4")
    e("s_mov_b32 s46, 64")
    stamp(3)
    e("s_branch L_ablock")

    lab("L_helper")
    e(f"v_mov_b32 v41, {L_FLAG}")
    for k in range(4): e(f"v_mov_b32 v{28+k}, 0")
    e("ds_write_b128 v41, v[28:31]"); e("ds_write_b128 v41, v[28:31] offset:16")
    e("s_sub_u32 s33, s3, 4")
    e("s_and_b32 s54, s31, 7")
    e("v_and_b32 v1, 15, v0")
    e("v_lshrrev_b32 v2, 4, v0")
    e("v_bfe_u32 v34, v0, 3, 1")
    e("v_lshlrev_b32 v3, 17, v2"); e("v_lshl_add_u32 v3, v1, 4, v3")
    e("v_lshlrev_b32 v35, 10, v34"); e("v_lshl_add_u32 v35, v2, 5, v35")
    e("s_lshl_b32 s50, s32, 8"); e("s_lshl_b32 s51, s54, 19"); e("s_add_u32 s50, s50, s51"); e("s_lshl_b32 s51, s54, 7")
    e("s_movk_i32 s38, 2048")
    e("s_waitcnt lgkmcnt(0)")
    e("s_mov_b32 s36, s4"); e("s_mov_b32 s37, s5"); e("s_mov_b32 s40, s10"); e("s_mov_b32 s41, s11")
    e("s_barrier")
    e("s_cmp_lg_u32 s33, 0"); e("s_cbranch_scc1 L_hc")
    c("helper 0: 64 of the 512 rows of the q projection of head h (branch A)")
    for k in range(2): e(f"buffer_load_dwordx4 v[{8+4*k}:{11+4*k}], v35, s[36:39], s51 offen offset:{16*k}")
    for t in range(16):
        e(f"buffer_load_dwordx4 v[{64+4*t}:{67+4*t}], v3, s[40:43], s50 offen nt")
        if t < 15: e("s_addk_i32 s50, 0x2000")
    e(f"s_add_u32 s52, s28, {(wsoff<<20) + EPOCH:#x}"); e("s_addc_u32 s53, s29, 0")
    e("s_load_dword s55, s[52:53], 0")
    lab("L_hc")
    c("diagonal masks m_i: e=l&7 ; (e>>1==i) ? half(e&1) : 0")
    e("v_and_b32 v24, 1, v0"); e("v_lshlrev_b32 v24, 4, v24"); e("v_mov_b32 v25, 0xffff"); e("v_lshlrev_b32 v24, v24, v25")
    e("v_bfe_u32 v25, v0, 1, 2")
    for i in range(4):
        e(f"v_cmp_eq_u32 vcc, {i}, v25"); e("s_nop 1"); e(f"v_cndmask_b32 v{4+i}, 0, v24, vcc")
    e("v_lshlrev_b32 v40, 4, v0"); e("v_mov_b32 v60, 0")
    e(f"s_add_u32 s44, s28, {wsoff<<20:#x}"); e("s_addc_u32 s45, s29, 0"); e("s_mov_b32 s46, s42"); e("s_mov_b32 s47, s43")
    tag_consts()
    def lds_wait(off, val, sl=16):
        n = u()
        e(f"s_mov_b32 s50, {spin}")
        lab(f"L_p{n}")
        e(f"ds_read_b32 v24, v41 offset:{off}"); e("s_waitcnt lgkmcnt(0)")
        e("v_readfirstlane_b32 s51, v24"); e("s_sub_u32 s50, s50, 1"); e(f"s_cbranch_scc1 L_pd{n}")
        e(f"s_cmp_ge_u32 s51, {val}"); e(f"s_cbranch_scc1 L_pd{n}")
        e(f"s_sleep {sl}"); e(f"s_branch L_p{n}")
        lab(f"L_pd{n}")
    e("s_cmp_lg_u32 s33, 0"); e("s_cbranch_scc1 L_hb")
    e("s_waitcnt lgkmcnt(0)")
    e("s_add_u32 s55, s55, 0x04030201"); e("v_mov_b32 v63, s55"); e("v_mov_b32 v62, 1")
    def rows_mfma(waits, n=16, acc=False):
        e("s_mov_b32 s52, 0x01000100"); e("s_mov_b32 s53, 0x03020302")
        if waits: e("s_waitcnt vmcnt(16)")
        for s_ in range(n):
            e(f"v_perm_b32 v32, v{8 + s_//2}, v{8 + s_//2}, s{52 + s_%2}")
            for i in range(4): e(f"v_and_b32 v{24+i}, v32, v{4+i}")
            if waits: e(f"s_waitcnt vmcnt({15-s_})"); e("s_nop 0")
            else: e("s_nop 1")
            e(f"v_mfma_f32_16x16x32_bf16 v[56:59], v[24:27], v[{64+4*s_}:{67+4*s_}], {'v[56:59]' if s_ or acc else '0'}")
    rows_mfma(True)
    e("s_lshl_b32 s50, s32, 13"); e(f"s_add_u32 s50, s50, {QPA:#x}")
    e("s_lshl_b32 s51, s54, 10"); e("s_add_u32 s51, s51, s50")
    e("s_nop 3")
    put_tag(56, 63)
    e("buffer_store_dwordx4 v[56:59], v40, s[44:47], s51 offen sc1")
    def poll_begin(g=None):
        n = u(); e(f"s_mov_b32 s79, {gspin if g is None else g}"); lab(f"L_g{n}"); return n
    def poll_end(n, sl):
        e("s_not_b64 s[80:81], vcc"); e("s_mov_b64 exec, -1"); e(f"s_cbranch_scc0 L_gd{n}")
        e("s_sub_u32 s79, s79, 1"); e(f"s_cbranch_scc1 L_gd{n}")
        if sl: e(f"s_sleep {sl}")
        e(f"s_branch L_g{n}")
        lab(f"L_gd{n}")
    if stamps: e("s_memrealtime s[86:87]")
    c("helper 0 adds up the eight slices for this workgroup's batch")
    e("v_and_b32 v42, 31, v0"); e("v_lshlrev_b32 v42, 4, v42"); e("v_lshrrev_b32 v24, 5, v0"); e("v_lshl_add_u32 v42, v24, 10, v42")
    e("v_lshlrev_b32 v43, 4, v1"); e("v_lshl_add_u32 v43, v24, 2, v43"); e("v_and_b32 v24, 1, v2"); e("v_lshl_add_u32 v43, v24, 3, v43")
    e("s_and_b32 s51, s2, 32"); e("s_lshl4_add_u32 s50, s51, s50"); e("s_add_u32 s51, s50, 0x1000")
    e("s_waitcnt vmcnt(0)")
    if stamps: e("s_memrealtime s[88:89]")
    if q1: e(f"s_sleep {q1}")
    n = poll_begin(spin)
    for t in range(4): e(f"buffer_load_dwordx4 v[{8+4*t}:{11+4*t}], v42, s[44:47], s{50+t//2} offen offset:{2048*(t%2)} sc1")
    for t in range(4):
        e(f"s_waitcnt vmcnt({3-t})"); get_tag(24 + t, 8 + 4 * t)
    for t in range(4): e(f"v_cmpx_eq_u32 vcc, s55, v{24+t}")
    poll_end(n, qslp)
    for k in range(4): e(f"v_add_f32 v{8+k}, v{8+k}, v{12+k}")
    for k in range(4): e(f"v_add_f32 v{16+k}, v{16+k}, v{20+k}")
    for k in range(4): e(f"v_add_f32 v{8+k}, v{8+k}, v{16+k}")
    e("s_nop 0")
    e("v_permlane32_swap_b32 v8, v10"); e("v_permlane32_swap_b32 v9, v11")
    e("v_add_f32 v8, v8, v10"); e("v_add_f32 v9, v9, v11")
    e("v_cvt_pk_bf16_f32 v8, v8, v9")
    e(f"ds_write_b32 v43, v8 offset:{L_QA}")
    e("ds_write_b64 v41, v[62:63] offset:16")
    if stamps: e("s_memrealtime s[82:83]")
    lab("L_hb")
    e("s_cmp_eq_u32 s33, 2"); e("s_cbranch_scc1 L_pacer")
    def get_launch_tag():
        lds_wait(16, 1, 4)
        e("ds_read_b32 v63, v41 offset:20"); e("s_waitcnt lgkmcnt(0)")
        e("v_readfirstlane_b32 s55, v63")
    if early & 1:
        e("s_cmp_eq_u32 s33, 1"); e("s_cbranch_scc1 L_agent")
    get_launch_tag()
    def wo_tiles():
        e("s_lshl_b32 s50, s33, 15"); e(f"s_add_u32 s50, s50, {L_WO}")
        e("v_lshrrev_b32 v33, 2, v1"); e("v_lshl_add_u32 v33, v2, 3, v33"); e("v_lshlrev_b32 v33, 8, v33")
        e("v_and_b32 v24, 3, v0"); e("v_lshl_add_u32 v33, v24, 3, v33"); e("v_add_u32 v33, s50, v33")
        for nb in range(8):
            for kb in range(4):
                r = 128 + 4 * (nb * 4 + kb)
                for hh in range(2):
                    e(f"ds_read_b64_tr_b16 v[{r+2*hh}:{r+2*hh+1}], v33 offset:{kb*8192 + hh*1024 + nb*32}")
            e("s_waitcnt lgkmcnt(0)")
    e("s_cmp_lg_u32 s33, 1"); e("s_cbranch_scc1 L_htiles")

    lab("L_agent")
    if bs and not early & 1: lds_wait(8, 256 * bs)
    if NS == 4:
        e("s_cmp_ge_u32 s54, 4"); e("s_cbranch_scc1 L_jw")
    c(f"job 0: {512//NS} of the 512 rows of the q projection of head h of branch B, both batches")
    lg = 9 - (NS.bit_length() - 1)
    e("s_lshl_b32 s50, s32, 8"); e(f"s_lshl_b32 s51, s54, {13+lg}"); e("s_add_u32 s50, s50, s51"); e(f"s_lshl_b32 s51, s54, {lg+1}")
    e(f"s_mov_b32 s49, {8//NS}")
    e("s_mov_b32 s36, s14"); e("s_mov_b32 s37, s15"); e("s_mov_b32 s40, s20"); e("s_mov_b32 s41, s21")
    for k in range(4): e(f"v_mov_b32 v{56+k}, 0")
    lab("L_j0")
    for k in range(2): e(f"buffer_load_dwordx4 v[{8+4*k}:{11+4*k}], v35, s[36:39], s51 offen offset:{16*k}")
    for t in range(16):
        e(f"s_waitcnt vmcnt({bth-1})")
        e(f"buffer_load_dwordx4 v[{64+4*t}:{67+4*t}], v3, s[40:43], s50 offen nt")
        e(f"s_add_u32 s50, s50, {0x2000 if t < 15 else 0x2000*49:#x}")
    rows_mfma(True, 16, True)
    e("s_addk_i32 s51, 128"); e("s_sub_u32 s49, s49, 1"); e("s_cmp_lg_u32 s49, 0"); e("s_cbranch_scc1 L_j0")
    if early & 1: get_launch_tag()
    e("s_lshl3_add_u32 s50, s32, s54"); e("s_lshl_b32 s50, s50, 10"); e(f"s_add_u32 s50, s50, {QPB:#x}")
    e("s_nop 0")
    put_tag(56, 63)
    e("buffer_store_dwordx4 v[56:59], v40, s[44:47], s50 offen sc1")
    e("s_cmp_lt_u32 s54, 4"); e("s_cbranch_scc1 L_j2")
    lab("L_jw")
    c("wo_B slice (four workgroups per head): slot s holds row h*128 + 4*(s ^ 4*(h&7)) + g, columns (j&3)*128..")
    if TW: lds_wait(8, 4 * 256 * TW - 768)
    e("s_lshl_b32 s50, s32, 17"); e("s_and_b32 s51, s54, 3"); e("s_lshl_b32 s51, s51, 8"); e("s_add_u32 s50, s50, s51")
    e("s_mov_b32 s40, s22"); e("s_mov_b32 s41, s23")
    e("v_lshlrev_b32 v3, 10, v2"); e("v_lshl_add_u32 v3, v1, 4, v3")
    e("s_and_b32 s51, s32, 7"); e("s_lshl_b32 s51, s51, 14"); e("s_add_u32 s53, s50, s51")
    for s_ in range(32):
        e(f"s_xor_b32 s50, s53, {s_<<12:#x}")
        e(f"s_waitcnt vmcnt({wth-1})")
        e(f"buffer_load_dwordx4 v[{64+4*s_}:{67+4*s_}], v3, s[40:43], s50 offen nt")
    if early & 1: get_launch_tag()
    lab("L_j2")
    c("job 1: add up line j of the slices of head h")
    e("s_lshl_b32 s52, s32, 13"); e("s_lshl_b32 s51, s54, 7"); e("s_add_u32 s52, s52, s51"); e(f"s_add_u32 s52, s52, {QPB:#x}")
    e(f"v_bfe_u32 v42, v0, 3, {NS.bit_length()-1}"); e("v_lshlrev_b32 v42, 10, v42"); e("v_and_b32 v24, 7, v0"); e("v_lshl_add_u32 v42, v24, 4, v42")
    if T1: lds_wait(8, 4 * 256 * T1 - 768)
    n = poll_begin()
    if NS == 4: e("s_mov_b32 exec_hi, 0")
    e("buffer_load_dwordx4 v[8:11], v42, s[44:47], s52 offen sc1")
    e("s_waitcnt vmcnt(0)")
    get_tag(16, 8); e("v_cmp_eq_u32 vcc, s55, v16")
    if NS == 4: e("s_nop 0"); e("s_mov_b32 vcc_hi, vcc_lo")
    poll_end(n, slp)
    for k in range(4): e(f"v_add_f32_dpp v{8+k}, v{8+k}, v{8+k} row_ror:8 {DPP}")
    for sw in (16, 32)[:NS.bit_length()-2]:
        for k in range(4): e(f"v_mov_b32 v{12+k}, v{8+k}")
        e("s_nop 0")
        for k in range(4): e(f"v_permlane{sw}_swap_b32 v{8+k}, v{12+k}")
        for k in range(4): e(f"v_add_f32 v{8+k}, v{8+k}, v{12+k}")
    put_tag(8, 63)
    e("s_lshl3_add_u32 s50, s32, s54"); e("s_lshl_b32 s50, s50, 7"); e(f"s_add_u32 s50, s50, {QB:#x}")
    e("s_mov_b64 exec, 0xff"); e("buffer_store_dwordx4 v[8:11], v40, s[44:47], s50 offen sc1"); e("s_mov_b64 exec, -1")
    c("job 2: q of the four heads of this workgroup's B unit -> LDS; lane = (head&1, half, c)")
    e("v_and_b32 v42, 31, v0"); e("v_lshlrev_b32 v42, 4, v42"); e("v_lshrrev_b32 v24, 5, v0"); e("v_lshl_add_u32 v42, v24, 10, v42")
    e("v_lshlrev_b32 v43, 4, v1"); e("v_lshl_add_u32 v43, v24, 8, v43"); e("v_and_b32 v24, 1, v2"); e("v_lshl_add_u32 v43, v24, 3, v43")
    e("s_lshl_b32 s52, s30, 12"); e("s_lshr_b32 s51, s31, 4"); e("s_lshl_b32 s51, s51, 9"); e("s_add_u32 s52, s52, s51")
    e(f"s_add_u32 s52, s52, {QB:#x}")
    lds_wait(8, 4 * 256 * T2 - 768)
    n = poll_begin()
    e("buffer_load_dwordx4 v[8:11], v42, s[44:47], s52 offen sc1")
    e("buffer_load_dwordx4 v[12:15], v42, s[44:47], s52 offen offset:2048 sc1")
    e("s_waitcnt vmcnt(0)")
    get_tag(16, 8); get_tag(17, 12)
    e("v_cmpx_eq_u32 vcc, s55, v16"); e("v_cmpx_eq_u32 vcc, s55, v17")
    poll_end(n, slp)
    for q in range(4): e(f"v_cvt_pk_bf16_f32 v{16+q}, v{8+2*q}, v{9+2*q}")
    e(f"ds_write_b64 v43, v[16:17] offset:{L_QB}"); e(f"ds_write_b64 v43, v[18:19] offset:{L_QB+512}")
    e("v_mov_b32 v25, 1")
    e("s_waitcnt lgkmcnt(0)")
    e("ds_write_b32 v41, v25")
    c("job 3: merge the four waves' B partials, publish (outputs first, then the tagged max/sum line)")
    lds_wait(4, 256)
    e("v_lshlrev_b32 v42, 4, v2")
    e("v_lshlrev_b32 v43, 5, v0")
    for w in range(4): e(f"ds_read_b32 v{8+w}, v42 offset:{L_RECB + w*RECB + 2048}")
    e("s_waitcnt lgkmcnt(0)")
    for w in range(4):
        for a in range(4): e(f"ds_read_b32 v{12+4*w+a}, v42 offset:{L_RECB + w*RECB + 2304 + 64*a}")
        e("s_waitcnt lgkmcnt(0)")
    e("v_max3_f32 v44, v8, v9, v10"); e("v_max_f32 v44, v44, v11")
    e("v_and_b32 v44, s94, v44")
    for w in range(4): e(f"v_sub_f32 v{8+w}, v{8+w}, v44")
    for w in range(4): e(f"v_exp_f32 v{8+w}, v{8+w}")
    e("v_mov_b32 v45, 0"); e("v_lshrrev_b32 v46, 16, v63"); e("v_lshrrev_b32 v47, 24, v63")
    for w in range(4):
        for a in range(4): e(f"v_fmac_f32 v45, v{8+w}, v{12+4*w+a}")
    e("v_perm_b32 v44, v44, v63, s56"); e("v_perm_b32 v45, v45, v63, s57")
    for k in range(8): e(f"v_mov_b32 v{48+k}, 0")
    for w in range(4):
        e(f"ds_read_b128 v[12:15], v43 offset:{L_RECB + w*RECB}")
        e(f"ds_read_b128 v[16:19], v43 offset:{L_RECB + w*RECB + 16}")
        e("s_waitcnt lgkmcnt(0)")
        for k in range(8): e(f"v_fmac_f32 v{48+k}, v{8+w}, v{12+k}")
    for k in range(4): e(f"v_cvt_pk_bf16_f32 v{48+k}, v{48+2*k}, v{49+2*k}")
    e("s_lshr_b32 s52, s31, 4"); e("s_lshl3_add_u32 s52, s52, s30")
    e("s_and_b32 s51, s31, 15"); e("s_lshl4_add_u32 s52, s52, s51")
    e("s_lshl_b32 s50, s52, 10"); e(f"s_add_u32 s50, s50, {PBO:#x}")
    e("buffer_store_dwordx4 v[48:51], v40, s[44:47], s50 offen sc1")
    e("s_lshl_b32 s50, s52, 7"); e(f"s_add_u32 s50, s50, {PBML:#x}")
    e("v_lshlrev_b32 v42, 5, v2"); e("v_lshl_add_u32 v42, v1, 4, v42")
    e("s_waitcnt vmcnt(0)")
    e("s_mov_b32 exec_lo, 0x00030003"); e("s_mov_b32 exec_hi, 0x00030003")
    e("buffer_store_dwordx4 v[44:47], v42, s[44:47], s50 offen sc1")
    e("s_mov_b64 exec, -1")
    e("s_cmp_lt_u32 s54, 4"); e("s_cbranch_scc1 L_htiles")
    c("job 4: finish head h (both batches), multiply by the wo slice")
    e("v_lshrrev_b32 v42, 5, v0")
    e("v_lshlrev_b32 v43, 14, v42"); e("v_lshl_add_u32 v43, v1, 7, v43")
    e("v_and_b32 v47, 1, v2")
    e("v_lshlrev_b32 v35, 17, v42"); e("v_lshl_add_u32 v35, v47, 10, v35"); e("v_lshl_add_u32 v35, v1, 4, v35")
    e("v_lshl_add_u32 v33, v42, 5, v47"); e("v_lshlrev_b32 v33, 2, v33")
    e("s_lshr_b32 s51, s31, 3")
    e("s_lshl_b32 s52, s30, 11"); e("s_lshl_b32 s53, s51, 5"); e("s_add_u32 s52, s52, s53"); e(f"s_add_u32 s52, s52, {PBML:#x}")
    e("s_lshl_b32 s53, s30, 14"); e("s_lshl_b32 s51, s51, 8"); e("s_add_u32 s53, s53, s51"); e(f"s_add_u32 s53, s53, {PBO:#x}")
    lds_wait(8, 4 * 256 * (NA1 + 4 + T4) - 768)
    n = poll_begin()
    e("buffer_load_dwordx4 v[8:11], v43, s[44:47], s52 offen sc1")
    e("s_waitcnt vmcnt(0)")
    get_tag(16, 8); e("v_cmp_eq_u32 vcc, s55, v16")
    poll_end(n, slp)
    for t in range(8):
        e(f"buffer_load_dwordx4 v[{192+4*t}:{195+4*t}], v35, s[44:47], s53 offen offset:{2048*(t%2)} sc1")
        if t % 2 and t < 7: e("s_addk_i32 s53, 0x1000")
    e(f"v_max_f32_dpp v12, v8, v8 quad_perm:[1,0,3,2] {DPP}"); e("s_nop 1")
    for d in ("quad_perm:[2,3,0,1]", "row_ror:4", "row_ror:8"):
        e(f"v_max_f32_dpp v12, v12, v12 {d} {DPP}"); e("s_nop 1")
    e("v_sub_f32 v8, v8, v12"); e("v_exp_f32 v8, v8"); e("s_nop 0"); e("v_mul_f32 v9, v8, v9"); e("s_nop 1")
    for d in ("quad_perm:[1,0,3,2]", "quad_perm:[2,3,0,1]", "row_ror:4", "row_ror:8"):
        e(f"v_add_f32_dpp v9, v9, v9 {d} {DPP}"); e("s_nop 1")
    e("v_rcp_f32 v9, v9"); e("s_nop 0"); e("v_mul_f32 v8, v8, v9")
    for t in range(8): e(f"ds_bpermute_b32 v{48+t}, v33, v8 offset:{8*t}")
    for k in range(8): e(f"v_mov_b32 v{16+k}, 0")
    e("s_waitcnt vmcnt(0) lgkmcnt(0)")
    for t in range(8):
        for k in range(4):
            e(f"v_lshlrev_b32 v24, 16, v{192+4*t+k}"); e(f"v_and_b32 v25, 0xffff0000, v{192+4*t+k}")
            e(f"v_fmac_f32 v{16+2*k}, v{48+t}, v24"); e(f"v_fmac_f32 v{17+2*k}, v{48+t}, v25")
    e("s_nop 1")
    for k in range(4): e(f"v_permlane16_swap_b32 v{16+k}, v{20+k}")
    for k in range(4): e(f"v_add_f32 v{16+k}, v{16+k}, v{20+k}")
    e("v_cvt_pk_bf16_f32 v16, v16, v17"); e("v_cvt_pk_bf16_f32 v17, v18, v19")
    e("v_lshl_add_u32 v46, v1, 1, v47"); e("s_and_b32 s51, s32, 7"); e("s_lshl_b32 s51, s51, 2")
    e("v_xor_b32 v46, s51, v46"); e("v_lshlrev_b32 v46, 1, v46"); e("v_lshl_add_u32 v46, v42, 8, v46")
    for k in range(4): e(f"ds_write_b16{'_d16_hi' if k%2 else ''} v46, v{16+k//2} offset:{L_SCR + 64*k}")
    e("v_lshlrev_b32 v46, 8, v34"); e("v_lshl_add_u32 v46, v2, 6, v46")
    e("s_waitcnt lgkmcnt(0)")
    for k in range(4): e(f"ds_read_b128 v[{8+4*k}:{11+4*k}], v46 offset:{L_SCR + 16*k}")
    e("s_waitcnt lgkmcnt(0)")
    rows_mfma(False, 32)
    c("line (b, cq*4 + ((l>>3)&3)) of head h")
    e("s_lshl_b32 s52, s32, 7"); e("s_and_b32 s51, s54, 3"); e(f"s_mul_i32 s51, s51, {4*YBS}")
    e("s_add_u32 s52, s52, s51"); e(f"s_add_u32 s52, s52, {YB:#x}")
    e("v_bfe_u32 v60, v0, 3, 2"); e("v_lshl_add_u32 v60, v42, 4, v60"); e(f"v_mul_u32_u24 v60, {YBS}, v60")
    e("v_and_b32 v24, 7, v0"); e("v_lshl_add_u32 v60, v24, 4, v60")
    put_tag(56, 63)
    if YBT >= 0:
        if YBT: lds_wait(8, 4 * 256 * YBT - 768)
        e("buffer_store_dwordx4 v[56:59], v60, s[44:47], s52 offen sc1")

    lab("L_htiles")
    lds_wait(24, 1, 32)
    wo_tiles()
    lab("L_hfinal")
    e("v_and_b32 v8, 3, v0"); e(f"v_mul_u32_u24 v8, {RECA}, v8"); e("v_lshl_add_u32 v8, v2, 4, v8"); e("v_mov_b32 v9, 0")
    e("s_and_b32 s50, s31, 3"); e("s_lshl_b32 s50, s50, 5"); e("s_add_u32 s50, s50, s32"); e("s_lshl_b32 s50, s50, 7")
    e("s_bfe_u32 s51, s2, 0x10005"); e("s_lshl2_add_u32 s51, s51, s33"); e(f"s_mul_i32 s51, s51, {4*YAS}")
    e("s_add_u32 s50, s50, s51"); e(f"s_add_u32 s50, s50, {YA:#x}"); e(f"s_add_u32 s51, s50, {2*YAS}")
    e(f"v_mul_u32_u24 v10, {YAS}, v34"); e("v_and_b32 v11, 7, v0"); e("v_lshl_add_u32 v10, v11, 4, v10")
    e("v_lshl_add_u32 v10, v2, 28, v10")
    e("s_and_b32 s48, s54, 4"); e("s_add_u32 s48, s48, s33")
    e("s_waitcnt vmcnt(0) lgkmcnt(0)")
    e("s_barrier")
    if stamps >= 2: e("s_memrealtime s[86:87]"); e("s_waitcnt lgkmcnt(0)")
    for kb in range(4): e(f"ds_read_b128 v[{16+4*kb}:{19+4*kb}], v8 offset:{L_RECA + kb*64}")
    e(f"ds_read_b128 v[12:15], v9 offset:{L_MA}")
    if YBT < 0:
        e("s_cmp_lg_u32 s48, 5"); e("s_cbranch_scc1 L_hf2")
        e("buffer_store_dwordx4 v[56:59], v60, s[44:47], s52 offen sc1")
        lab("L_hf2")
    def tile(nb, kb):
        d = 64 + 4 * nb; r = 128 + 4 * (nb * 4 + kb)
        e(f"v_mfma_f32_16x16x32_bf16 v[{d}:{d+3}], v[{16+4*kb}:{19+4*kb}], v[{r}:{r+3}], {f'v[{d}:{d+3}]' if kb else '0'}")
    fill = []
    fill += ["s_waitcnt lgkmcnt(0)", "v_max3_f32 v11, v12, v13, v14", "v_max_f32 v11, v11, v15", "v_and_b32 v11, s94, v11"]
    fill += [f"v_sub_f32 v{12+w}, v{12+w}, v11" for w in range(4)]
    fill += [f"v_exp_f32 v{12+w}, v{12+w}" for w in range(4)]
    def comb(nb):
        d = 64 + 4 * nb; y = 32 + nb
        return [f"v_mul_f32 v{y}, v12, v{d}"] + [f"v_fmac_f32 v{y}, v{12+w}, v{d+w}" for w in range(1, 4)] + \
               [f"v_perm_b32 v{y}, v{y}, v63, s{56 + nb % 4}"]
    for nb in range(8):
        if nb >= 2: fill += comb(nb - 2)
        if nb == 5 and es: fill.append("buffer_store_dwordx4 v[32:35], v10, s[44:47], s50 offen sc1")
        for kb in range(4):
            if nb == 0: e(f"s_waitcnt lgkmcnt({4-kb})")
            tile(nb, kb)
            if nb >= 1:
                for _ in range(2):
                    if fill: e(fill.pop(0))
    for x in fill: e(x)
    if not es: e("buffer_store_dwordx4 v[32:35], v10, s[44:47], s50 offen sc1")
    for x in comb(6): e(x)
    e(f"s_nop {2 if es else 1}")
    for x in comb(7): e(x)
    e("buffer_store_dwordx4 v[36:39], v10, s[44:47], s51 offen sc1")
    if stamps:
        e("s_cmp_lg_u32 s33, 0"); e("s_cbranch_scc1 L_end")
        e("s_memrealtime s[84:85]"); e("s_waitcnt lgkmcnt(0)")
        e("s_mov_b64 exec, 1"); e("s_mov_b32 s44, s28"); e("s_mov_b32 s45, s29")
        for k in range(8): e(f"v_mov_b32 v{16+k}, s{82+k}")
        e("s_lshl_b32 s51, s2, 7"); e("s_add_u32 s51, s51, 0x20030")
        e("buffer_store_dwordx4 v[16:19], off, s[44:47], s51")
        e("buffer_store_dwordx4 v[20:23], off, s[44:47], s51 offset:16")
    lab("L_end")
    e("s_endpgm")
    lab("L_pacer")
    c("pacer: once per step it brings a few rows of wo_A into LDS, and (speed only) compares this workgroup's")
    c("progress with its neighbours' to set the depth of the load queue")
    e("s_mul_i32 s52, s30, 4352"); e(f"s_add_u32 s52, s52, {PROG:#x}")
    e("s_lshl1_add_u32 s53, s31, s52")
    e("v_lshlrev_b32 v42, 1, v0"); e("v_mov_b32 v12, 0")
    e("s_cmp_lg_u32 s31, 0"); e("s_cbranch_scc1 L_pi")
    e("s_mov_b64 exec, 0xff")
    e("buffer_store_dwordx4 v[28:31], v40, s[44:47], s52 offen sc1")
    e("s_cmp_lg_u32 s30, 0"); e("s_cbranch_scc1 L_pi")
    e("s_mov_b64 exec, -1")
    e("v_mul_u32_u24 v13, 0x1100, v0"); e(f"s_mov_b32 s50, {PROG + 0x10000:#x}")
    e("buffer_store_dword v12, v13, s[44:47], s50 offen sc1")
    lab("L_pi")
    e("s_mov_b64 exec, -1")
    c("wo_A: one load = one 1 KiB row; lane -> image (l>>4), 16 B piece (l&15) is not lane-linear, so load 4 rows x 256 B")
    e("v_lshlrev_b32 v33, 10, v2"); e("v_lshl_add_u32 v33, v1, 4, v33")
    e("s_mov_b32 s40, s12"); e("s_mov_b32 s41, s13")
    e("s_lshl_b32 s62, s32, 17")
    if rot: e("s_lshl_b32 s63, s54, 2")
    else: e(f"s_mul_i32 s63, s32, {hr * (wk//4)}"); e("s_and_b32 s63, s63, 31")
    e("s_mov_b32 s36, 128")
    e(f"s_mul_i32 s39, s32, {hx}"); e("s_and_b32 s39, s39, 31")
    e(f"s_mov_b32 s49, {256*n0 - 128}"); e(f"s_mov_b32 s79, {spin}")
    e("s_mov_b32 s60, 0"); e("s_mov_b32 s61, 0")
    if early & 2: e("s_branch L_pd")
    lab("L_pl")
    e("ds_read_b32 v24, v41 offset:8"); e("s_waitcnt lgkmcnt(0)")
    e("v_readfirstlane_b32 s51, v24"); e("s_sub_i32 s79, s79, 1"); e("s_cmp_lt_i32 s79, 0"); e("s_cbranch_scc1 L_pt")
    e("s_cmp_ge_u32 s51, s49"); e("s_cbranch_scc1 L_pt")
    e("s_sleep 2"); e("s_branch L_pl")
    lab("L_pt")
    e("s_add_u32 s48, s51, 128"); e("s_lshr_b32 s48, s48, 8")
    e("s_lshl_b32 s49, s48, 8"); e("s_add_u32 s49, s49, 128"); e(f"s_min_u32 s49, s49, {76*256}")
    e("v_mov_b32 v12, s48")
    e("s_mov_b32 exec_hi, 1")
    e("buffer_load_sshort v13, v42, s[44:47], s52 offen nt")
    e("s_mov_b64 exec, 1")
    e("buffer_store_short v12, off, s[44:47], s53")
    if xk:
        c("column leaders rank the columns every few steps")
        e("s_cmp_lg_u32 s31, 0"); e("s_cbranch_scc1 L_pn")
        e(f"s_lshr_b32 s50, s48, {xp.bit_length()-1}"); e("s_cmp_eq_u32 s50, s60"); e("s_cbranch_scc1 L_pn")
        e("s_mov_b32 s60, s50"); e("s_mul_i32 s50, s50, 0x1100"); e(f"s_add_u32 s50, s50, {PROG + 0x10000:#x}")
        e("v_mov_b32 v14, 2")
        e("buffer_atomic_add v14, off, s[44:47], s50 sc0 sc1")
        e("s_waitcnt vmcnt(0)")
        e("v_readfirstlane_b32 s50, v14"); e("s_sub_i32 s50, s50, 7"); e(f"s_mul_i32 s50, s50, {xk}")
        if ls:
            e(f"s_ashr_i32 s51, s61, {ls}"); e("s_sub_i32 s61, s61, s51"); e("s_add_i32 s61, s61, s50"); e(f"s_ashr_i32 s50, s61, {xs}")
        e("v_mov_b32 v14, s50")
        e("buffer_store_short v14, off, s[44:47], s52 offset:64")
        lab("L_pn")
    e("s_mov_b32 exec_lo, -1")
    e("s_waitcnt vmcnt(1)")
    e("v_readlane_b32 s50, v13, 32")
    e("v_subrev_u32 v13, s48, v13")
    for d in range(-2, 3):
        e(f"v_cmp_le_i32 vcc, {d}, v13"); e("s_bcnt1_i32_b64 s51, vcc"); e("s_add_i32 s50, s50, s51")
    e("s_mov_b64 exec, -1")
    e(f"s_sub_i32 s37, s50, {e1}"); e("s_max_i32 s37, s37, 0"); e(f"s_lshr_b32 s37, s37, {g2}"); e("s_min_u32 s37, s37, 16")
    e("s_bfm_b32 s37, s37, 16")
    e(f"s_sub_i32 s50, s50, {e0}"); e("s_abs_i32 s51, s50")
    if db: e(f"s_sub_i32 s51, s51, {db}"); e("s_max_i32 s51, s51, 0")
    e(f"s_lshr_b32 s51, s51, {gs}"); e("s_min_u32 s51, s51, 8")
    e("s_bfm_b32 s51, s51, 0")
    e("s_cmp_lt_i32 s50, 0"); e("s_cselect_b32 s50, 8, 0"); e("s_lshl_b32 s51, s51, s50")
    e("s_or_b32 s51, s51, s37")
    e("v_mov_b32 v12, s51"); e("ds_write_b32 v41, v12 offset:12")
    if tl:
        e("s_cmp_ge_u32 s2, 16"); e("s_cbranch_scc1 L_tl")
        e("s_memrealtime s[90:91]"); e("s_waitcnt lgkmcnt(0)"); e("v_mov_b32 v12, s90")
        e("s_lshl_b32 s50, s2, 9"); e("s_lshl2_add_u32 s50, s48, s50"); e("s_add_u32 s50, s50, 0x30000")
        e("s_mov_b64 exec, 1"); e("buffer_store_dword v12, off, s[44:47], s50"); e("s_mov_b64 exec, -1")
        lab("L_tl")
    e(f"s_cmp_lt_u32 s48, {w0}"); e("s_cbranch_scc1 L_pl")
    e("s_cmp_lt_i32 s36, 0"); e("s_cbranch_scc1 L_pe")
    e("s_cmp_eq_u32 s36, 0"); e("s_cbranch_scc1 L_pw")
    c("wo_A: piece = four rows, one load per column quarter")
    if wp > 1:
        e(f"s_and_b32 s50, s48, {wp-1}"); e("s_cmp_lt_u32 s48, 70"); e("s_cselect_b32 s50, s50, 0")
        e("s_cmp_lg_u32 s50, 0"); e("s_cbranch_scc1 L_pl")
    lab("L_pd")
    e("s_xor_b32 s51, s63, s39")
    e("s_lshl_b32 s37, s51, 10"); e(f"s_add_u32 m0, s37, {L_WO}")
    e("s_lshl_b32 s50, s51, 12"); e("s_add_u32 s50, s50, s62")
    for k in range(4):
        e(f"buffer_load_dwordx4 v33, s[40:43], s50 offen {wpol} lds")
        if k < 3: e("s_add_u32 m0, m0, 0x8000"); e("s_addk_i32 s50, 256")
    e("s_add_u32 s63, s63, 1"); e("s_and_b32 s63, s63, 31")
    e("s_sub_u32 s36, s36, 4")
    if rot == 2: e("s_cmp_gt_u32 s36, 112"); e("s_cbranch_scc1 L_pd")
    e(f"s_and_b32 s50, s36, {wk-1}"); e("s_cbranch_scc1 L_pd")
    e("s_branch L_pl")
    lab("L_pw")
    e("v_mov_b32 v12, 1"); e("s_waitcnt vmcnt(0)"); e("ds_write_b32 v41, v12 offset:24")
    e("ds_read_b32 v63, v41 offset:20")
    wo_tiles()
    e("s_mov_b32 s36, -1")
    lab("L_pe")
    e("s_cmp_lt_u32 s48, 75"); e("s_cbranch_scc0 L_hfinal")
    e("s_cmp_lt_i32 s79, 0"); e("s_cbranch_scc0 L_pl")
    e("s_branch L_hfinal")

    if drop or plain:
        job = None
        for k, t in enumerate(L):
            if t.startswith("  ; job "): job = t[8]
            if t.startswith("  ; wo_B slice"): job = "b"
            if t.startswith("  ; wo_A: piece"): job = "a"
            if t.startswith("L_hfinal"): job = "f"
            if t.startswith("L_pacer"): job = None
            if job is not None and "buffer_" in t and "off," not in t:
                if job + ("s" if "store" in t else "l") in drop.split("."): L[k] = "  s_nop 0"
                if job + ("s" if "store" in t else "l") in plain.split("."): L[k] = t.replace(" sc1", "" if "store" in t else " nt")
    L.append('.section .rodata,"a"'); L.append(".p2align 6")
    L.append(f".amdhsa_kernel {NAME}_kernel")
    for s in ("next_free_vgpr 256", "next_free_sgpr 96", "accum_offset 256", "group_segment_fixed_size 0",
              "kernarg_size 104", "user_sgpr_count 2", "user_sgpr_kernarg_segment_ptr 1",
              "system_sgpr_workgroup_id_x 1", "float_denorm_mode_32 3"):
        L.append("  .amdhsa_" + s)
    L.append(".end_amdhsa_kernel")
    return "\n".join(L) + "\n"

if __name__ == "__main__":
    import os
    names = []
    os.makedirs("k", exist_ok=True)
    for spec in sys.argv[1:]:
        p = {}
        for x in spec.split(","):
            if not x: continue
            k, v = x.split("=")
            p[k] = v.replace("+", " ") if k in ("wpol", "drop", "ms", "plain", "kvp") else int(v)
            if k == "wpol" and v == "def": p[k] = ""
            if k == "ms" and v == "no": p[k] = ""
        fn = "k/k_" + (spec.replace(",", "_").replace("=", "").replace("+", "") or "base") + ".s"
        open(fn, "w").write(gen(**p))
        names.append("dev/" + fn)
    print(" ".join(names))
```

```python
import sys, math, struct
NAME = "concat_heads__mha_block_cached__gqa_block_cached__decode"

HEADER = """; Kernarg layout for this problem (104 bytes, ptrs only, base s[0:1]):
; One persistent workgroup per CU: waves 0-3 stream K/V (flash-decoding, online softmax), waves 4-7 do the
"""

def f2u(x): return struct.unpack("<I", struct.pack("<f", x))[0]

WSB  = 0x100000
EPOCH = WSB
QB   = WSB + 0x010000
PBO  = WSB + 0x040000
PBML = WSB + 0x0C0000
YB   = WSB + 0x0D0000
YBS  = 4096 + 256
YA   = WSB + 0x140000
YAS  = 16384 + 256
MLA  = WSB + 0x1E0000
MLS  = 2048 + 256
QP   = WSB + 0x200000
PROG = WSB + 0x280000
WSSZ = 0x400000
L_QA   = 0x0000
L_QB   = 0x0400
L_FLAG = 0x0800
L_SCR  = 0x0100
L_MA   = 0x0A00
L_RED  = 0x0A40
L_RECA = 0x0D00; RECA = 576
L_RECB = 0x1800; RECB = 2560
L_WO   = 0x4000
L_SB   = L_WO + 0x10000
L_S    = L_WO + 0x20000
LDS_BYTES = L_S + 0x4000

def gen(inf=5, inf0=5, m1=9, bb='16.19', m2=1, m3=0, m4=0, tbl=0, wpol="", stamps=0, spin=1 << 20, slp=64, wsoff=0,
        T1=5, T2=7, T4=3, YBT=-1, qslp=8, wth=32, rspin=1 << 20, gspin=1 << 20, drop="",
        hi=7, lo=4, pace=1, n0=1, e0=80, gs=2, xk=1, xp=4, ls=0, xs=0, wk=8, wk2=64, w0=1, es=1, ot2=16, e1=64, g2=2, pq=14, hb=24, nb0=2, pt=0, db=0, tl=0, plain='', kvp='nt', diagw=0, mlr=4, rsl=0, rw=1, rd=0, rwb=1, rdb=0, pd=0, pn=1, wb0=3, wb2=0, wb3=3, ot=4):
    L = []
    def e(s): L.append("  " + s)
    def lab(s): L.append(s + ":")
    def c(s): L.append("  ; " + s)
    uid = [0]
    def u():
        uid[0] += 1; return uid[0]
    SC = f2u(128 ** -0.5 * math.log2(math.e))
    NA1 = 8
    DPP = "row_mask:0xf bank_mask:0xf"

    L.append(HEADER.rstrip("\n"))
    L.append(f"; @launch grid=(256,1,1) block=(512,1,1) lds={LDS_BYTES}")
    L.append('.amdgcn_target "amdgcn-amd-amdhsa--gfx950"')
    L.append(".text"); L.append(f".globl {NAME}_kernel"); L.append(".p2align 8")
    L.append(f".type {NAME}_kernel,@function"); L.append(f"{NAME}_kernel:")

    def stamp(k, lvl=1):
        if stamps >= lvl: e(f"s_memrealtime s[{64+2*k}:{65+2*k}]")
    def tag_consts():
        for k in range(4): e(f"s_mov_b32 s{56+k}, {0x07060500 + k:#x}")
        e("s_mov_b32 s76, 0x0c0c0400"); e("s_mov_b32 s77, 0x0c040100"); e("s_mov_b32 s78, 0x04020100")
        e("s_movk_i32 s94, 0xff00")
    def put_tag(r, vn):
        for k in range(4): e(f"v_perm_b32 v{r+k}, v{r+k}, v{vn}, s{56+k}")
    def get_tag(t, r, n=4):
        e(f"v_perm_b32 v{t}, v{r+1}, v{r}, s76"); e(f"v_perm_b32 v{t}, v{r+2}, v{t}, s77"); e(f"v_perm_b32 v{t}, v{r+3}, v{t}, s78")
        for k in range(n): e(f"v_and_b32 v{r+k}, s94, v{r+k}")

    e("s_cmp_ge_u32 s2, 256"); e("s_cbranch_scc1 L_end")
    e("s_load_dwordx16 s[4:19], s[0:1], 0")
    e("s_load_dwordx8 s[20:27], s[0:1], 64")
    e("s_load_dwordx2 s[28:29], s[0:1], 96")
    if stamps or diagw: e("s_memrealtime s[60:61]")
    e("v_lshrrev_b32 v1, 6, v0")
    e("s_and_b32 s30, s2, 7")
    e("v_readfirstlane_b32 s3, v1")
    e("s_lshr_b32 s31, s2, 3")
    e("v_and_b32 v0, 63, v0")
    e("s_lshr_b32 s33, s2, 6"); e("s_lshl2_add_u32 s32, s30, s33")
    e("s_and_b32 s35, s2, 32"); e("s_add_u32 s35, s35, s32")
    e("s_mov_b32 s42, 0x400000"); e("s_mov_b32 s43, 0x20000"); e("s_mov_b32 s39, s43")
    e("s_cmp_ge_u32 s3, 4"); e("s_cbranch_scc1 L_helper")

    RING = 128
    def issue(p):
        r = RING + 4 * p; j = p % 8
        if j == 4: e("s_xor_b32 s44, s44, 0x200000")
        e(f"buffer_load_dwordx4 v[{r}:{r+3}], v36, s[36:39], s44 offen offset:{(j%4)*1024} {kvp}")
        if j == 7:
            e("s_sub_u32 s44, s44, s45"); e("s_and_b32 s44, s44, s45")
    def set_src(ptr, unit, voff):
        e(f"s_add_u32 s36, s{ptr}, s{unit}"); e(f"s_addc_u32 s37, s{ptr+1}, 0")
        if voff: e(f"v_mov_b32 v36, v{voff}")
    def wi(p, last=False):
        if last and p >= 32 - ot:
            pass
        elif pace:
            n = u(); j = p % 8
            if last and p >= 32 - ot2:
                e(f"s_bitcmp1_b32 s33, {16+31-p}"); e(f"s_cbranch_scc1 L_v{n}")
            e(f"s_bitcmp1_b32 s33, {j}"); e(f"s_cbranch_scc1 L_t{n}")
            e(f"s_bitcmp0_b32 s33, {8+j}"); e(f"s_cbranch_scc1 L_u{n}")
            e(f"s_waitcnt vmcnt({lo-1})")
            lab(f"L_u{n}")
            e(f"s_waitcnt vmcnt({inf-1})")
            lab(f"L_t{n}")
            e(f"s_waitcnt vmcnt({hi-1})")
            if last and p >= 32 - ot2: lab(f"L_v{n}")
        else:
            e(f"s_waitcnt vmcnt({inf-1})")
        issue(p)
    def pick_mask():
        if pace:
            c("queue depth for this step: bits 0-7 deeper, bits 8-15 shallower; late waves of the workgroup go a bit deeper")
            e("s_waitcnt lgkmcnt(0)"); e("v_readfirstlane_b32 s33, v90"); e("v_readfirstlane_b32 s50, v91")
            e("ds_read_b32 v90, v14 offset:12"); e("ds_add_rtn_u32 v91, v14, v15 offset:8")
            e("s_sub_i32 s50, s50, s34"); e("s_addk_i32 s34, 256")
            if wb0:
                e("s_cmp_lt_i32 s50, 64"); e(f"s_cselect_b32 s51, {((1 << wb0) - 1) << 8:#x}, 0"); e("s_or_b32 s33, s33, s51")
            if wb2:
                e("s_cmp_ge_i32 s50, 128"); e(f"s_cselect_b32 s51, {(1 << wb2) - 1:#x}, 0"); e("s_or_b32 s33, s33, s51")
            if wb3:
                e("s_cmp_ge_i32 s50, 192"); e(f"s_cselect_b32 s51, {(1 << wb3) - 1:#x}, 0"); e("s_or_b32 s33, s33, s51")
        else:
            e("ds_add_u32 v14, v15 offset:8")
    c("K lane offset: key=(l>>2)&3, d=(l>>4)*32+(l&3)*8 ; V lane offset: l*16")
    e("v_lshlrev_b32 v3, 4, v0")
    e("v_and_b32 v2, 48, v3"); e("v_and_b32 v4, 12, v0"); e("v_lshl_add_u32 v2, v4, 6, v2")
    e("v_and_b32 v5, 48, v0"); e("v_lshl_add_u32 v36, v5, 2, v2")
    e("s_and_b32 s41, s31, 3"); e("s_lshl2_add_u32 s41, s41, s3"); e("s_lshl_b32 s41, s41, 12")
    e(f"s_mul_i32 s44, s35, {m1}"); e("s_lshl_b32 s44, s44, 27"); e("s_lshr_b32 s44, s44, 11")
    e("s_mov_b32 s38, s42"); e("s_lshl_b32 s40, s35, 22"); e("s_or_b32 s40, s40, s41"); e("s_mov_b32 s49, s44")
    e("s_waitcnt lgkmcnt(0)")
    if tbl:
        e("s_lshl_b32 s50, s2, 4"); e("s_load_dwordx4 s[80:83], s[26:27], s50"); e("s_waitcnt lgkmcnt(0)")
        e("s_mov_b32 s44, s80"); e("s_mov_b32 s49, s80")
    set_src(6, 40, 0)
    assert inf0 <= 7
    for p in range(nb0): issue(p)
    if hb < 0: e("s_barrier")
    e("s_mov_b32 s45, 0x1f0000"); e("v_mov_b32 v2, v36")
    c("score buffer addresses: v37 write / v38 read (one head), v39 both (four heads)")
    e("s_lshl_b32 s50, s3, 12"); e(f"s_add_u32 s95, s50, {L_S}")
    e("v_add_u32 v38, s95, v5"); e("v_add_u32 v37, v38, v4")
    e(f"s_add_u32 s95, s50, {L_SB}")
    e("v_and_b32 v39, 60, v0"); e("v_lshl_add_u32 v39, v39, 2, s95")
    c("constants while the first loads fly")
    e("v_and_b32 v6, 1, v0"); e("v_lshlrev_b32 v6, 4, v6"); e("v_mov_b32 v7, 0xffff"); e("v_lshlrev_b32 v6, v6, v7")
    e("v_and_b32 v7, 2, v0"); e("v_cmp_eq_u32 vcc, 0, v7")
    e(f"s_mov_b32 s48, {SC:#x}")
    e("v_mov_b32 v8, 0xff800000")
    e("v_cndmask_b32 v4, 0, v6, vcc")
    e("v_xor_b32 v5, v4, v6")
    e("v_mov_b32 v10, 0")
    e("v_mov_b32 v11, v8"); e("v_mov_b32 v13, 0")
    for r in range(40, 56): e(f"v_mov_b32 v{r}, 0")
    c("LDS address of the q operand: (g*32 + (l&3)*8)*2")
    e("v_and_b32 v6, 0xff, v2")
    e("v_bfe_u32 v7, v0, 2, 2")
    for s in range(4): e(f"v_cmp_eq_u32 s[{84+2*s}:{85+2*s}], {s}, v7")
    tag_consts()
    e(f"v_mov_b32 v14, {L_FLAG}"); e("v_mov_b32 v15, 1"); e("v_mov_b32 v90, 0"); e("v_mov_b32 v91, 0xffffff40")
    e("s_mov_b32 s33, 0"); e("s_movk_i32 s34, -256")
    if hb >= 0: e("s_barrier")
    for p in range(nb0, 32):
        if p % 8 == 0 and p >= 32 - 8 * pt: pick_mask()
        if p >= 32 - 8 * pt and p >= inf0: wi(p)
        else:
            if p >= inf0: e(f"s_waitcnt vmcnt({inf0-1})")
            issue(p)
        if p == pq: e("ds_write_b32 v14, v15 offset:28")
    stamp(0)
    e(f"s_mov_b32 s50, {spin}")
    lab("L_wqa")
    e("ds_read_b64 v[108:109], v14 offset:16"); e(f"ds_read_b128 v[104:107], v6 offset:{L_QA}")
    e("s_waitcnt lgkmcnt(0)")
    e("v_readfirstlane_b32 s51, v108"); e("v_readfirstlane_b32 s55, v109"); e("s_sub_u32 s50, s50, 1")
    e("s_cbranch_scc1 L_wqa_done")
    e("s_cmp_eq_u32 s51, 0"); e("s_cbranch_scc1 L_wqa")
    lab("L_wqa_done")
    for s in range(4):
        for k in range(4): e(f"v_cndmask_b32 v{16+4*s+k}, 0, v{104+k}, s[{84+2*s}:{85+2*s}]")
    stamp(1)

    def diag(t, d):
        e(f"v_mov_b32_dpp v{t}, v{d} quad_perm:[0,0,0,0] {DPP}")
        for k in range(1, 4):
            e(f"v_add_f32_dpp v{t}, v{d+k}, v{t} quad_perm:[{k},{k},{k},{k}] {DPP}")
    def xrow_max(v, t):
        e(f"v_mov_b32 v{t}, v{v}"); e("s_nop 1"); e(f"v_permlane16_swap_b32 v{v}, v{t}"); e("s_nop 1")
        e(f"v_max_f32 v{v}, v{v}, v{t}")
        e(f"v_mov_b32 v{t}, v{v}"); e("s_nop 1"); e(f"v_permlane32_swap_b32 v{v}, v{t}"); e("s_nop 1")
        e(f"v_max_f32 v{v}, v{v}, v{t}")
    def k_iter(gqa):
        for st in range(8):
            if st % 2 == 0: pick_mask()
            for j in range(4):
                r = RING + 4 * (4 * st + j)
                if gqa: e(f"v_mfma_f32_16x16x32_bf16 v[{56+4*j}:{59+4*j}], v[{r}:{r+3}], v[32:35], 0")
                else:   e(f"v_mfma_f32_16x16x32_bf16 v[56:59], v[{r}:{r+3}], v[{16+4*j}:{19+4*j}], {'v[56:59]' if j else '0'}")
                wi(4 * st + j)
            if gqa:
                for j in range(4): diag(72 + j, 56 + 4 * j)
                e(f"ds_write_b128 v1, v[72:75] offset:{256*st}")
                e("v_max3_f32 v11, v11, v72, v73"); e("v_max3_f32 v11, v11, v74, v75")
            else:
                e(f"s_nop {3 if pace else 5}")
                diag(72, 56)
                e(f"ds_write_b32 v1, v72 offset:{64*st}")
                e("v_max_f32 v8, v8, v72")
        e(f"v_add_u32 v1, {2048 if gqa else 512}, v1")
    def probs(sr, a, Mc, l):
        x = [f"v_fma_f32 v{sr+j}, v{sr+j}, s48, -v{Mc}" for j in range(4)]
        x += [f"v_exp_f32 v{sr+j}, v{sr+j}" for j in range(4)]
        x += [f"v_cvt_pk_bf16_f32 v{a+2*j+1}, v{sr+j}, v{sr+j}" for j in range(4)]
        for j in range(4): x += [f"v_and_b32 v{a+2*j}, v{a+2*j+1}, v4", f"v_and_b32 v{a+2*j+1}, v{a+2*j+1}, v5"]
        x += [f"v_add_f32 v{l}, v{l}, v{sr+j}" for j in range(4)]
        return x
    def pv_mfma(O, a, p, hf):
        r = RING + 4 * p
        e(f"v_mfma_f32_16x16x16_bf16 v[{O+4*hf}:{O+4*hf+3}], v[{a}:{a+1}], v[{r+2*hf}:{r+2*hf+1}], v[{O+4*hf}:{O+4*hf+3}]")
    def v_iter(gqa):
        O, Mc, l, stride = (48, 12, 13, 256) if gqa else (40, 9, 10, 64)
        for st in range(8):
            if st % 2 == 0: pick_mask()
            if st % 2 or not pace: e("s_waitcnt lgkmcnt(0)")
            nx = 76 + 4 * ((st + 1) % 2)
            e(f"ds_read_b128 v[{nx}:{nx+3}], v1 offset:{stride*(st+1)}")
            for x in probs(76 + 4 * (st % 2), 96, Mc, l): e(x)
            for j in range(4):
                pv_mfma(O, 96 + 2 * j, 4 * st + j, 0); pv_mfma(O, 96 + 2 * j, 4 * st + j, 1)
                wi(4 * st + j)
        e(f"v_add_u32 v1, {8*stride}, v1")

    c("---- the four tensors are read one after the other: K of A, K of B, V of B, V of A")
    e("s_mov_b32 s47, 8"); e("v_mov_b32 v1, v37")
    lab("L_km")
    e("s_cmp_lg_u32 s47, 1"); e("s_cbranch_scc1 L_km_go")
    c("issue side moves on to K of the B unit")
    BB = [int(z) for z in bb.split(".")]; TB = [q for q in range(16, 21) if q not in BB]
    def scat(dst, src, lo, bits, first=False):
        for k, q in enumerate(bits):
            t = dst if first and k == 0 else 51
            e(f"s_bfe_u32 s{t}, s{src}, {(1 << 16) | (lo + k):#x}"); e(f"s_lshl_b32 s{t}, s{t}, {q}")
            if t != dst: e(f"s_or_b32 s{dst}, s{dst}, s51")
    e("s_lshr_b32 s52, s31, 4"); e("s_lshl3_add_u32 s50, s52, s30")
    e("s_lshl_b32 s51, s50, 22"); e("s_or_b32 s41, s41, s51")
    if tbl: e("s_or_b32 s41, s41, s81")
    else: scat(41, 31, 2, BB)
    set_src(16, 41, 0)
    e(f"s_mul_i32 s50, s50, {m2}")
    if m3: e("s_bfe_u32 s51, s31, 0x20002"); e(f"s_mul_i32 s51, s51, {m3}"); e("s_add_u32 s50, s50, s51")
    if m4: e(f"s_mul_i32 s51, s52, {m4}"); e("s_add_u32 s50, s50, s51")
    scat(44, 50, 0, TB, True)
    e(f"s_mov_b32 s45, {sum(1 << q for q in TB):#x}")
    if tbl: e("s_mov_b32 s44, s82"); e("s_mov_b32 s45, s83")
    lab("L_km_go")
    k_iter(False)
    e("s_sub_u32 s47, s47, 1"); e("s_cmp_lg_u32 s47, 0"); e("s_cbranch_scc1 L_km")
    stamp(2)
    e(f"s_mov_b32 s50, {spin}")
    lab("L_wqb")
    e("ds_read_b32 v7, v14"); e(f"ds_read_b128 v[32:35], v2 offset:{L_QB}")
    e("s_waitcnt lgkmcnt(0)")
    e("v_readfirstlane_b32 s51, v7"); e("s_sub_u32 s50, s50, 1")
    e("s_cbranch_scc1 L_wqb_done")
    e("s_cmp_eq_u32 s51, 0"); e("s_cbranch_scc1 L_wqb")
    lab("L_wqb_done")
    e("s_mov_b32 s47, 2"); e("v_mov_b32 v1, v39")
    lab("L_kg")
    e("s_cmp_lg_u32 s47, 1"); e("s_cbranch_scc1 L_kg_go")
    set_src(18, 41, 3)
    lab("L_kg_go")
    k_iter(True)
    e("s_sub_u32 s47, s47, 1"); e("s_cmp_lg_u32 s47, 0"); e("s_cbranch_scc1 L_kg")
    e("ds_read_b128 v[76:79], v39"); e("v_mov_b32 v1, v39")
    xrow_max(11, 89)
    e("v_mul_f32 v12, s48, v11")
    e("s_mov_b32 s47, 2")
    lab("L_vg")
    e("s_cmp_lg_u32 s47, 1"); e("s_cbranch_scc1 L_vg_go")
    set_src(8, 40, 3); e("s_mov_b32 s44, s49"); e("s_mov_b32 s45, 0x1f0000")
    lab("L_vg_go")
    v_iter(True)
    e("s_sub_u32 s47, s47, 1"); e("s_cmp_lg_u32 s47, 0"); e("s_cbranch_scc1 L_vg")
    c("hand the B partial of this wave to the agent through LDS")
    e(f"s_mul_i32 s50, s3, {RECB}"); e(f"s_add_u32 s50, s50, {L_RECB}")
    e("v_lshl_add_u32 v6, v0, 5, s50"); e("v_lshl_add_u32 v7, v0, 2, s50")
    e("ds_write_b128 v6, v[48:51]"); e("ds_write_b128 v6, v[52:55] offset:16")
    e("ds_write_b32 v7, v12 offset:2048"); e("ds_write_b32 v7, v13 offset:2304")
    e("ds_add_u32 v14, v15 offset:4")
    stamp(3)

    c("max over all keys of this wave")
    e("ds_read_b128 v[76:79], v38"); e("v_mov_b32 v1, v38")
    e(f"v_max_f32_dpp v8, v8, v8 row_ror:4 {DPP}"); e("s_nop 1")
    e(f"v_max_f32_dpp v8, v8, v8 row_ror:8 {DPP}")
    xrow_max(8, 89)
    e("v_mul_f32 v9, s48, v8")
    e("s_mov_b32 s47, 6")
    lab("L_vm")
    v_iter(False)
    e("s_sub_u32 s47, s47, 1"); e("s_cmp_lg_u32 s47, 0"); e("s_cbranch_scc1 L_vm")
    c("last 16 steps: the arithmetic catches up with the loads, so little is left when the last one lands")
    def v_step(st, pos=None, mid=None):
        if st not in (0, 4) or not pace: e("s_waitcnt lgkmcnt(0)")
        nx = 76 + 4 * ((st + 1) % 2)
        e(f"ds_read_b128 v[{nx}:{nx+3}], v1 offset:{64*(st+1)}")
        for x in probs(76 + 4 * (st % 2), 96, 9, 10): e(x)
        if mid is not None: wi(mid, True)
        if st >= 8: e(f"s_waitcnt vmcnt({pos - (4*(st-8) + 3)})")
        for j in range(4):
            pv_mfma(40, 96 + 2 * j, 4 * (st % 8) + j, 0); pv_mfma(40, 96 + 2 * j, 4 * (st % 8) + j, 1)
    for st in range(8):
        if st % 4 == 0: pick_mask()
        v_step(st, None, 2 * st - 1 if st else None)
        wi(2 * st, True)
    for k, st in enumerate(range(8, 12)):
        v_step(st, 15 + 2 * k, 15 + 2 * k)
        if k == 0: pick_mask()
        wi(16 + 2 * k, True)
    wi(23, True); pick_mask()
    if not pace: e("s_waitcnt lgkmcnt(0)")
    e(f"s_mul_i32 s50, s3, {RECA}"); e(f"s_add_u32 s50, s50, {L_RECA}")
    e("v_add_u32 v6, s50, v3"); e("v_lshl_add_u32 v7, v0, 2, s50")
    e("s_lshl_b32 s50, s3, 2"); e("v_mov_b32 v14, s50")
    for st in range(13, 16): e(f"ds_read_b128 v[{4+4*st}:{7+4*st}], v1 offset:{64*st}")
    e(f"ds_write_b32 v14, v9 offset:{L_MA}")
    for k, sr in enumerate((76, 56, 60, 64)):
        if k == 1: e("s_waitcnt lgkmcnt(0)")
        for x in probs(sr, 96 + 8 * k, 9, 10): e(x)
        wi(24 + k, True)
    e("ds_write_b32 v7, v10 offset:256")
    e("s_mov_b32 s40, s24"); e("s_mov_b32 s41, s25"); e("s_mov_b32 s42, 4096")
    for p in range(16, 32):
        if p < 20: wi(12 + p, True)
        if p == 19:
            stamp(4)
            e(f"s_add_u32 s36, s28, {wsoff<<20:#x}"); e("s_addc_u32 s37, s29, 0")
        e(f"s_waitcnt vmcnt({min(12 + p, 31) - p})")
        for hf in range(2): pv_mfma(40, 96 + 2 * (p - 16), p, hf)
    c("A partial of this wave -> LDS")
    e("s_nop 5")
    e("s_mov_b64 exec, 0xffff")
    for k in range(4): e(f"v_cvt_pk_bf16_f32 v{40+k}, v{40+2*k}, v{41+2*k}")
    e("ds_write_b128 v6, v[40:43]")
    e("s_mov_b64 exec, -1")
    e("s_waitcnt lgkmcnt(0)")
    stamp(5)
    e("s_barrier")
    stamp(0, 2); stamp(1, 2); stamp(2, 2); stamp(3, 2)
    e("s_cmp_lg_u32 s3, 0"); e("s_cbranch_scc1 L_red")
    c("wave 0 publishes (M, L) of the workgroup: lane = (w, row)")
    e("v_and_b32 v6, 12, v0"); e("v_and_b32 v7, 3, v0"); e("v_lshlrev_b32 v7, 6, v7")
    e(f"s_movk_i32 s50, {RECA//4}"); e("v_mad_u32_u24 v7, v6, s50, v7")
    e(f"ds_read_b32 v16, v6 offset:{L_MA}"); e(f"ds_read_b32 v17, v7 offset:{L_RECA+256}")
    e("s_and_b32 s51, s31, 3"); e("s_lshl2_add_u32 s50, s32, s51"); e("s_lshl_b32 s50, s50, 4")
    e("s_bfe_u32 s51, s2, 0x10005"); e(f"s_mul_i32 s51, s51, {MLS*mlr}"); e("s_add_u32 s50, s50, s51"); e(f"s_add_u32 s50, s50, {MLA:#x}")
    e(f"v_mul_u32_u24 v18, {MLS}, v0")
    e("v_mov_b32 v19, s55"); e("v_lshrrev_b32 v22, 16, v19"); e("v_lshrrev_b32 v23, 24, v19")
    e("s_waitcnt lgkmcnt(0)")
    e(f"v_max_f32_dpp v20, v16, v16 row_ror:4 {DPP}"); e("s_nop 1")
    e(f"v_max_f32_dpp v20, v20, v20 row_ror:8 {DPP}")
    e("v_and_b32 v20, s94, v20")
    e("v_sub_f32 v16, v16, v20"); e("v_exp_f32 v16, v16"); e("v_perm_b32 v20, v20, v19, s56"); e("v_mul_f32 v21, v16, v17"); e("s_nop 1")
    for d in ("quad_perm:[1,0,3,2]", "quad_perm:[2,3,0,1]", "row_ror:4", "row_ror:8"):
        e(f"v_add_f32_dpp v21, v21, v21 {d} {DPP}")
        if d != "row_ror:8": e("s_nop 1")
    e("v_perm_b32 v21, v21, v19, s57")
    e(f"s_mov_b64 exec, {(1 << mlr) - 1:#x}")
    e("buffer_store_dwordx4 v[20:23], v18, s[36:39], s50 offen sc1")
    e("s_mov_b64 exec, -1")
    lab("L_red")
    e("s_cmp_ge_u32 s2, 64"); e("s_cbranch_scc1 L_sdone")
    c("reducers: b = (id>>4)&1, one 128-byte line of every contribution; lane = (row, granule)")
    e("v_lshrrev_b32 v6, 3, v0"); e("v_and_b32 v14, 7, v0")
    e("v_bfe_u32 v8, v0, 4, 1"); e("v_lshrrev_b32 v9, 5, v0"); e("v_lshl_add_u32 v8, v8, 1, v9")
    e("v_lshlrev_b32 v10, 3, v0")
    e("s_bfe_u32 s48, s2, 0x10004"); e("s_bfe_u32 s49, s2, 0x20002")
    e("s_lshl_b32 s44, s48, 11"); e("s_lshl_b32 s45, s49, 8"); e("s_add_u32 s44, s44, s45")
    e(f"s_lshl_b32 s54, s3, 7")
    e(f"s_mov_b32 s50, {rspin}")
    e("s_cmp_ge_u32 s2, 32"); e("s_cbranch_scc1 L_redb")
    c("branch A: wave = 8 heads x 4 splits; column = quarter*128 + half*64 + k*16 + (id&1)*8 + granule")
    e("v_and_b32 v11, 3, v0")
    e("v_lshlrev_b32 v7, 6, v6"); e("v_lshl_add_u32 v7, v11, 4, v7")
    e(f"s_mul_i32 s52, s2, {YAS}"); e("s_lshl_b32 s51, s3, 10"); e("s_add_u32 s52, s52, s51"); e(f"s_add_u32 s52, s52, {YA:#x}")
    for q in range(1, 4): e(f"s_add_u32 s{[0,53,62,63][q]}, s52, {4096*q}")
    e(f"s_and_b32 s51, s2, {mlr-1}"); e(f"s_mul_i32 s45, s48, {mlr}"); e("s_add_u32 s51, s51, s45"); e(f"s_mul_i32 s51, s51, {MLS}")
    e("s_lshl_b32 s45, s3, 9"); e("s_add_u32 s51, s51, s45"); e(f"s_add_u32 s51, s51, {MLA:#x}")
    e("v_lshl_add_u32 v8, v8, 3, v14"); e("v_lshl_add_u32 v8, v8, 2, s54")
    e("v_lshrrev_b32 v9, 2, v0"); e("v_lshlrev_b32 v9, 5, v9"); e("v_lshl_add_u32 v9, v11, 2, v9")
    e("s_and_b32 s45, s2, 2"); e("s_lshl_b32 s45, s45, 6"); e("s_add_u32 s44, s44, s45")
    e("s_and_b32 s45, s2, 1"); e("s_lshl4_add_u32 s44, s45, s44")
    if rw: e("s_barrier")
    if rd: e(f"s_sleep {rd}")
    def ra_loads():
        e("buffer_load_dwordx4 v[40:43], v7, s[36:39], s51 offen sc1")
        for q in range(4): e(f"buffer_load_dwordx4 v[{24+4*q}:{27+4*q}], v3, s[36:39], s{[52,53,62,63][q]} offen sc1")
    def ra_check(W):
        e("s_mov_b64 s[46:47], exec")
        e(f"s_waitcnt vmcnt({W+4})"); get_tag(16, 40, 0)
        for k in range(2): e(f"v_and_b32 v{80+k}, s94, v{40+k}")
        for q in range(4):
            e(f"s_waitcnt vmcnt({W+3-q})"); get_tag(17 + q, 24 + 4 * q, 0)
            for k in range(4): e(f"v_and_b32 v{64+4*q+k}, s94, v{24+4*q+k}")
        for q in range(5): e(f"v_cmpx_eq_u32 vcc, s55, v{16+q}")
    if pd:
        ra_loads(); ra_check(0)
        e("s_andn2_b64 exec, s[46:47], vcc"); e("s_cbranch_scc0 L_rdone")
        for _ in range(pn):
            ra_loads(); e(f"s_sleep {pd}")
    lab("L_rpoll")
    ra_loads(); ra_check(5 * pn if pd else 0)
    e("s_sub_u32 s50, s50, 1"); e("s_cbranch_scc1 L_rdone")
    if rsl:
        e("s_andn2_b64 exec, s[46:47], vcc"); e("s_cbranch_scc0 L_rdone"); e(f"s_sleep {rsl}"); e("s_branch L_rpoll")
    else:
        e("s_andn2_b64 exec, s[46:47], vcc"); e("s_cbranch_scc1 L_rpoll")
    lab("L_rdone")
    stamp(1, 2)
    if stamps >= 3:
        e(f"s_sub_u32 s72, {rspin}, s50"); e("s_mul_i32 s72, s72, 100"); e("s_add_u32 s72, s72, s60"); e("s_addc_u32 s73, s61, 0")
    e("s_mov_b64 exec, -1"); e("s_nop 1")
    e(f"v_max_f32_dpp v15, v80, v80 quad_perm:[1,0,3,2] {DPP}"); e("s_nop 1")
    e(f"v_max_f32_dpp v15, v15, v15 quad_perm:[2,3,0,1] {DPP}")
    e("v_sub_f32 v16, v80, v15"); e("v_exp_f32 v16, v16"); e("s_nop 0"); e("v_mul_f32 v15, v16, v81")
    e(f"v_mul_f32_dpp v56, v16, v64 quad_perm:[0,0,0,0] {DPP}"); e(f"v_mul_f32_dpp v57, v16, v65 quad_perm:[0,0,0,0] {DPP}")
    e(f"v_add_f32_dpp v15, v15, v15 quad_perm:[1,0,3,2] {DPP}")
    e(f"v_mul_f32_dpp v58, v16, v66 quad_perm:[0,0,0,0] {DPP}"); e(f"v_mul_f32_dpp v59, v16, v67 quad_perm:[0,0,0,0] {DPP}")
    e(f"v_add_f32_dpp v15, v15, v15 quad_perm:[2,3,0,1] {DPP}")
    e("v_rcp_f32 v15, v15")
    for q in range(1, 4):
        for k in range(4): e(f"v_fmac_f32_dpp v{56+k}, v16, v{64+4*q+k} quad_perm:[{q},{q},{q},{q}] {DPP}")
    for k in range(4): e(f"v_mul_f32 v{56+k}, v15, v{56+k}")
    lab("L_rsum")
    c("sum v[56:59] over lane bits 5,4,3: row r ends with component [0,2,1,3][r]")
    e("s_nop 0")
    e("v_permlane32_swap_b32 v56, v57"); e("v_permlane32_swap_b32 v58, v59")
    e("v_add_f32 v56, v56, v57"); e("v_add_f32 v58, v58, v59"); e("s_nop 1")
    e("v_permlane16_swap_b32 v56, v58")
    e("v_add_f32 v56, v56, v58"); e("s_nop 1")
    e(f"v_add_f32_dpp v56, v56, v56 row_ror:8 {DPP}")
    e(f"ds_write_b32 v8, v56 offset:{L_RED}")
    e("s_waitcnt lgkmcnt(0)")
    e("s_barrier")
    stamp(2, 2)
    e("s_cmp_lg_u32 s3, 0"); e("s_cbranch_scc1 L_sdone")
    e("s_mov_b64 exec, 0xffff")
    for w in range(4): e(f"ds_read_b64 v[{60+2*w}:{61+2*w}], v10 offset:{L_RED + w*128}")
    e("s_waitcnt lgkmcnt(2)")
    e("v_add_f32 v60, v60, v62"); e("v_add_f32 v61, v61, v63")
    e("s_waitcnt lgkmcnt(0)")
    e("v_add_f32 v64, v64, v66"); e("v_add_f32 v65, v65, v67")
    e("v_add_f32 v60, v60, v64"); e("v_add_f32 v61, v61, v65")
    e("v_cvt_pk_bf16_f32 v60, v60, v61")
    e("buffer_store_dword v60, v9, s[40:43], s44 offen")
    stamp(3, 2)
    c("workgroup 32 has seen data that depends on every workgroup, so all have read the old tag: leave the new one")
    e("s_cmp_lg_u32 s2, 32"); e("s_cbranch_scc1 L_sdone")
    e(f"s_mov_b32 s50, {EPOCH:#x}"); e("v_mov_b32 v61, s55")
    e("s_mov_b64 exec, 1"); e("buffer_store_dword v61, off, s[36:39], s50 sc1")
    lab("L_sdone")
    if diagw:
        lab("L_diag")
        e("s_memrealtime s[62:63]"); e("s_waitcnt lgkmcnt(0)")
        e("s_sub_u32 s62, s62, s60"); e(f"s_cmp_lt_u32 s62, {diagw*100}"); e("s_cbranch_scc1 L_diag")
    if stamps:
        e("s_cmp_lg_u32 s3, 0"); e("s_cbranch_scc1 L_end")
        e("s_waitcnt vmcnt(0)")
        e("s_memrealtime s[62:63]"); e("s_getreg_b32 s50, hwreg(HW_REG_XCC_ID)"); e("s_waitcnt lgkmcnt(0)")
        e("s_mov_b64 exec, 1"); e("s_mov_b32 s36, s28"); e("s_mov_b32 s37, s29")
        for k in range(4): e(f"v_mov_b32 v{16+k}, s{60+k}")
        e("s_lshl_b32 s51, s2, 4"); e("buffer_store_dwordx4 v[16:19], off, s[36:39], s51")
        e("v_mov_b32 v20, s50"); e("s_lshl_b32 s51, s2, 2"); e("s_add_u32 s51, s51, 0x10000")
        e("buffer_store_dword v20, off, s[36:39], s51")
        for k in range(12): e(f"v_mov_b32 v{24+k}, s{64+k}")
        e("s_lshl_b32 s51, s2, 7"); e("s_add_u32 s51, s51, 0x20000")
        for k in range(3): e(f"buffer_store_dwordx4 v[{24+4*k}:{27+4*k}], off, s[36:39], s51 offset:{16*k}")
    e("s_endpgm")
    lab("L_redb")
    c("branch B: wave = 8 heads; column = 512 + quarter*128 + ((id&1)*8 + granule)*8 + half*4 + k")
    e(f"s_mul_i32 s52, s2, {YBS}"); e("s_lshl_b32 s51, s3, 10"); e("s_add_u32 s52, s52, s51"); e(f"s_add_u32 s52, s52, {YB - 32*YBS:#x}")
    e("v_lshl_add_u32 v8, v14, 2, v8"); e("v_lshl_add_u32 v8, v8, 2, s54")
    e("v_lshrrev_b32 v9, 1, v0"); e("v_lshlrev_b32 v9, 4, v9"); e("v_and_b32 v11, 1, v0"); e("v_lshl_add_u32 v9, v11, 2, v9")
    e("s_and_b32 s45, s2, 1"); e("s_lshl_b32 s45, s45, 7"); e("s_add_u32 s44, s44, s45")
    e("s_and_b32 s45, s2, 2"); e("s_lshl2_add_u32 s44, s45, s44"); e("s_add_u32 s44, s44, 1024")
    if rwb: e("s_barrier")
    if rdb: e(f"s_sleep {rdb}")
    lab("L_bpoll")
    e("buffer_load_dwordx4 v[56:59], v3, s[36:39], s52 offen sc1")
    e("s_waitcnt vmcnt(0)"); get_tag(16, 56)
    e("v_cmp_ne_u32 vcc, s55, v16")
    e("s_sub_u32 s50, s50, 1"); e("s_cbranch_scc1 L_bdone")
    e("s_and_b64 exec, exec, vcc"); e("s_cbranch_scc1 L_bpoll")
    lab("L_bdone")
    stamp(1, 2)
    e("s_mov_b64 exec, -1")
    e("s_branch L_rsum")

    lab("L_helper")
    e(f"v_mov_b32 v41, {L_FLAG}")
    for k in range(4): e(f"v_mov_b32 v{28+k}, 0")
    e("ds_write_b128 v41, v[28:31]"); e("ds_write_b128 v41, v[28:31] offset:16")
    e("s_sub_u32 s33, s3, 4")
    e("s_and_b32 s54, s31, 7")
    e("v_and_b32 v1, 15, v0")
    e("v_lshrrev_b32 v2, 4, v0")
    e("v_bfe_u32 v34, v0, 3, 1")
    e("v_lshlrev_b32 v3, 18, v2"); e("v_lshl_add_u32 v3, v1, 4, v3")
    e("v_lshlrev_b32 v35, 10, v34"); e("v_lshl_add_u32 v35, v2, 6, v35")
    e("s_and_b32 s49, s31, 3")
    e("s_lshl_b32 s50, s32, 8"); e("s_lshl_b32 s51, s49, 20"); e("s_add_u32 s50, s50, s51"); e("s_lshl_b32 s51, s49, 8")
    e("s_movk_i32 s38, 2048")
    e("s_cmp_lt_u32 s54, 4")
    e("s_waitcnt lgkmcnt(0)")
    e("s_cselect_b32 s36, s4, s14"); e("s_cselect_b32 s37, s5, s15"); e("s_cselect_b32 s40, s10, s20"); e("s_cselect_b32 s41, s11, s21")
    if hb < 0: e("s_barrier")
    e("s_cmp_lg_u32 s33, 0"); e("s_cbranch_scc1 L_hc")
    c("helper 0: 128 of the 512 rows of the q projection of head h (branch A for j < 4, else branch B)")
    for k in range(4): e(f"buffer_load_dwordx4 v[{8+4*k}:{11+4*k}], v35, s[36:39], s51 offen offset:{16*k}")
    for t in range(32):
        e(f"buffer_load_dwordx4 v[{64+4*t}:{67+4*t}], v3, s[40:43], s50 offen nt")
        if t < 31: e("s_addk_i32 s50, 0x2000")
    e(f"s_add_u32 s52, s28, {(wsoff<<20) + EPOCH:#x}"); e("s_addc_u32 s53, s29, 0")
    e("s_load_dword s55, s[52:53], 0")
    lab("L_hc")
    c("diagonal masks m_i: e=l&7 ; (e>>1==i) ? half(e&1) : 0")
    e("v_and_b32 v24, 1, v0"); e("v_lshlrev_b32 v24, 4, v24"); e("v_mov_b32 v25, 0xffff"); e("v_lshlrev_b32 v24, v24, v25")
    e("v_bfe_u32 v25, v0, 1, 2")
    for i in range(4):
        e(f"v_cmp_eq_u32 vcc, {i}, v25"); e("s_nop 1"); e(f"v_cndmask_b32 v{4+i}, 0, v24, vcc")
    e("v_lshlrev_b32 v40, 4, v0"); e("v_mov_b32 v60, 0")
    e(f"s_add_u32 s44, s28, {wsoff<<20:#x}"); e("s_addc_u32 s45, s29, 0"); e("s_mov_b32 s46, s42"); e("s_mov_b32 s47, s43")
    tag_consts()
    def lds_wait(off, val, sl=16):
        n = u()
        e(f"s_mov_b32 s50, {spin}")
        lab(f"L_p{n}")
        e(f"ds_read_b32 v24, v41 offset:{off}"); e("s_waitcnt lgkmcnt(0)")
        e("v_readfirstlane_b32 s51, v24"); e("s_sub_u32 s50, s50, 1"); e(f"s_cbranch_scc1 L_pd{n}")
        e(f"s_cmp_ge_u32 s51, {val}"); e(f"s_cbranch_scc1 L_pd{n}")
        e(f"s_sleep {sl}"); e(f"s_branch L_p{n}")
        lab(f"L_pd{n}")
    e("s_cmp_lg_u32 s33, 0"); e("s_cbranch_scc1 L_hb")
    e("s_waitcnt lgkmcnt(0)")
    e("s_add_u32 s55, s55, 0x04030201"); e("v_mov_b32 v63, s55"); e("v_mov_b32 v62, 1")
    def rows_mfma(waits):
        e("s_mov_b32 s52, 0x01000100"); e("s_mov_b32 s53, 0x03020302")
        if waits: e("s_waitcnt vmcnt(32)")
        for s_ in range(32):
            e(f"v_perm_b32 v32, v{8 + s_//2}, v{8 + s_//2}, s{52 + s_%2}")
            for i in range(4): e(f"v_and_b32 v{24+i}, v32, v{4+i}")
            if waits: e(f"s_waitcnt vmcnt({31-s_})"); e("s_nop 0")
            else: e("s_nop 1")
            e(f"v_mfma_f32_16x16x32_bf16 v[56:59], v[24:27], v[{64+4*s_}:{67+4*s_}], {'v[56:59]' if s_ else '0'}")
            if waits and s_ == hb: e("s_barrier")
    rows_mfma(True)
    e("s_lshl_b32 s52, s32, 13"); e(f"s_add_u32 s52, s52, {QP:#x}")
    e("s_lshl_b32 s51, s54, 10"); e("s_add_u32 s51, s51, s52")
    e("s_nop 3")
    put_tag(56, 63)
    e("buffer_store_dwordx4 v[56:59], v40, s[44:47], s51 offen sc1")
    def poll_begin(g=None):
        n = u(); e(f"s_mov_b32 s79, {gspin if g is None else g}"); lab(f"L_g{n}"); return n
    def poll_end(n, sl):
        e("s_not_b64 s[80:81], vcc"); e("s_mov_b64 exec, -1"); e(f"s_cbranch_scc0 L_gd{n}")
        e("s_sub_u32 s79, s79, 1"); e(f"s_cbranch_scc1 L_gd{n}")
        if sl: e(f"s_sleep {sl}")
        e(f"s_branch L_g{n}")
        lab(f"L_gd{n}")
    if stamps: e("s_memrealtime s[86:87]")
    c("helper 0 adds up the four branch-A slices for this workgroup's batch")
    e("v_and_b32 v42, 31, v0"); e("v_lshlrev_b32 v42, 4, v42"); e("v_lshrrev_b32 v24, 5, v0"); e("v_lshl_add_u32 v42, v24, 10, v42")
    e("v_lshlrev_b32 v43, 4, v1"); e("v_lshl_add_u32 v43, v24, 2, v43"); e("v_and_b32 v24, 1, v2"); e("v_lshl_add_u32 v43, v24, 3, v43")
    e("s_and_b32 s51, s2, 32"); e("s_lshl4_add_u32 s52, s51, s52")
    e("s_waitcnt vmcnt(0)")
    if stamps: e("s_memrealtime s[88:89]")
    lds_wait(28, 1, 2)
    n = poll_begin(spin)
    for t in range(2): e(f"buffer_load_dwordx4 v[{8+4*t}:{11+4*t}], v42, s[44:47], s52 offen offset:{2048*t} sc1")
    for t in range(2):
        e(f"s_waitcnt vmcnt({1-t})"); get_tag(24 + t, 8 + 4 * t)
    for t in range(2): e(f"v_cmpx_eq_u32 vcc, s55, v{24+t}")
    poll_end(n, qslp)
    for k in range(4): e(f"v_add_f32 v{8+k}, v{8+k}, v{12+k}")
    e("s_nop 0")
    e("v_permlane32_swap_b32 v8, v10"); e("v_permlane32_swap_b32 v9, v11")
    e("v_add_f32 v8, v8, v10"); e("v_add_f32 v9, v9, v11")
    e("v_cvt_pk_bf16_f32 v8, v8, v9")
    e(f"ds_write_b32 v43, v8 offset:{L_QA}")
    e("ds_write_b64 v41, v[62:63] offset:16")
    if stamps: e("s_memrealtime s[82:83]")
    lab("L_hb")
    e("s_cmp_eq_u32 s33, 2"); e("s_cbranch_scc1 L_pacer")
    def get_launch_tag():
        lds_wait(16, 1, 4)
        e("ds_read_b32 v63, v41 offset:20"); e("s_waitcnt lgkmcnt(0)")
        e("v_readfirstlane_b32 s55, v63")
    e("s_cmp_eq_u32 s33, 1"); e("s_cbranch_scc1 L_agent")
    if hb >= 0:
        e("s_cmp_eq_u32 s33, 0"); e("s_cbranch_scc1 L_h0"); e("s_barrier"); lab("L_h0")
    get_launch_tag()
    def wo_tiles():
        e("s_lshl_b32 s50, s33, 15"); e(f"s_add_u32 s50, s50, {L_WO}")
        e("v_lshrrev_b32 v33, 2, v1"); e("v_lshl_add_u32 v33, v2, 3, v33"); e("v_lshlrev_b32 v33, 8, v33")
        e("v_and_b32 v24, 3, v0"); e("v_lshl_add_u32 v33, v24, 3, v33"); e("v_add_u32 v33, s50, v33")
        for nb in range(8):
            for kb in range(4):
                r = 128 + 4 * (nb * 4 + kb)
                for hh in range(2):
                    e(f"ds_read_b64_tr_b16 v[{r+2*hh}:{r+2*hh+1}], v33 offset:{kb*8192 + hh*1024 + nb*32}")
            e("s_waitcnt lgkmcnt(0)")
    e("s_branch L_htiles")

    lab("L_agent")
    e("s_cmp_lt_u32 s54, 4"); e("s_cbranch_scc1 L_j2")
    c("wo_B slice (four workgroups per head): slot s holds row h*128 + 4*(s ^ 4*(h&7)) + g, columns (j&3)*128..")
    e("s_lshl_b32 s50, s32, 17"); e("s_and_b32 s51, s54, 3"); e("s_lshl_b32 s51, s51, 8"); e("s_add_u32 s50, s50, s51")
    e("s_mov_b32 s40, s22"); e("s_mov_b32 s41, s23")
    e("v_lshlrev_b32 v3, 10, v2"); e("v_lshl_add_u32 v3, v1, 4, v3")
    e("s_and_b32 s51, s32, 7"); e("s_lshl_b32 s51, s51, 14"); e("s_add_u32 s53, s50, s51")
    for s_ in range(32):
        e(f"s_xor_b32 s50, s53, {s_<<12:#x}")
        if s_ >= wth: e(f"s_waitcnt vmcnt({wth-1})")
        e(f"buffer_load_dwordx4 v[{64+4*s_}:{67+4*s_}], v3, s[40:43], s50 offen nt")
    lab("L_j2")
    if hb >= 0: e("s_barrier")
    get_launch_tag()
    c("job 1: add up line j of the slices of head h")
    e("s_lshl_b32 s52, s32, 13"); e("s_lshl_b32 s51, s54, 7"); e("s_add_u32 s52, s52, s51"); e(f"s_add_u32 s52, s52, {QP + 4096:#x}")
    e("v_bfe_u32 v42, v0, 3, 2"); e("v_lshlrev_b32 v42, 10, v42"); e("v_and_b32 v24, 7, v0"); e("v_lshl_add_u32 v42, v24, 4, v42")
    if T1: lds_wait(8, 4 * 256 * T1 - 768 + 256 * pt)
    n = poll_begin()
    e("s_mov_b32 exec_hi, 0")
    e("buffer_load_dwordx4 v[8:11], v42, s[44:47], s52 offen sc1")
    e("s_waitcnt vmcnt(0)")
    get_tag(16, 8); e("v_cmp_eq_u32 vcc, s55, v16")
    e("s_nop 0"); e("s_mov_b32 vcc_hi, vcc_lo")
    poll_end(n, slp)
    for k in range(4): e(f"v_add_f32_dpp v{8+k}, v{8+k}, v{8+k} row_ror:8 {DPP}")
    for sw in (16,):
        for k in range(4): e(f"v_mov_b32 v{12+k}, v{8+k}")
        e("s_nop 0")
        for k in range(4): e(f"v_permlane{sw}_swap_b32 v{8+k}, v{12+k}")
        for k in range(4): e(f"v_add_f32 v{8+k}, v{8+k}, v{12+k}")
    put_tag(8, 63)
    e("s_lshl3_add_u32 s50, s32, s54"); e("s_lshl_b32 s50, s50, 7"); e(f"s_add_u32 s50, s50, {QB:#x}")
    e("s_mov_b64 exec, 0xff"); e("buffer_store_dwordx4 v[8:11], v40, s[44:47], s50 offen sc1"); e("s_mov_b64 exec, -1")
    c("job 2: q of the four heads of this workgroup's B unit -> LDS; lane = (head&1, half, c)")
    e("v_and_b32 v42, 31, v0"); e("v_lshlrev_b32 v42, 4, v42"); e("v_lshrrev_b32 v24, 5, v0"); e("v_lshl_add_u32 v42, v24, 10, v42")
    e("v_lshlrev_b32 v43, 4, v1"); e("v_lshl_add_u32 v43, v24, 8, v43"); e("v_and_b32 v24, 1, v2"); e("v_lshl_add_u32 v43, v24, 3, v43")
    e("s_lshl_b32 s52, s30, 12"); e("s_lshr_b32 s51, s31, 4"); e("s_lshl_b32 s51, s51, 9"); e("s_add_u32 s52, s52, s51")
    e(f"s_add_u32 s52, s52, {QB:#x}")
    lds_wait(8, 4 * 256 * T2 - 768 + 256 * pt)
    n = poll_begin()
    e("buffer_load_dwordx4 v[8:11], v42, s[44:47], s52 offen sc1")
    e("buffer_load_dwordx4 v[12:15], v42, s[44:47], s52 offen offset:2048 sc1")
    e("s_waitcnt vmcnt(0)")
    get_tag(16, 8); get_tag(17, 12)
    e("v_cmpx_eq_u32 vcc, s55, v16"); e("v_cmpx_eq_u32 vcc, s55, v17")
    poll_end(n, slp)
    for q in range(4): e(f"v_cvt_pk_bf16_f32 v{16+q}, v{8+2*q}, v{9+2*q}")
    e(f"ds_write_b64 v43, v[16:17] offset:{L_QB}"); e(f"ds_write_b64 v43, v[18:19] offset:{L_QB+512}")
    lds_wait(24, 2)
    e("v_mov_b32 v25, 1")
    e("ds_write_b32 v41, v25")
    c("job 3: merge the four waves' B partials, publish (outputs first, then the tagged max/sum line)")
    lds_wait(4, 256)
    e("v_lshlrev_b32 v42, 4, v2")
    e("v_lshlrev_b32 v43, 5, v0")
    for w in range(4): e(f"ds_read_b32 v{8+w}, v42 offset:{L_RECB + w*RECB + 2048}")
    e("s_waitcnt lgkmcnt(0)")
    for w in range(4):
        for a in range(4): e(f"ds_read_b32 v{12+4*w+a}, v42 offset:{L_RECB + w*RECB + 2304 + 64*a}")
        e("s_waitcnt lgkmcnt(0)")
    e("v_max3_f32 v44, v8, v9, v10"); e("v_max_f32 v44, v44, v11")
    e("v_and_b32 v44, s94, v44")
    for w in range(4): e(f"v_sub_f32 v{8+w}, v{8+w}, v44")
    for w in range(4): e(f"v_exp_f32 v{8+w}, v{8+w}")
    e("v_mov_b32 v45, 0"); e("v_lshrrev_b32 v46, 16, v63"); e("v_lshrrev_b32 v47, 24, v63")
    for w in range(4):
        for a in range(4): e(f"v_fmac_f32 v45, v{8+w}, v{12+4*w+a}")
    e("v_perm_b32 v44, v44, v63, s56"); e("v_perm_b32 v45, v45, v63, s57")
    for k in range(8): e(f"v_mov_b32 v{48+k}, 0")
    for w in range(4):
        e(f"ds_read_b128 v[12:15], v43 offset:{L_RECB + w*RECB}")
        e(f"ds_read_b128 v[16:19], v43 offset:{L_RECB + w*RECB + 16}")
        e("s_waitcnt lgkmcnt(0)")
        for k in range(8): e(f"v_fmac_f32 v{48+k}, v{8+w}, v{12+k}")
    for k in range(4): e(f"v_cvt_pk_bf16_f32 v{48+k}, v{48+2*k}, v{49+2*k}")
    e("s_lshr_b32 s52, s31, 4"); e("s_lshl3_add_u32 s52, s52, s30")
    e("s_and_b32 s51, s31, 15"); e("s_lshl4_add_u32 s52, s52, s51")
    e("s_lshl_b32 s50, s52, 10"); e(f"s_add_u32 s50, s50, {PBO:#x}")
    e("buffer_store_dwordx4 v[48:51], v40, s[44:47], s50 offen sc1")
    e("s_lshl_b32 s50, s52, 7"); e(f"s_add_u32 s50, s50, {PBML:#x}")
    e("v_lshlrev_b32 v42, 5, v2"); e("v_lshl_add_u32 v42, v1, 4, v42")
    e("s_waitcnt vmcnt(0)")
    e("s_mov_b32 exec_lo, 0x00030003"); e("s_mov_b32 exec_hi, 0x00030003")
    e("buffer_store_dwordx4 v[44:47], v42, s[44:47], s50 offen sc1")
    e("s_mov_b64 exec, -1")
    e("s_cmp_lt_u32 s54, 4"); e("s_cbranch_scc1 L_htiles")
    c("job 4: finish head h (both batches), multiply by the wo slice")
    e("v_lshrrev_b32 v42, 5, v0")
    e("v_lshlrev_b32 v43, 14, v42"); e("v_lshl_add_u32 v43, v1, 7, v43")
    e("v_and_b32 v47, 1, v2")
    e("v_lshlrev_b32 v35, 17, v42"); e("v_lshl_add_u32 v35, v47, 10, v35"); e("v_lshl_add_u32 v35, v1, 4, v35")
    e("v_lshl_add_u32 v33, v42, 5, v47"); e("v_lshlrev_b32 v33, 2, v33")
    e("s_lshr_b32 s51, s31, 3")
    e("s_lshl_b32 s52, s30, 11"); e("s_lshl_b32 s53, s51, 5"); e("s_add_u32 s52, s52, s53"); e(f"s_add_u32 s52, s52, {PBML:#x}")
    e("s_lshl_b32 s53, s30, 14"); e("s_lshl_b32 s51, s51, 8"); e("s_add_u32 s53, s53, s51"); e(f"s_add_u32 s53, s53, {PBO:#x}")
    lds_wait(8, 4 * 256 * (NA1 + 4 + T4) - 768 + 256 * pt)
    n = poll_begin()
    e("buffer_load_dwordx4 v[8:11], v43, s[44:47], s52 offen sc1")
    e("s_waitcnt vmcnt(0)")
    get_tag(16, 8); e("v_cmp_eq_u32 vcc, s55, v16")
    poll_end(n, slp)
    for t in range(8):
        e(f"buffer_load_dwordx4 v[{192+4*t}:{195+4*t}], v35, s[44:47], s53 offen offset:{2048*(t%2)} sc1")
        if t % 2 and t < 7: e("s_addk_i32 s53, 0x1000")
    e(f"v_max_f32_dpp v12, v8, v8 quad_perm:[1,0,3,2] {DPP}"); e("s_nop 1")
    for d in ("quad_perm:[2,3,0,1]", "row_ror:4", "row_ror:8"):
        e(f"v_max_f32_dpp v12, v12, v12 {d} {DPP}"); e("s_nop 1")
    e("v_sub_f32 v8, v8, v12"); e("v_exp_f32 v8, v8"); e("s_nop 0"); e("v_mul_f32 v9, v8, v9"); e("s_nop 1")
    for d in ("quad_perm:[1,0,3,2]", "quad_perm:[2,3,0,1]", "row_ror:4", "row_ror:8"):
        e(f"v_add_f32_dpp v9, v9, v9 {d} {DPP}"); e("s_nop 1")
    e("v_rcp_f32 v9, v9"); e("s_nop 0"); e("v_mul_f32 v8, v8, v9")
    for t in range(8): e(f"ds_bpermute_b32 v{48+t}, v33, v8 offset:{8*t}")
    for k in range(8): e(f"v_mov_b32 v{16+k}, 0")
    e("s_waitcnt vmcnt(0) lgkmcnt(0)")
    for t in range(8):
        for k in range(4):
            e(f"v_lshlrev_b32 v24, 16, v{192+4*t+k}"); e(f"v_and_b32 v25, 0xffff0000, v{192+4*t+k}")
            e(f"v_fmac_f32 v{16+2*k}, v{48+t}, v24"); e(f"v_fmac_f32 v{17+2*k}, v{48+t}, v25")
    e("s_nop 1")
    for k in range(4): e(f"v_permlane16_swap_b32 v{16+k}, v{20+k}")
    for k in range(4): e(f"v_add_f32 v{16+k}, v{16+k}, v{20+k}")
    e("v_cvt_pk_bf16_f32 v16, v16, v17"); e("v_cvt_pk_bf16_f32 v17, v18, v19")
    e("v_lshl_add_u32 v46, v1, 1, v47"); e("s_and_b32 s51, s32, 7"); e("s_lshl_b32 s51, s51, 2")
    e("v_xor_b32 v46, s51, v46"); e("v_lshlrev_b32 v46, 1, v46"); e("v_lshl_add_u32 v46, v42, 8, v46")
    for k in range(4): e(f"ds_write_b16{'_d16_hi' if k%2 else ''} v46, v{16+k//2} offset:{L_SCR + 64*k}")
    e("v_lshlrev_b32 v46, 8, v34"); e("v_lshl_add_u32 v46, v2, 6, v46")
    e("s_waitcnt lgkmcnt(0)")
    for k in range(4): e(f"ds_read_b128 v[{8+4*k}:{11+4*k}], v46 offset:{L_SCR + 16*k}")
    e("s_waitcnt lgkmcnt(0)")
    rows_mfma(False)
    c("line (b, cq*4 + ((l>>3)&3)) of head h")
    e("s_lshl_b32 s52, s32, 7"); e("s_and_b32 s51, s54, 3"); e(f"s_mul_i32 s51, s51, {4*YBS}")
    e("s_add_u32 s52, s52, s51"); e(f"s_add_u32 s52, s52, {YB:#x}")
    e("v_bfe_u32 v60, v0, 3, 2"); e("v_lshl_add_u32 v60, v42, 4, v60"); e(f"v_mul_u32_u24 v60, {YBS}, v60")
    e("v_and_b32 v24, 7, v0"); e("v_lshl_add_u32 v60, v24, 4, v60")
    put_tag(56, 63)
    if YBT >= 0:
        if YBT: lds_wait(8, 4 * 256 * YBT - 768 + 256 * pt)
        e("buffer_store_dwordx4 v[56:59], v60, s[44:47], s52 offen sc1")

    lab("L_htiles")
    lds_wait(24, 1, 32)
    wo_tiles()
    lab("L_hfinal")
    e("v_and_b32 v8, 3, v0"); e(f"v_mul_u32_u24 v8, {RECA}, v8"); e("v_lshl_add_u32 v8, v2, 4, v8"); e("v_mov_b32 v9, 0")
    e("s_and_b32 s50, s31, 3"); e("s_lshl_b32 s50, s50, 5"); e("s_add_u32 s50, s50, s32"); e("s_lshl_b32 s50, s50, 7")
    e("s_bfe_u32 s51, s2, 0x10005"); e("s_lshl2_add_u32 s51, s51, s33"); e(f"s_mul_i32 s51, s51, {4*YAS}")
    e("s_add_u32 s50, s50, s51"); e(f"s_add_u32 s50, s50, {YA:#x}"); e(f"s_add_u32 s51, s50, {2*YAS}")
    e(f"v_mul_u32_u24 v10, {YAS}, v34"); e("v_and_b32 v11, 7, v0"); e("v_lshl_add_u32 v10, v11, 4, v10")
    e("v_lshl_add_u32 v10, v2, 28, v10")
    e("s_and_b32 s48, s54, 4"); e("s_add_u32 s48, s48, s33")
    e("s_waitcnt vmcnt(0) lgkmcnt(0)")
    e("s_barrier")
    if stamps >= 2: e("s_memrealtime s[86:87]"); e("s_waitcnt lgkmcnt(0)")
    for kb in range(4): e(f"ds_read_b128 v[{16+4*kb}:{19+4*kb}], v8 offset:{L_RECA + kb*64}")
    e(f"ds_read_b128 v[12:15], v9 offset:{L_MA}")
    if YBT < 0:
        e("s_cmp_lg_u32 s48, 5"); e("s_cbranch_scc1 L_hf2")
        e("buffer_store_dwordx4 v[56:59], v60, s[44:47], s52 offen sc1")
        lab("L_hf2")
    def tile(nb, kb):
        d = 64 + 4 * nb; r = 128 + 4 * (nb * 4 + kb)
        e(f"v_mfma_f32_16x16x32_bf16 v[{d}:{d+3}], v[{16+4*kb}:{19+4*kb}], v[{r}:{r+3}], {f'v[{d}:{d+3}]' if kb else '0'}")
    fill = []
    fill += ["s_waitcnt lgkmcnt(0)", "v_max3_f32 v11, v12, v13, v14", "v_max_f32 v11, v11, v15", "v_and_b32 v11, s94, v11"]
    fill += [f"v_sub_f32 v{12+w}, v{12+w}, v11" for w in range(4)]
    fill += [f"v_exp_f32 v{12+w}, v{12+w}" for w in range(4)]
    def comb(nb):
        d = 64 + 4 * nb; y = 32 + nb
        return [f"v_mul_f32 v{y}, v12, v{d}"] + [f"v_fmac_f32 v{y}, v{12+w}, v{d+w}" for w in range(1, 4)] + \
               [f"v_perm_b32 v{y}, v{y}, v63, s{56 + nb % 4}"]
    for nb in range(8):
        if nb >= 2: fill += comb(nb - 2)
        if nb == 5 and es: fill.append("buffer_store_dwordx4 v[32:35], v10, s[44:47], s50 offen sc1")
        for kb in range(4):
            if nb == 0: e(f"s_waitcnt lgkmcnt({4-kb})")
            tile(nb, kb)
            if nb >= 1:
                for _ in range(2):
                    if fill: e(fill.pop(0))
    for x in fill: e(x)
    if not es: e("buffer_store_dwordx4 v[32:35], v10, s[44:47], s50 offen sc1")
    for x in comb(6): e(x)
    e(f"s_nop {2 if es else 1}")
    for x in comb(7): e(x)
    e("buffer_store_dwordx4 v[36:39], v10, s[44:47], s51 offen sc1")
    if stamps:
        e("s_cmp_lg_u32 s33, 0"); e("s_cbranch_scc1 L_end")
        e("s_memrealtime s[84:85]"); e("s_waitcnt lgkmcnt(0)")
        e("s_mov_b64 exec, 1"); e("s_mov_b32 s44, s28"); e("s_mov_b32 s45, s29")
        for k in range(8): e(f"v_mov_b32 v{16+k}, s{82+k}")
        e("s_lshl_b32 s51, s2, 7"); e("s_add_u32 s51, s51, 0x20030")
        e("buffer_store_dwordx4 v[16:19], off, s[44:47], s51")
        e("buffer_store_dwordx4 v[20:23], off, s[44:47], s51 offset:16")
    lab("L_end")
    e("s_endpgm")
    lab("L_pacer")
    c("pacer: once per step it brings a few rows of wo_A into LDS, and (speed only) compares this workgroup's")
    c("progress with its neighbours' to set the depth of the load queue")
    e("s_mul_i32 s52, s30, 4352"); e(f"s_add_u32 s52, s52, {PROG:#x}")
    e("s_lshl1_add_u32 s53, s31, s52")
    e("v_lshlrev_b32 v42, 1, v0"); e("v_mov_b32 v12, 0")
    e("s_cmp_lg_u32 s31, 0"); e("s_cbranch_scc1 L_pi")
    e("s_mov_b64 exec, 0xff")
    e("buffer_store_dwordx4 v[28:31], v40, s[44:47], s52 offen sc1")
    e("s_cmp_lg_u32 s30, 0"); e("s_cbranch_scc1 L_pi")
    e("s_mov_b64 exec, -1")
    e("v_mul_u32_u24 v13, 0x1100, v0"); e(f"s_mov_b32 s50, {PROG + 0x10000:#x}")
    e("buffer_store_dword v12, v13, s[44:47], s50 offen sc1")
    lab("L_pi")
    e("s_mov_b64 exec, -1")
    c("wo_A: one load = one 1 KiB row; lane -> image (l>>4), 16 B piece (l&15) is not lane-linear, so load 4 rows x 256 B")
    e("v_lshlrev_b32 v33, 10, v2"); e("v_lshl_add_u32 v33, v1, 4, v33")
    e("s_mov_b32 s40, s12"); e("s_mov_b32 s41, s13")
    e("s_lshl_b32 s62, s32, 17")
    e("s_and_b32 s63, s54, 3"); e("s_lshl_b32 s63, s63, 3")
    e("s_mov_b32 s36, 128")
    e(f"s_mov_b32 s49, {256*n0 - 128}"); e(f"s_mov_b32 s79, {spin}")
    e("s_mov_b32 s60, 0"); e("s_mov_b32 s61, 0")
    def wo_piece():
        e("s_lshl_b32 s37, s63, 10"); e(f"s_add_u32 m0, s37, {L_WO}")
        e("s_lshl_b32 s50, s63, 12"); e("s_add_u32 s50, s50, s62")
        for k in range(4):
            e(f"buffer_load_dwordx4 v33, s[40:43], s50 offen {wpol} lds")
            if k < 3: e("s_add_u32 m0, m0, 0x8000"); e("s_addk_i32 s50, 256")
        e("s_add_u32 s63, s63, 1"); e("s_and_b32 s63, s63, 31")
        e("s_sub_u32 s36, s36, 4")
    c("wo_A: piece = four rows, one load per column quarter; four workgroups fetch a quarter each right away (into L2 too)")
    e("s_cmp_ge_u32 s54, 4"); e("s_cbranch_scc1 L_pb")
    lab("L_pa")
    wo_piece()
    e("s_cmp_gt_u32 s36, 96"); e("s_cbranch_scc1 L_pa")
    lab("L_pb")
    if hb >= 0: e("s_barrier")
    lab("L_pl")
    e("ds_read_b32 v24, v41 offset:8"); e("s_waitcnt lgkmcnt(0)")
    e("v_readfirstlane_b32 s51, v24"); e("s_sub_i32 s79, s79, 1"); e("s_cmp_lt_i32 s79, 0"); e("s_cbranch_scc1 L_pt")
    e("s_cmp_ge_u32 s51, s49"); e("s_cbranch_scc1 L_pt")
    e("s_sleep 2"); e("s_branch L_pl")
    lab("L_pt")
    e("s_add_u32 s48, s51, 128"); e("s_lshr_b32 s48, s48, 8")
    e("s_lshl_b32 s49, s48, 8"); e("s_add_u32 s49, s49, 128"); e(f"s_min_u32 s49, s49, {(76 + pt)*256}")
    e("v_mov_b32 v12, s48")
    e("s_mov_b32 exec_hi, 1")
    e("buffer_load_sshort v13, v42, s[44:47], s52 offen nt")
    e("s_mov_b64 exec, 1")
    e("buffer_store_short v12, off, s[44:47], s53")
    if xk:
        c("column leaders rank the columns every few steps")
        e("s_cmp_lg_u32 s31, 0"); e("s_cbranch_scc1 L_pn")
        e(f"s_lshr_b32 s50, s48, {xp.bit_length()-1}"); e("s_cmp_eq_u32 s50, s60"); e("s_cbranch_scc1 L_pn")
        e("s_mov_b32 s60, s50"); e("s_mul_i32 s50, s50, 0x1100"); e(f"s_add_u32 s50, s50, {PROG + 0x10000:#x}")
        e("v_mov_b32 v14, 2")
        e("buffer_atomic_add v14, off, s[44:47], s50 sc0 sc1")
        e("s_waitcnt vmcnt(0)")
        e("v_readfirstlane_b32 s50, v14"); e("s_sub_i32 s50, s50, 7"); e(f"s_mul_i32 s50, s50, {xk}")
        if ls:
            e(f"s_ashr_i32 s51, s61, {ls}"); e("s_sub_i32 s61, s61, s51"); e("s_add_i32 s61, s61, s50"); e(f"s_ashr_i32 s50, s61, {xs}")
        e("v_mov_b32 v14, s50")
        e("buffer_store_short v14, off, s[44:47], s52 offset:64")
        lab("L_pn")
    e("s_mov_b32 exec_lo, -1")
    e("s_waitcnt vmcnt(1)")
    e("v_readlane_b32 s50, v13, 32")
    e("v_subrev_u32 v13, s48, v13")
    for d in range(-2, 3):
        e(f"v_cmp_le_i32 vcc, {d}, v13"); e("s_bcnt1_i32_b64 s51, vcc"); e("s_add_i32 s50, s50, s51")
    e("s_mov_b64 exec, -1")
    e(f"s_sub_i32 s37, s50, {e1}"); e("s_max_i32 s37, s37, 0"); e(f"s_lshr_b32 s37, s37, {g2}"); e("s_min_u32 s37, s37, 16")
    e("s_bfm_b32 s37, s37, 16")
    e(f"s_sub_i32 s50, s50, {e0}"); e("s_abs_i32 s51, s50")
    if db: e(f"s_sub_i32 s51, s51, {db}"); e("s_max_i32 s51, s51, 0")
    e(f"s_lshr_b32 s51, s51, {gs}"); e("s_min_u32 s51, s51, 8")
    e("s_bfm_b32 s51, s51, 0")
    e("s_cmp_lt_i32 s50, 0"); e("s_cselect_b32 s50, 8, 0"); e("s_lshl_b32 s51, s51, s50")
    e("s_or_b32 s51, s51, s37")
    e("v_mov_b32 v12, s51"); e("ds_write_b32 v41, v12 offset:12")
    if tl:
        e("s_cmp_ge_u32 s2, 16"); e("s_cbranch_scc1 L_tl")
        e("s_memrealtime s[90:91]"); e("s_waitcnt lgkmcnt(0)"); e("v_mov_b32 v12, s90")
        e("s_lshl_b32 s50, s2, 9"); e("s_lshl2_add_u32 s50, s48, s50"); e("s_add_u32 s50, s50, 0x30000")
        e("s_mov_b64 exec, 1"); e("buffer_store_dword v12, off, s[44:47], s50"); e("s_mov_b64 exec, -1")
        lab("L_tl")
    e(f"s_cmp_lt_u32 s48, {w0}"); e("s_cbranch_scc1 L_pl")
    e("s_cmp_lt_i32 s36, 0"); e("s_cbranch_scc1 L_pe")
    e("s_cmp_eq_u32 s36, 0"); e("s_cbranch_scc1 L_pw")
    c("wo_A: piece = four rows, one load per column quarter")
    lab("L_pd")
    wo_piece()
    e(f"s_cmp_ge_u32 s48, {26 + pt}"); e("s_cbranch_scc1 L_pq")
    e(f"s_cmp_gt_u32 s36, {wk2}"); e(f"s_cselect_b32 s50, 7, {wk-1}"); e("s_and_b32 s50, s36, s50"); e("s_cbranch_scc1 L_pd")
    e("s_branch L_pl")
    lab("L_pq")
    e("s_cmp_lg_u32 s36, 0"); e("s_cbranch_scc1 L_pd")
    lab("L_pw")
    e("v_mov_b32 v12, 1"); e("s_waitcnt vmcnt(0)"); e("ds_write_b32 v41, v12 offset:24")
    e("ds_read_b32 v63, v41 offset:20")
    wo_tiles()
    e("v_mov_b32 v12, 2"); e("ds_write_b32 v41, v12 offset:24")
    e("s_mov_b32 s36, -1")
    lab("L_pe")
    e(f"s_cmp_lt_u32 s48, {75 + pt}"); e("s_cbranch_scc0 L_hfinal")
    e("s_cmp_lt_i32 s79, 0"); e("s_cbranch_scc0 L_pl")
    e("s_branch L_hfinal")

    if drop or plain:
        job = None
        for k, t in enumerate(L):
            if t.startswith("  ; job "): job = t[8]
            if t.startswith("  ; wo_B slice"): job = "b"
            if t.startswith("  ; wo_A: piece"): job = "a"
            if t.startswith("L_hfinal"): job = "f"
            if t.startswith("L_pacer"): job = None
            if job is not None and "buffer_" in t and "off," not in t:
                if job + ("s" if "store" in t else "l") in drop.split("."): L[k] = "  s_nop 0"
                if job + ("s" if "store" in t else "l") in plain.split("."): L[k] = t.replace(" sc1", "" if "store" in t else " nt")
    L.append('.section .rodata,"a"'); L.append(".p2align 6")
    L.append(f".amdhsa_kernel {NAME}_kernel")
    for s in ("next_free_vgpr 256", "next_free_sgpr 96", "accum_offset 256", "group_segment_fixed_size 0",
              "kernarg_size 104", "user_sgpr_count 2", "user_sgpr_kernarg_segment_ptr 1",
              "system_sgpr_workgroup_id_x 1", "float_denorm_mode_32 3"):
        L.append("  .amdhsa_" + s)
    L.append(".end_amdhsa_kernel")
    return "\n".join(L) + "\n"

if __name__ == "__main__":
    import os
    names = []
    os.makedirs("k", exist_ok=True)
    for spec in sys.argv[1:]:
        p = {}
        for x in spec.split(","):
            if not x: continue
            k, v = x.split("=")
            p[k] = v.replace("+", " ") if k in ("wpol", "drop", "ms", "plain", "kvp", "bb") else int(v)
            if k == "wpol" and v == "def": p[k] = ""
            if k == "ms" and v == "no": p[k] = ""
        fn = "k/k_" + (spec.replace(",", "_").replace("=", "").replace("+", "") or "base") + ".s"
        open(fn, "w").write(gen(**p))
        names.append("dev/" + fn)
    print(" ".join(names))
```

```python
import sys, math, struct
NAME = "concat_heads__mha_block_cached__gqa_block_cached__decode"

HEADER = """; Kernarg layout for this problem (104 bytes, ptrs only, base s[0:1]):
"""

def f2u(x): return struct.unpack("<I", struct.pack("<f", x))[0]

WSB  = 0x100000
EPOCH = WSB
QB   = WSB + 0x010000
PBO  = WSB + 0x040000
PBML = WSB + 0x0C0000
YB   = WSB + 0x0D0000
YBS  = 4096 + 256
YA   = WSB + 0x140000
YAS  = 16384 + 256
MLA  = WSB + 0x1E0000
MLS  = 2048 + 256
QP   = WSB + 0x200000
PROG = WSB + 0x280000
WSSZ = 0x400000
L_QA   = 0x0000
L_QB   = 0x0400
L_FLAG = 0x0800
L_SCR  = 0x0100
L_MA   = 0x0A00
L_RED  = 0x0A40
L_RECA = 0x0D00; RECA = 576
L_RECB = 0x1800; RECB = 2560
L_WO   = 0x4000
L_SB   = L_WO + 0x10000
L_S    = L_WO + 0x20000
LDS_BYTES = L_S + 0x4000

def gen(inf=5, inf0=5, m1=9, bb='16.19', m2=1, m3=0, m4=0, tbl=0, wpol="", stamps=0, spin=1 << 20, slp=64, wsoff=0,
        T1=5, T2=7, T4=3, YBT=-1, qslp=8, wth=32, rspin=1 << 22, gspin=1 << 20, drop="",
        hi=7, lo=4, pace=1, n0=1, e0=80, gs=2, xk=1, xp=4, ls=0, xs=0, wk=8, wk2=64, w0=1, es=1, ot2=16, e1=64, g2=2, pq=14, hb=24, nb0=4, tw=0, cw='26.66', pad=0, rh=0, pt=0, db=0, tl=0, plain='', pdef=0, qspin=1 << 20, kvp='nt', diagw=0, mlr=4, rsl=0, rw=1, rd=0, rwb=1, rdb=0, pd=0, pn=1, wb0=3, wb2=0, wb3=3, ot=4):
    L = []
    def e(s): L.append("  " + s)
    def lab(s): L.append(s + ":")
    def c(s): L.append("  ; " + s)
    uid = [0]
    def u():
        uid[0] += 1; return uid[0]
    SC = f2u(128 ** -0.5 * math.log2(math.e))
    NA1 = 8
    DPP = "row_mask:0xf bank_mask:0xf"

    L.append(HEADER.rstrip("\n"))
    L.append(f"; @launch grid=(256,1,1) block=(512,1,1) lds={LDS_BYTES}")
    L.append('.amdgcn_target "amdgcn-amd-amdhsa--gfx950"')
    L.append(".text"); L.append(f".globl {NAME}_kernel"); L.append(".p2align 8")
    L.append(f".type {NAME}_kernel,@function"); L.append(f"{NAME}_kernel:")

    def stamp(k, lvl=1):
        if stamps >= lvl: e(f"s_memrealtime s[{64+2*k}:{65+2*k}]")
    def hmark(k):
        if stamps >= 5: e(f"s_memrealtime s[{64+2*k}:{65+2*k}]")
    def hdump(slot):
        if stamps >= 5:
            e("s_waitcnt lgkmcnt(0)"); e("s_mov_b64 exec, 1")
            for k in range(4): e(f"v_mov_b32 v{44+k}, s{64+k}")
            e("s_lshl_b32 s51, s2, 7"); e(f"s_add_u32 s51, s51, {0x20000 + 8*slot}")
            e("buffer_store_dwordx4 v[44:47], off, s[44:47], s51"); e("s_mov_b64 exec, -1")
    def tag_consts():
        for k in range(4): e(f"s_mov_b32 s{56+k}, {0x07060500 + k:#x}")
        e("s_mov_b32 s76, 0x0c0c0400"); e("s_mov_b32 s77, 0x0c040100"); e("s_mov_b32 s78, 0x04020100")
        e("s_movk_i32 s94, 0xff00")
    def put_tag(r, vn):
        for k in range(4): e(f"v_perm_b32 v{r+k}, v{r+k}, v{vn}, s{56+k}")
    def get_tag(t, r, n=4):
        e(f"v_perm_b32 v{t}, v{r+1}, v{r}, s76"); e(f"v_perm_b32 v{t}, v{r+2}, v{t}, s77"); e(f"v_perm_b32 v{t}, v{r+3}, v{t}, s78")
        for k in range(n): e(f"v_and_b32 v{r+k}, s94, v{r+k}")

    e("s_cmp_ge_u32 s2, 256"); e("s_cbranch_scc1 L_end")
    e("s_load_dwordx16 s[4:19], s[0:1], 0")
    e("s_load_dwordx8 s[20:27], s[0:1], 64")
    e("s_load_dwordx2 s[28:29], s[0:1], 96")
    if stamps or diagw: e("s_memrealtime s[60:61]")
    e("v_lshrrev_b32 v1, 6, v0")
    e("s_and_b32 s30, s2, 7")
    e("v_readfirstlane_b32 s3, v1")
    e("s_lshr_b32 s31, s2, 3")
    e("v_and_b32 v0, 63, v0")
    e("s_lshr_b32 s33, s2, 6"); e("s_lshl2_add_u32 s32, s30, s33")
    e("s_and_b32 s35, s2, 32"); e("s_add_u32 s35, s35, s32")
    e("s_mov_b32 s42, 0x400000"); e("s_mov_b32 s43, 0x20000"); e("s_mov_b32 s39, s43")
    e("s_cmp_ge_u32 s3, 4"); e("s_cbranch_scc1 L_helper")

    RING = 128
    def issue(p):
        r = RING + 4 * p; j = p % 8
        if j == 4: e("s_xor_b32 s44, s44, 0x200000")
        e(f"buffer_load_dwordx4 v[{r}:{r+3}], v36, s[36:39], s44 offen offset:{(j%4)*1024} {kvp}")
        if j == 7:
            e("s_sub_u32 s44, s44, s45"); e("s_and_b32 s44, s44, s45")
    def set_src(ptr, unit, voff):
        e(f"s_add_u32 s36, s{ptr}, s{unit}"); e(f"s_addc_u32 s37, s{ptr+1}, 0")
        if voff: e(f"v_mov_b32 v36, v{voff}")
    def wi(p, last=False):
        if last and p >= 32 - ot:
            pass
        elif pace:
            n = u(); j = p % 8
            if last and p >= 32 - ot2:
                e(f"s_bitcmp1_b32 s33, {16+31-p}"); e(f"s_cbranch_scc1 L_v{n}")
            e(f"s_bitcmp1_b32 s33, {j}"); e(f"s_cbranch_scc1 L_t{n}")
            e(f"s_bitcmp0_b32 s33, {8+j}"); e(f"s_cbranch_scc1 L_u{n}")
            e(f"s_waitcnt vmcnt({lo-1})")
            lab(f"L_u{n}")
            e(f"s_waitcnt vmcnt({inf-1})")
            lab(f"L_t{n}")
            e(f"s_waitcnt vmcnt({hi-1})")
            if last and p >= 32 - ot2: lab(f"L_v{n}")
        else:
            e(f"s_waitcnt vmcnt({inf-1})")
        issue(p)
    def pick_mask():
        if pace:
            c("queue depth for this step: bits 0-7 deeper, bits 8-15 shallower; late waves of the workgroup go a bit deeper")
            e("s_waitcnt lgkmcnt(0)"); e("v_readfirstlane_b32 s33, v90"); e("v_readfirstlane_b32 s50, v91")
            e("ds_read_b32 v90, v14 offset:12"); e("ds_add_rtn_u32 v91, v14, v15 offset:8")
            e("s_sub_i32 s50, s50, s34"); e("s_addk_i32 s34, 256")
            if wb0:
                e("s_cmp_lt_i32 s50, 64"); e(f"s_cselect_b32 s51, {((1 << wb0) - 1) << 8:#x}, 0"); e("s_or_b32 s33, s33, s51")
            if wb2:
                e("s_cmp_ge_i32 s50, 128"); e(f"s_cselect_b32 s51, {(1 << wb2) - 1:#x}, 0"); e("s_or_b32 s33, s33, s51")
            if wb3:
                e("s_cmp_ge_i32 s50, 192"); e(f"s_cselect_b32 s51, {(1 << wb3) - 1:#x}, 0"); e("s_or_b32 s33, s33, s51")
        else:
            e("ds_add_u32 v14, v15 offset:8")
    c("K lane offset: key=(l>>2)&3, d=(l>>4)*32+(l&3)*8 ; V lane offset: l*16")
    e("v_lshlrev_b32 v3, 4, v0")
    e("v_and_b32 v2, 48, v3"); e("v_and_b32 v4, 12, v0"); e("v_lshl_add_u32 v2, v4, 6, v2")
    e("v_and_b32 v5, 48, v0"); e("v_lshl_add_u32 v36, v5, 2, v2")
    e("s_and_b32 s41, s31, 3"); e("s_lshl2_add_u32 s41, s41, s3"); e("s_lshl_b32 s41, s41, 12")
    e(f"s_mul_i32 s44, s35, {m1}"); e("s_lshl_b32 s44, s44, 27"); e("s_lshr_b32 s44, s44, 11")
    e("s_mov_b32 s38, s42"); e("s_lshl_b32 s40, s35, 22"); e("s_or_b32 s40, s40, s41"); e("s_mov_b32 s49, s44")
    e("s_waitcnt lgkmcnt(0)")
    if tbl:
        e("s_lshl_b32 s50, s2, 4"); e("s_load_dwordx4 s[80:83], s[26:27], s50"); e("s_waitcnt lgkmcnt(0)")
        e("s_mov_b32 s44, s80"); e("s_mov_b32 s49, s80")
    set_src(6, 40, 0)
    assert inf0 <= 7
    for p in range(nb0): issue(p)
    if hb < 0: e("s_barrier")
    e("s_mov_b32 s45, 0x1f0000"); e("v_mov_b32 v2, v36")
    c("score buffer addresses: v37 write / v38 read (one head), v39 both (four heads)")
    e("s_lshl_b32 s50, s3, 12"); e(f"s_add_u32 s95, s50, {L_S}")
    e("v_add_u32 v38, s95, v5"); e("v_add_u32 v37, v38, v4")
    e(f"s_add_u32 s95, s50, {L_SB}")
    e("v_and_b32 v39, 60, v0"); e("v_lshl_add_u32 v39, v39, 2, s95")
    c("constants while the first loads fly")
    e("v_and_b32 v6, 1, v0"); e("v_lshlrev_b32 v6, 4, v6"); e("v_mov_b32 v7, 0xffff"); e("v_lshlrev_b32 v6, v6, v7")
    e("v_and_b32 v7, 2, v0"); e("v_cmp_eq_u32 vcc, 0, v7")
    e(f"s_mov_b32 s48, {SC:#x}")
    e("v_mov_b32 v8, 0xff800000")
    e("v_cndmask_b32 v4, 0, v6, vcc")
    e("v_xor_b32 v5, v4, v6")
    e("v_mov_b32 v10, 0")
    e("v_mov_b32 v11, v8"); e("v_mov_b32 v13, 0")
    for r in range(40, 56): e(f"v_mov_b32 v{r}, 0")
    c("LDS address of the q operand: (g*32 + (l&3)*8)*2")
    e("v_and_b32 v6, 0xff, v2")
    e("v_bfe_u32 v7, v0, 2, 2")
    for s in range(4): e(f"v_cmp_eq_u32 s[{84+2*s}:{85+2*s}], {s}, v7")
    tag_consts()
    e(f"v_mov_b32 v14, {L_FLAG}"); e("v_mov_b32 v15, 1"); e("v_mov_b32 v90, 0"); e("v_mov_b32 v91, 0xffffff40")
    e("s_mov_b32 s33, 0"); e("s_movk_i32 s34, -256")
    if hb >= 0: e("s_barrier")
    for p in range(nb0, 32):
        if p % 8 == 0 and p >= 32 - 8 * pt: pick_mask()
        if p >= 32 - 8 * pt and p >= inf0: wi(p)
        else:
            if p >= inf0: e(f"s_waitcnt vmcnt({inf0-1})")
            issue(p)
        if p == pq: e("ds_write_b32 v14, v15 offset:28")
    stamp(0)
    e(f"s_mov_b32 s50, {spin << 5}")
    lab("L_wqa")
    e("ds_read_b64 v[108:109], v14 offset:16"); e(f"ds_read_b128 v[104:107], v6 offset:{L_QA}")
    e("s_waitcnt lgkmcnt(0)")
    e("v_readfirstlane_b32 s51, v108"); e("v_readfirstlane_b32 s55, v109"); e("s_sub_u32 s50, s50, 1")
    e("s_cbranch_scc1 L_wqa_done")
    e("s_cmp_eq_u32 s51, 0"); e("s_cbranch_scc1 L_wqa")
    lab("L_wqa_done")
    for s in range(4):
        for k in range(4): e(f"v_cndmask_b32 v{16+4*s+k}, 0, v{104+k}, s[{84+2*s}:{85+2*s}]")
    stamp(1)

    def diag(t, d):
        e(f"v_mov_b32_dpp v{t}, v{d} quad_perm:[0,0,0,0] {DPP}")
        for k in range(1, 4):
            e(f"v_add_f32_dpp v{t}, v{d+k}, v{t} quad_perm:[{k},{k},{k},{k}] {DPP}")
    def xrow_max(v, t):
        e(f"v_mov_b32 v{t}, v{v}"); e("s_nop 1"); e(f"v_permlane16_swap_b32 v{v}, v{t}"); e("s_nop 1")
        e(f"v_max_f32 v{v}, v{v}, v{t}")
        e(f"v_mov_b32 v{t}, v{v}"); e("s_nop 1"); e(f"v_permlane32_swap_b32 v{v}, v{t}"); e("s_nop 1")
        e(f"v_max_f32 v{v}, v{v}, v{t}")
    def k_iter(gqa):
        for st in range(8):
            if st % 2 == 0: pick_mask()
            for j in range(4):
                r = RING + 4 * (4 * st + j)
                if gqa: e(f"v_mfma_f32_16x16x32_bf16 v[{56+4*j}:{59+4*j}], v[{r}:{r+3}], v[32:35], 0")
                else:   e(f"v_mfma_f32_16x16x32_bf16 v[56:59], v[{r}:{r+3}], v[{16+4*j}:{19+4*j}], {'v[56:59]' if j else '0'}")
                wi(4 * st + j)
            if gqa:
                for j in range(4): diag(72 + j, 56 + 4 * j)
                e(f"ds_write_b128 v1, v[72:75] offset:{256*st}")
                e("v_max3_f32 v11, v11, v72, v73"); e("v_max3_f32 v11, v11, v74, v75")
            else:
                e(f"s_nop {3 if pace else 5}")
                diag(72, 56)
                e(f"ds_write_b32 v1, v72 offset:{64*st}")
                e("v_max_f32 v8, v8, v72")
        e(f"v_add_u32 v1, {2048 if gqa else 512}, v1")
    def probs(sr, a, Mc, l):
        x = [f"v_fma_f32 v{sr+j}, v{sr+j}, s48, -v{Mc}" for j in range(4)]
        x += [f"v_exp_f32 v{sr+j}, v{sr+j}" for j in range(4)]
        x += [f"v_cvt_pk_bf16_f32 v{a+2*j+1}, v{sr+j}, v{sr+j}" for j in range(4)]
        for j in range(4): x += [f"v_and_b32 v{a+2*j}, v{a+2*j+1}, v4", f"v_and_b32 v{a+2*j+1}, v{a+2*j+1}, v5"]
        x += [f"v_add_f32 v{l}, v{l}, v{sr+j}" for j in range(4)]
        return x
    def pv_mfma(O, a, p, hf):
        r = RING + 4 * p
        e(f"v_mfma_f32_16x16x16_bf16 v[{O+4*hf}:{O+4*hf+3}], v[{a}:{a+1}], v[{r+2*hf}:{r+2*hf+1}], v[{O+4*hf}:{O+4*hf+3}]")
    def v_iter(gqa):
        O, Mc, l, stride = (48, 12, 13, 256) if gqa else (40, 9, 10, 64)
        for st in range(8):
            if st % 2 == 0: pick_mask()
            if st % 2 or not pace: e("s_waitcnt lgkmcnt(0)")
            nx = 76 + 4 * ((st + 1) % 2)
            e(f"ds_read_b128 v[{nx}:{nx+3}], v1 offset:{stride*(st+1)}")
            for x in probs(76 + 4 * (st % 2), 96, Mc, l): e(x)
            for j in range(4):
                pv_mfma(O, 96 + 2 * j, 4 * st + j, 0); pv_mfma(O, 96 + 2 * j, 4 * st + j, 1)
                wi(4 * st + j)
        e(f"v_add_u32 v1, {8*stride}, v1")

    for _ in range(pad): e("s_nop 0")
    c("---- the four tensors are read one after the other: K of A, K of B, V of B, V of A")
    e("s_mov_b32 s47, 8"); e("v_mov_b32 v1, v37")
    lab("L_km")
    e("s_cmp_lg_u32 s47, 1"); e("s_cbranch_scc1 L_km_go")
    c("issue side moves on to K of the B unit")
    BB = [int(z) for z in bb.split(".")]; TB = [q for q in range(16, 21) if q not in BB]
    def scat(dst, src, lo, bits, first=False):
        for k, q in enumerate(bits):
            t = dst if first and k == 0 else 51
            e(f"s_bfe_u32 s{t}, s{src}, {(1 << 16) | (lo + k):#x}"); e(f"s_lshl_b32 s{t}, s{t}, {q}")
            if t != dst: e(f"s_or_b32 s{dst}, s{dst}, s51")
    e("s_lshr_b32 s52, s31, 4"); e("s_lshl3_add_u32 s50, s52, s30")
    e("s_lshl_b32 s51, s50, 22"); e("s_or_b32 s41, s41, s51")
    if tbl: e("s_or_b32 s41, s41, s81")
    else: scat(41, 31, 2, BB)
    set_src(16, 41, 0)
    e(f"s_mul_i32 s50, s50, {m2}")
    if m3: e("s_bfe_u32 s51, s31, 0x20002"); e(f"s_mul_i32 s51, s51, {m3}"); e("s_add_u32 s50, s50, s51")
    if m4: e(f"s_mul_i32 s51, s52, {m4}"); e("s_add_u32 s50, s50, s51")
    scat(44, 50, 0, TB, True)
    e(f"s_mov_b32 s45, {sum(1 << q for q in TB):#x}")
    if tbl: e("s_mov_b32 s44, s82"); e("s_mov_b32 s45, s83")
    lab("L_km_go")
    k_iter(False)
    e("s_sub_u32 s47, s47, 1"); e("s_cmp_lg_u32 s47, 0"); e("s_cbranch_scc1 L_km")
    stamp(2)
    e(f"s_mov_b32 s50, {spin << 5}")
    lab("L_wqb")
    e("ds_read_b32 v7, v14"); e(f"ds_read_b128 v[32:35], v2 offset:{L_QB}")
    e("s_waitcnt lgkmcnt(0)")
    e("v_readfirstlane_b32 s51, v7"); e("s_sub_u32 s50, s50, 1")
    e("s_cbranch_scc1 L_wqb_done")
    e("s_cmp_eq_u32 s51, 0"); e("s_cbranch_scc1 L_wqb")
    lab("L_wqb_done")
    e("s_mov_b32 s47, 2"); e("v_mov_b32 v1, v39")
    lab("L_kg")
    e("s_cmp_lg_u32 s47, 1"); e("s_cbranch_scc1 L_kg_go")
    set_src(18, 41, 3)
    lab("L_kg_go")
    k_iter(True)
    e("s_sub_u32 s47, s47, 1"); e("s_cmp_lg_u32 s47, 0"); e("s_cbranch_scc1 L_kg")
    e("ds_read_b128 v[76:79], v39"); e("v_mov_b32 v1, v39")
    xrow_max(11, 89)
    e("v_mul_f32 v12, s48, v11")
    e("s_mov_b32 s47, 2")
    lab("L_vg")
    e("s_cmp_lg_u32 s47, 1"); e("s_cbranch_scc1 L_vg_go")
    set_src(8, 40, 3); e("s_mov_b32 s44, s49"); e("s_mov_b32 s45, 0x1f0000")
    lab("L_vg_go")
    v_iter(True)
    e("s_sub_u32 s47, s47, 1"); e("s_cmp_lg_u32 s47, 0"); e("s_cbranch_scc1 L_vg")
    c("hand the B partial of this wave to the agent through LDS")
    e(f"s_mul_i32 s50, s3, {RECB}"); e(f"s_add_u32 s50, s50, {L_RECB}")
    e("v_lshl_add_u32 v6, v0, 5, s50"); e("v_lshl_add_u32 v7, v0, 2, s50")
    e("ds_write_b128 v6, v[48:51]"); e("ds_write_b128 v6, v[52:55] offset:16")
    e("ds_write_b32 v7, v12 offset:2048"); e("ds_write_b32 v7, v13 offset:2304")
    e("ds_add_u32 v14, v15 offset:4")
    stamp(3)

    c("max over all keys of this wave")
    e("ds_read_b128 v[76:79], v38"); e("v_mov_b32 v1, v38")
    e(f"v_max_f32_dpp v8, v8, v8 row_ror:4 {DPP}"); e("s_nop 1")
    e(f"v_max_f32_dpp v8, v8, v8 row_ror:8 {DPP}")
    xrow_max(8, 89)
    e("v_mul_f32 v9, s48, v8")
    e("s_mov_b32 s47, 6")
    lab("L_vm")
    v_iter(False)
    e("s_sub_u32 s47, s47, 1"); e("s_cmp_lg_u32 s47, 0"); e("s_cbranch_scc1 L_vm")
    c("last 16 steps: the arithmetic catches up with the loads, so little is left when the last one lands")
    def v_step(st, pos=None, mid=None):
        if st not in (0, 4) or not pace: e("s_waitcnt lgkmcnt(0)")
        nx = 76 + 4 * ((st + 1) % 2)
        e(f"ds_read_b128 v[{nx}:{nx+3}], v1 offset:{64*(st+1)}")
        for x in probs(76 + 4 * (st % 2), 96, 9, 10): e(x)
        if mid is not None: wi(mid, True)
        if st >= 8: e(f"s_waitcnt vmcnt({pos - (4*(st-8) + 3)})")
        for j in range(4):
            pv_mfma(40, 96 + 2 * j, 4 * (st % 8) + j, 0); pv_mfma(40, 96 + 2 * j, 4 * (st % 8) + j, 1)
    for st in range(8):
        if st % 4 == 0: pick_mask()
        v_step(st, None, 2 * st - 1 if st else None)
        wi(2 * st, True)
    for k, st in enumerate(range(8, 12)):
        v_step(st, 15 + 2 * k, 15 + 2 * k)
        if k == 0: pick_mask()
        wi(16 + 2 * k, True)
    wi(23, True); pick_mask()
    if not pace: e("s_waitcnt lgkmcnt(0)")
    e(f"s_mul_i32 s50, s3, {RECA}"); e(f"s_add_u32 s50, s50, {L_RECA}")
    e("v_add_u32 v6, s50, v3"); e("v_lshl_add_u32 v7, v0, 2, s50")
    e("s_lshl_b32 s50, s3, 2"); e("v_mov_b32 v14, s50")
    for st in range(13, 16): e(f"ds_read_b128 v[{4+4*st}:{7+4*st}], v1 offset:{64*st}")
    e(f"ds_write_b32 v14, v9 offset:{L_MA}")
    for k, sr in enumerate((76, 56, 60, 64)):
        if k == 1: e("s_waitcnt lgkmcnt(0)")
        for x in probs(sr, 96 + 8 * k, 9, 10): e(x)
        wi(24 + k, True)
    e("ds_write_b32 v7, v10 offset:256")
    e("s_mov_b32 s40, s24"); e("s_mov_b32 s41, s25"); e("s_mov_b32 s42, 4096")
    for p in range(16, 32):
        if p < 20: wi(12 + p, True)
        if p == 19:
            stamp(4)
            e(f"s_add_u32 s36, s28, {wsoff<<20:#x}"); e("s_addc_u32 s37, s29, 0")
        e(f"s_waitcnt vmcnt({min(12 + p, 31) - p})")
        for hf in range(2): pv_mfma(40, 96 + 2 * (p - 16), p, hf)
    c("A partial of this wave -> LDS")
    e("s_nop 5")
    e("s_mov_b64 exec, 0xffff")
    for k in range(4): e(f"v_cvt_pk_bf16_f32 v{40+k}, v{40+2*k}, v{41+2*k}")
    e("ds_write_b128 v6, v[40:43]")
    e("s_mov_b64 exec, -1")
    e("s_waitcnt lgkmcnt(0)")
    stamp(5)
    e("s_barrier")
    stamp(0, 2); stamp(1, 2); stamp(2, 2); stamp(3, 2)
    e("s_cmp_lg_u32 s3, 0"); e("s_cbranch_scc1 L_red")
    c("wave 0 publishes (M, L) of the workgroup: lane = (w, row)")
    e("v_and_b32 v6, 12, v0"); e("v_and_b32 v7, 3, v0"); e("v_lshlrev_b32 v7, 6, v7")
    e(f"s_movk_i32 s50, {RECA//4}"); e("v_mad_u32_u24 v7, v6, s50, v7")
    e(f"ds_read_b32 v16, v6 offset:{L_MA}"); e(f"ds_read_b32 v17, v7 offset:{L_RECA+256}")
    e("s_and_b32 s51, s31, 3"); e("s_lshl2_add_u32 s50, s32, s51"); e("s_lshl_b32 s50, s50, 4")
    e("s_bfe_u32 s51, s2, 0x10005"); e(f"s_mul_i32 s51, s51, {MLS*mlr}"); e("s_add_u32 s50, s50, s51"); e(f"s_add_u32 s50, s50, {MLA:#x}")
    e(f"v_mul_u32_u24 v18, {MLS}, v0")
    e("v_mov_b32 v19, s55"); e("v_lshrrev_b32 v23, 24, v19")
    e("s_waitcnt lgkmcnt(0)")
    e(f"v_max_f32_dpp v20, v16, v16 row_ror:4 {DPP}"); e("s_nop 1")
    e(f"v_max_f32_dpp v20, v20, v20 row_ror:8 {DPP}")
    e("v_sub_f32 v16, v16, v20"); e("v_exp_f32 v16, v16")
    e("v_lshlrev_b32 v22, 8, v20")
    e("v_mul_f32 v21, v16, v17"); e("v_perm_b32 v20, v20, v19, s56"); e("v_perm_b32 v22, v22, v19, s58")
    for d in ("quad_perm:[1,0,3,2]", "quad_perm:[2,3,0,1]", "row_ror:4", "row_ror:8"):
        e(f"v_add_f32_dpp v21, v21, v21 {d} {DPP}")
        if d != "row_ror:8": e("s_nop 1")
    e("v_perm_b32 v21, v21, v19, s57")
    e(f"s_mov_b64 exec, {(1 << mlr) - 1:#x}")
    e("buffer_store_dwordx4 v[20:23], v18, s[36:39], s50 offen sc1")
    e("s_mov_b64 exec, -1")
    lab("L_red")
    e("s_cmp_ge_u32 s2, 64"); e("s_cbranch_scc1 L_sdone")
    c("reducers: b = (id>>4)&1, one 128-byte line of every contribution; lane = (row, granule)")
    e("v_lshrrev_b32 v6, 3, v0"); e("v_and_b32 v14, 7, v0")
    e("v_bfe_u32 v8, v0, 4, 1"); e("v_lshrrev_b32 v9, 5, v0"); e("v_lshl_add_u32 v8, v8, 1, v9")
    e("v_lshlrev_b32 v10, 3, v0")
    e("s_bfe_u32 s48, s2, 0x10004"); e("s_bfe_u32 s49, s2, 0x20002")
    e("s_lshl_b32 s44, s48, 11"); e("s_lshl_b32 s45, s49, 8"); e("s_add_u32 s44, s44, s45")
    e(f"s_lshl_b32 s54, s3, 7")
    e(f"s_mov_b32 s50, {rspin}")
    e("s_cmp_ge_u32 s2, 32"); e("s_cbranch_scc1 L_redb")
    c("branch A: wave = 8 heads x 4 splits; column = quarter*128 + half*64 + k*16 + (id&1)*8 + granule")
    e("v_and_b32 v11, 3, v0")
    e("v_lshlrev_b32 v7, 6, v6"); e("v_lshl_add_u32 v7, v11, 4, v7")
    e(f"s_mul_i32 s52, s2, {YAS}"); e("s_lshl_b32 s51, s3, 10"); e("s_add_u32 s52, s52, s51"); e(f"s_add_u32 s52, s52, {YA:#x}")
    for q in range(1, 4): e(f"s_add_u32 s{[0,53,62,63][q]}, s52, {4096*q}")
    e(f"s_and_b32 s51, s2, {mlr-1}"); e(f"s_mul_i32 s45, s48, {mlr}"); e("s_add_u32 s51, s51, s45"); e(f"s_mul_i32 s51, s51, {MLS}")
    e("s_lshl_b32 s45, s3, 9"); e("s_add_u32 s51, s51, s45"); e(f"s_add_u32 s51, s51, {MLA:#x}")
    e("v_lshl_add_u32 v8, v8, 3, v14"); e("v_lshl_add_u32 v8, v8, 2, s54")
    e("v_lshrrev_b32 v9, 2, v0"); e("v_lshlrev_b32 v9, 5, v9"); e("v_lshl_add_u32 v9, v11, 2, v9")
    e("s_and_b32 s45, s2, 2"); e("s_lshl_b32 s45, s45, 6"); e("s_add_u32 s44, s44, s45")
    e("s_and_b32 s45, s2, 1"); e("s_lshl4_add_u32 s44, s45, s44")
    if rw: e("s_barrier")
    if rd: e(f"s_sleep {rd}")
    def ra_loads():
        e("buffer_load_dwordx4 v[40:43], v7, s[36:39], s51 offen sc1")
        for q in range(4): e(f"buffer_load_dwordx4 v[{24+4*q}:{27+4*q}], v3, s[36:39], s{[52,53,62,63][q]} offen sc1")
    def ra_check(W):
        e("s_mov_b64 s[46:47], exec")
        e(f"s_waitcnt vmcnt({W+4})"); get_tag(16, 40, 0)
        e("v_perm_b32 v80, v40, v42, s57"); e("v_and_b32 v81, s94, v41")
        for q in range(4):
            e(f"s_waitcnt vmcnt({W+3-q})"); get_tag(17 + q, 24 + 4 * q, 0)
            for k in range(4): e(f"v_and_b32 v{64+4*q+k}, s94, v{24+4*q+k}")
        for q in range(5): e(f"v_cmpx_eq_u32 vcc, s55, v{16+q}")
    if pd:
        ra_loads(); ra_check(0)
        e("s_andn2_b64 exec, s[46:47], vcc"); e("s_cbranch_scc0 L_rdone")
        for _ in range(pn):
            ra_loads(); e(f"s_sleep {pd}")
    lab("L_rpoll")
    ra_loads(); ra_check(5 * pn if pd else 0)
    e("s_sub_u32 s50, s50, 1"); e("s_cbranch_scc1 L_rdone")
    if rsl:
        e("s_andn2_b64 exec, s[46:47], vcc"); e("s_cbranch_scc0 L_rdone"); e(f"s_sleep {rsl}"); e("s_branch L_rpoll")
    else:
        e("s_andn2_b64 exec, s[46:47], vcc"); e("s_cbranch_scc1 L_rpoll")
    lab("L_rdone")
    stamp(1, 2)
    if stamps >= 3:
        e(f"s_sub_u32 s72, {rspin}, s50"); e("s_mul_i32 s72, s72, 100"); e("s_add_u32 s72, s72, s60"); e("s_addc_u32 s73, s61, 0")
    e("s_mov_b64 exec, -1"); e("s_nop 1")
    e(f"v_max_f32_dpp v15, v80, v80 quad_perm:[1,0,3,2] {DPP}"); e("s_nop 1")
    e(f"v_max_f32_dpp v15, v15, v15 quad_perm:[2,3,0,1] {DPP}")
    e("v_sub_f32 v16, v80, v15"); e("v_exp_f32 v16, v16"); e("s_nop 0"); e("v_mul_f32 v15, v16, v81")
    e(f"v_mul_f32_dpp v56, v16, v64 quad_perm:[0,0,0,0] {DPP}"); e(f"v_mul_f32_dpp v57, v16, v65 quad_perm:[0,0,0,0] {DPP}")
    e(f"v_add_f32_dpp v15, v15, v15 quad_perm:[1,0,3,2] {DPP}")
    e(f"v_mul_f32_dpp v58, v16, v66 quad_perm:[0,0,0,0] {DPP}"); e(f"v_mul_f32_dpp v59, v16, v67 quad_perm:[0,0,0,0] {DPP}")
    e(f"v_add_f32_dpp v15, v15, v15 quad_perm:[2,3,0,1] {DPP}")
    e("v_rcp_f32 v15, v15")
    for q in range(1, 4):
        for k in range(4): e(f"v_fmac_f32_dpp v{56+k}, v16, v{64+4*q+k} quad_perm:[{q},{q},{q},{q}] {DPP}")
    for k in range(4): e(f"v_mul_f32 v{56+k}, v15, v{56+k}")
    lab("L_rsum")
    c("sum v[56:59] over lane bits 5,4,3: row r ends with component [0,2,1,3][r]")
    e("s_nop 0")
    e("v_permlane32_swap_b32 v56, v57"); e("v_permlane32_swap_b32 v58, v59")
    e("v_add_f32 v56, v56, v57"); e("v_add_f32 v58, v58, v59"); e("s_nop 1")
    e("v_permlane16_swap_b32 v56, v58")
    e("v_add_f32 v56, v56, v58"); e("s_nop 1")
    e(f"v_add_f32_dpp v56, v56, v56 row_ror:8 {DPP}")
    e(f"ds_write_b32 v8, v56 offset:{L_RED}")
    e("s_waitcnt lgkmcnt(0)")
    e("s_barrier")
    stamp(2, 2)
    e("s_cmp_lg_u32 s3, 0"); e("s_cbranch_scc1 L_sdone")
    e("s_mov_b64 exec, 0xffff")
    for w in range(4): e(f"ds_read_b64 v[{60+2*w}:{61+2*w}], v10 offset:{L_RED + w*128}")
    e("s_waitcnt lgkmcnt(2)")
    e("v_add_f32 v60, v60, v62"); e("v_add_f32 v61, v61, v63")
    e("s_waitcnt lgkmcnt(0)")
    e("v_add_f32 v64, v64, v66"); e("v_add_f32 v65, v65, v67")
    e("v_add_f32 v60, v60, v64"); e("v_add_f32 v61, v61, v65")
    e("v_cvt_pk_bf16_f32 v60, v60, v61")
    e("buffer_store_dword v60, v9, s[40:43], s44 offen")
    stamp(3, 2)
    c("workgroup 32 has seen data that depends on every workgroup, so all have read the old tag: leave the new one")
    e("s_cmp_lg_u32 s2, 32"); e("s_cbranch_scc1 L_sdone")
    e(f"s_mov_b32 s50, {EPOCH:#x}"); e("v_mov_b32 v61, s55")
    e("s_mov_b64 exec, 1"); e("buffer_store_dword v61, off, s[36:39], s50 sc1")
    lab("L_sdone")
    if diagw:
        lab("L_diag")
        e("s_memrealtime s[62:63]"); e("s_waitcnt lgkmcnt(0)")
        e("s_sub_u32 s62, s62, s60"); e(f"s_cmp_lt_u32 s62, {diagw*100}"); e("s_cbranch_scc1 L_diag")
    if stamps:
        e("s_cmp_lg_u32 s3, 0"); e("s_cbranch_scc1 L_end")
        e("s_waitcnt vmcnt(0)")
        e("s_memrealtime s[62:63]"); e("s_getreg_b32 s50, hwreg(HW_REG_XCC_ID)"); e("s_waitcnt lgkmcnt(0)")
        e("s_mov_b64 exec, 1"); e("s_mov_b32 s36, s28"); e("s_mov_b32 s37, s29")
        for k in range(4): e(f"v_mov_b32 v{16+k}, s{60+k}")
        e("s_lshl_b32 s51, s2, 4"); e("buffer_store_dwordx4 v[16:19], off, s[36:39], s51")
        e("v_mov_b32 v20, s50"); e("s_lshl_b32 s51, s2, 2"); e("s_add_u32 s51, s51, 0x10000")
        e("buffer_store_dword v20, off, s[36:39], s51")
        for k in range(12): e(f"v_mov_b32 v{24+k}, s{64+k}")
        e("s_lshl_b32 s51, s2, 7"); e("s_add_u32 s51, s51, 0x20000")
        for k in range(3): e(f"buffer_store_dwordx4 v[{24+4*k}:{27+4*k}], off, s[36:39], s51 offset:{16*k}")
    e("s_endpgm")
    lab("L_redb")
    c("branch B: wave = 8 heads; column = 512 + quarter*128 + ((id&1)*8 + granule)*8 + half*4 + k")
    e(f"s_mul_i32 s52, s2, {YBS}"); e("s_lshl_b32 s51, s3, 10"); e("s_add_u32 s52, s52, s51"); e(f"s_add_u32 s52, s52, {YB - 32*YBS:#x}")
    e("v_lshl_add_u32 v8, v14, 2, v8"); e("v_lshl_add_u32 v8, v8, 2, s54")
    e("v_lshrrev_b32 v9, 1, v0"); e("v_lshlrev_b32 v9, 4, v9"); e("v_and_b32 v11, 1, v0"); e("v_lshl_add_u32 v9, v11, 2, v9")
    e("s_and_b32 s45, s2, 1"); e("s_lshl_b32 s45, s45, 7"); e("s_add_u32 s44, s44, s45")
    e("s_and_b32 s45, s2, 2"); e("s_lshl2_add_u32 s44, s45, s44"); e("s_add_u32 s44, s44, 1024")
    if rwb: e("s_barrier")
    if rdb: e(f"s_sleep {rdb}")
    lab("L_bpoll")
    e("buffer_load_dwordx4 v[56:59], v3, s[36:39], s52 offen sc1")
    e("s_waitcnt vmcnt(0)"); get_tag(16, 56)
    e("v_cmp_ne_u32 vcc, s55, v16")
    e("s_sub_u32 s50, s50, 1"); e("s_cbranch_scc1 L_bdone")
    e("s_and_b64 exec, exec, vcc"); e("s_cbranch_scc1 L_bpoll")
    lab("L_bdone")
    stamp(1, 2)
    e("s_mov_b64 exec, -1")
    e("s_branch L_rsum")

    lab("L_helper")
    e(f"v_mov_b32 v41, {L_FLAG}")
    for k in range(4): e(f"v_mov_b32 v{28+k}, 0")
    e("ds_write_b128 v41, v[28:31]"); e("ds_write_b128 v41, v[28:31] offset:16")
    e("s_sub_u32 s33, s3, 4")
    e("s_and_b32 s54, s31, 7")
    e("v_and_b32 v1, 15, v0")
    e("v_lshrrev_b32 v2, 4, v0")
    e("v_bfe_u32 v34, v0, 3, 1")
    e("v_lshlrev_b32 v3, 18, v2"); e("v_lshl_add_u32 v3, v1, 4, v3")
    e("v_lshlrev_b32 v35, 10, v34"); e("v_lshl_add_u32 v35, v2, 6, v35")
    e("s_and_b32 s49, s31, 3")
    e("s_lshl_b32 s50, s32, 8"); e("s_lshl_b32 s51, s49, 20"); e("s_add_u32 s50, s50, s51"); e("s_lshl_b32 s51, s49, 8")
    e("s_movk_i32 s38, 2048")
    e("s_cmp_lt_u32 s54, 4")
    e("s_waitcnt lgkmcnt(0)")
    e("s_cselect_b32 s36, s4, s14"); e("s_cselect_b32 s37, s5, s15"); e("s_cselect_b32 s40, s10, s20"); e("s_cselect_b32 s41, s11, s21")
    if hb < 0: e("s_barrier")
    e("s_cmp_lg_u32 s33, 0"); e("s_cbranch_scc1 L_hc")
    hmark(0)
    c("helper 0: 128 of the 512 rows of the q projection of head h (branch A for j < 4, else branch B)")
    for k in range(4): e(f"buffer_load_dwordx4 v[{8+4*k}:{11+4*k}], v35, s[36:39], s51 offen offset:{16*k}")
    for t in range(32):
        e(f"buffer_load_dwordx4 v[{64+4*t}:{67+4*t}], v3, s[40:43], s50 offen nt")
        if t < 31: e("s_addk_i32 s50, 0x2000")
    hmark(1)
    e(f"s_add_u32 s52, s28, {(wsoff<<20) + EPOCH:#x}"); e("s_addc_u32 s53, s29, 0")
    e("s_load_dword s55, s[52:53], 0")
    lab("L_hc")
    c("diagonal masks m_i: e=l&7 ; (e>>1==i) ? half(e&1) : 0")
    e("v_and_b32 v24, 1, v0"); e("v_lshlrev_b32 v24, 4, v24"); e("v_mov_b32 v25, 0xffff"); e("v_lshlrev_b32 v24, v24, v25")
    e("v_bfe_u32 v25, v0, 1, 2")
    for i in range(4):
        e(f"v_cmp_eq_u32 vcc, {i}, v25"); e("s_nop 1"); e(f"v_cndmask_b32 v{4+i}, 0, v24, vcc")
    e("v_lshlrev_b32 v40, 4, v0"); e("v_mov_b32 v60, 0")
    e(f"s_add_u32 s44, s28, {wsoff<<20:#x}"); e("s_addc_u32 s45, s29, 0"); e("s_mov_b32 s46, s42"); e("s_mov_b32 s47, s43")
    tag_consts()
    def lds_wait(off, val, sl=16):
        n = u()
        e(f"s_mov_b32 s50, {(spin << 6) // (sl + 2)}")
        lab(f"L_p{n}")
        e(f"ds_read_b32 v24, v41 offset:{off}"); e("s_waitcnt lgkmcnt(0)")
        e("v_readfirstlane_b32 s51, v24"); e("s_sub_u32 s50, s50, 1"); e(f"s_cbranch_scc1 L_pd{n}")
        e(f"s_cmp_ge_u32 s51, {val}"); e(f"s_cbranch_scc1 L_pd{n}")
        e(f"s_sleep {sl}"); e(f"s_branch L_p{n}")
        lab(f"L_pd{n}")
    e("s_cmp_lg_u32 s33, 0"); e("s_cbranch_scc1 L_hb")
    e("s_waitcnt lgkmcnt(0)")
    e("s_add_u32 s55, s55, 0x04030201"); e("v_mov_b32 v63, s55"); e("v_mov_b32 v62, 1")
    def rows_mfma(waits):
        e("s_mov_b32 s52, 0x01000100"); e("s_mov_b32 s53, 0x03020302")
        if waits: e("s_waitcnt vmcnt(32)")
        for s_ in range(32):
            e(f"v_perm_b32 v32, v{8 + s_//2}, v{8 + s_//2}, s{52 + s_%2}")
            for i in range(4): e(f"v_and_b32 v{24+i}, v32, v{4+i}")
            if waits: e(f"s_waitcnt vmcnt({31-s_})"); e("s_nop 0")
            else: e("s_nop 1")
            e(f"v_mfma_f32_16x16x32_bf16 v[56:59], v[24:27], v[{64+4*s_}:{67+4*s_}], {'v[56:59]' if s_ else '0'}")
            if waits and s_ == hb: e("s_barrier")
    rows_mfma(True)
    e("s_lshl_b32 s52, s32, 13"); e(f"s_add_u32 s52, s52, {QP:#x}")
    e("s_lshl_b32 s51, s54, 10"); e("s_add_u32 s51, s51, s52")
    e("s_nop 3")
    put_tag(56, 63)
    e("buffer_store_dwordx4 v[56:59], v40, s[44:47], s51 offen sc1")
    def poll_begin(g=None):
        n = u(); e(f"s_mov_b32 s79, {gspin if g is None else g}"); lab(f"L_g{n}"); return n
    def poll_end(n, sl):
        e("s_not_b64 s[80:81], vcc"); e("s_mov_b64 exec, -1"); e(f"s_cbranch_scc0 L_gd{n}")
        e("s_sub_u32 s79, s79, 1"); e(f"s_cbranch_scc1 L_gd{n}")
        if sl: e(f"s_sleep {sl}")
        e(f"s_branch L_g{n}")
        lab(f"L_gd{n}")
    if stamps: e("s_memrealtime s[86:87]")
    c("helper 0 adds up the four branch-A slices for this workgroup's batch")
    e("v_and_b32 v42, 31, v0"); e("v_lshlrev_b32 v42, 4, v42"); e("v_lshrrev_b32 v24, 5, v0"); e("v_lshl_add_u32 v42, v24, 10, v42")
    e("v_lshlrev_b32 v43, 4, v1"); e("v_lshl_add_u32 v43, v24, 2, v43"); e("v_and_b32 v24, 1, v2"); e("v_lshl_add_u32 v43, v24, 3, v43")
    e("s_and_b32 s51, s2, 32"); e("s_lshl4_add_u32 s52, s51, s52")
    e("s_waitcnt vmcnt(0)")
    if stamps: e("s_memrealtime s[88:89]")
    lds_wait(28, 1, 2)
    n = poll_begin(qspin)
    for t in range(2): e(f"buffer_load_dwordx4 v[{8+4*t}:{11+4*t}], v42, s[44:47], s52 offen offset:{2048*t} sc1")
    for t in range(2):
        e(f"s_waitcnt vmcnt({1-t})"); get_tag(24 + t, 8 + 4 * t)
    for t in range(2): e(f"v_cmpx_eq_u32 vcc, s55, v{24+t}")
    poll_end(n, qslp)
    for k in range(4): e(f"v_add_f32 v{8+k}, v{8+k}, v{12+k}")
    e("s_nop 0")
    e("v_permlane32_swap_b32 v8, v10"); e("v_permlane32_swap_b32 v9, v11")
    e("v_add_f32 v8, v8, v10"); e("v_add_f32 v9, v9, v11")
    e("v_cvt_pk_bf16_f32 v8, v8, v9")
    e(f"ds_write_b32 v43, v8 offset:{L_QA}")
    e("ds_write_b64 v41, v[62:63] offset:16")
    if stamps: e("s_memrealtime s[82:83]")
    hdump(10)
    lab("L_hb")
    e("s_cmp_eq_u32 s33, 2"); e("s_cbranch_scc1 L_balance")
    def get_launch_tag():
        lds_wait(16, 1, 4)
        e("ds_read_b32 v63, v41 offset:20"); e("s_waitcnt lgkmcnt(0)")
        e("v_readfirstlane_b32 s55, v63")
    e("s_cmp_eq_u32 s33, 1"); e("s_cbranch_scc1 L_agent")
    if hb >= 0:
        e("s_cmp_eq_u32 s33, 0"); e("s_cbranch_scc1 L_h0"); e("s_barrier"); lab("L_h0")
    get_launch_tag()
    if tw:
        e("s_cmp_lg_u32 s33, 3"); e("s_cbranch_scc1 L_htiles")
        c("helper 3 touches both 2 MiB halves of the next tensor a little ahead, so its translations are cached")
        e("v_lshlrev_b32 v42, 21, v0")
        e("s_lshr_b32 s52, s31, 4"); e("s_lshl3_add_u32 s52, s52, s30"); e("s_lshl_b32 s52, s52, 22"); e("s_lshl_b32 s53, s35, 22")
        for ptr, un, tick in ((16, 52, 29), (18, 52, 37), (8, 53, 45)):
            lds_wait(8, 256 * (tick - tw + pt))
            e(f"s_add_u32 s40, s{ptr}, s{un}"); e(f"s_addc_u32 s41, s{ptr+1}, 0")
            e("s_mov_b64 exec, 3"); e("buffer_load_dword v43, v42, s[40:43], 0 offen nt"); e("s_mov_b64 exec, -1")
    def wo_tiles():
        e("s_lshl_b32 s50, s33, 15"); e(f"s_add_u32 s50, s50, {L_WO}")
        e("v_lshrrev_b32 v33, 2, v1"); e("v_lshl_add_u32 v33, v2, 3, v33"); e("v_lshlrev_b32 v33, 8, v33")
        e("v_and_b32 v24, 3, v0"); e("v_lshl_add_u32 v33, v24, 3, v33"); e("v_add_u32 v33, s50, v33")
        for nb in range(8):
            for kb in range(4):
                r = 128 + 4 * (nb * 4 + kb)
                for hh in range(2):
                    e(f"ds_read_b64_tr_b16 v[{r+2*hh}:{r+2*hh+1}], v33 offset:{kb*8192 + hh*1024 + nb*32}")
            e("s_waitcnt lgkmcnt(0)")
    e("s_branch L_htiles")

    lab("L_agent")
    hmark(0)
    e("s_cmp_lt_u32 s54, 4"); e("s_cbranch_scc1 L_j2")
    c("wo_B slice (four workgroups per head): slot s holds row h*128 + 4*(s ^ 4*(h&7)) + g, columns (j&3)*128..")
    e("s_lshl_b32 s50, s32, 17"); e("s_and_b32 s51, s54, 3"); e("s_lshl_b32 s51, s51, 8"); e("s_add_u32 s50, s50, s51")
    e("s_mov_b32 s40, s22"); e("s_mov_b32 s41, s23")
    e("v_lshlrev_b32 v3, 10, v2"); e("v_lshl_add_u32 v3, v1, 4, v3")
    e("s_and_b32 s51, s32, 7"); e("s_lshl_b32 s51, s51, 14"); e("s_add_u32 s53, s50, s51")
    for s_ in range(32):
        e(f"s_xor_b32 s50, s53, {s_<<12:#x}")
        if s_ >= wth: e(f"s_waitcnt vmcnt({wth-1})")
        e(f"buffer_load_dwordx4 v[{64+4*s_}:{67+4*s_}], v3, s[40:43], s50 offen nt")
    lab("L_j2")
    hmark(1)
    if hb >= 0: e("s_barrier")
    hdump(12)
    get_launch_tag()
    c("job 1: add up line j of the slices of head h")
    e("s_lshl_b32 s52, s32, 13"); e("s_lshl_b32 s51, s54, 7"); e("s_add_u32 s52, s52, s51"); e(f"s_add_u32 s52, s52, {QP + 4096:#x}")
    e("v_bfe_u32 v42, v0, 3, 2"); e("v_lshlrev_b32 v42, 10, v42"); e("v_and_b32 v24, 7, v0"); e("v_lshl_add_u32 v42, v24, 4, v42")
    if T1: lds_wait(8, 4 * 256 * T1 - 768 + 256 * pt)
    n = poll_begin()
    e("s_mov_b32 exec_hi, 0")
    e("buffer_load_dwordx4 v[8:11], v42, s[44:47], s52 offen sc1")
    e("s_waitcnt vmcnt(0)")
    get_tag(16, 8); e("v_cmp_eq_u32 vcc, s55, v16")
    e("s_nop 0"); e("s_mov_b32 vcc_hi, vcc_lo")
    poll_end(n, slp)
    for k in range(4): e(f"v_add_f32_dpp v{8+k}, v{8+k}, v{8+k} row_ror:8 {DPP}")
    for sw in (16,):
        for k in range(4): e(f"v_mov_b32 v{12+k}, v{8+k}")
        e("s_nop 0")
        for k in range(4): e(f"v_permlane{sw}_swap_b32 v{8+k}, v{12+k}")
        for k in range(4): e(f"v_add_f32 v{8+k}, v{8+k}, v{12+k}")
    put_tag(8, 63)
    e("s_lshl3_add_u32 s50, s32, s54"); e("s_lshl_b32 s50, s50, 7"); e(f"s_add_u32 s50, s50, {QB:#x}")
    e("s_mov_b64 exec, 0xff"); e("buffer_store_dwordx4 v[8:11], v40, s[44:47], s50 offen sc1"); e("s_mov_b64 exec, -1")
    c("job 2: q of the four heads of this workgroup's B unit -> LDS; lane = (head&1, half, c)")
    e("v_and_b32 v42, 31, v0"); e("v_lshlrev_b32 v42, 4, v42"); e("v_lshrrev_b32 v24, 5, v0"); e("v_lshl_add_u32 v42, v24, 10, v42")
    e("v_lshlrev_b32 v43, 4, v1"); e("v_lshl_add_u32 v43, v24, 8, v43"); e("v_and_b32 v24, 1, v2"); e("v_lshl_add_u32 v43, v24, 3, v43")
    e("s_lshl_b32 s52, s30, 12"); e("s_lshr_b32 s51, s31, 4"); e("s_lshl_b32 s51, s51, 9"); e("s_add_u32 s52, s52, s51")
    e(f"s_add_u32 s52, s52, {QB:#x}")
    lds_wait(8, 4 * 256 * T2 - 768 + 256 * pt)
    n = poll_begin()
    e("buffer_load_dwordx4 v[8:11], v42, s[44:47], s52 offen sc1")
    e("buffer_load_dwordx4 v[12:15], v42, s[44:47], s52 offen offset:2048 sc1")
    e("s_waitcnt vmcnt(0)")
    get_tag(16, 8); get_tag(17, 12)
    e("v_cmpx_eq_u32 vcc, s55, v16"); e("v_cmpx_eq_u32 vcc, s55, v17")
    poll_end(n, slp)
    for q in range(4): e(f"v_cvt_pk_bf16_f32 v{16+q}, v{8+2*q}, v{9+2*q}")
    e(f"ds_write_b64 v43, v[16:17] offset:{L_QB}"); e(f"ds_write_b64 v43, v[18:19] offset:{L_QB+512}")
    lds_wait(24, 2)
    e("v_mov_b32 v25, 1")
    e("ds_write_b32 v41, v25")
    c("job 3: merge the four waves' B partials, publish (outputs first, then the tagged max/sum line)")
    lds_wait(4, 256)
    e("v_lshlrev_b32 v42, 4, v2")
    e("v_lshlrev_b32 v43, 5, v0")
    for w in range(4): e(f"ds_read_b32 v{8+w}, v42 offset:{L_RECB + w*RECB + 2048}")
    e("s_waitcnt lgkmcnt(0)")
    for w in range(4):
        for a in range(4): e(f"ds_read_b32 v{12+4*w+a}, v42 offset:{L_RECB + w*RECB + 2304 + 64*a}")
        e("s_waitcnt lgkmcnt(0)")
    e("v_max3_f32 v44, v8, v9, v10"); e("v_max_f32 v44, v44, v11")
    for w in range(4): e(f"v_sub_f32 v{8+w}, v{8+w}, v44")
    for w in range(4): e(f"v_exp_f32 v{8+w}, v{8+w}")
    e("v_mov_b32 v45, 0"); e("v_lshlrev_b32 v46, 8, v44"); e("v_mov_b32 v47, 0")
    for w in range(4):
        for a in range(4): e(f"v_fmac_f32 v45, v{8+w}, v{12+4*w+a}")
    put_tag(44, 63)
    for k in range(8): e(f"v_mov_b32 v{48+k}, 0")
    for w in range(4):
        e(f"ds_read_b128 v[12:15], v43 offset:{L_RECB + w*RECB}")
        e(f"ds_read_b128 v[16:19], v43 offset:{L_RECB + w*RECB + 16}")
        e("s_waitcnt lgkmcnt(0)")
        for k in range(8): e(f"v_fmac_f32 v{48+k}, v{8+w}, v{12+k}")
    for k in range(4): e(f"v_cvt_pk_bf16_f32 v{48+k}, v{48+2*k}, v{49+2*k}")
    e("s_lshr_b32 s52, s31, 4"); e("s_lshl3_add_u32 s52, s52, s30")
    e("s_and_b32 s51, s31, 15"); e("s_lshl4_add_u32 s52, s52, s51")
    e("s_lshl_b32 s50, s52, 10"); e(f"s_add_u32 s50, s50, {PBO:#x}")
    e("buffer_store_dwordx4 v[48:51], v40, s[44:47], s50 offen sc1")
    e("s_lshl_b32 s50, s52, 7"); e(f"s_add_u32 s50, s50, {PBML:#x}")
    e("v_lshlrev_b32 v42, 5, v2"); e("v_lshl_add_u32 v42, v1, 4, v42")
    e("s_waitcnt vmcnt(0)")
    e("s_mov_b32 exec_lo, 0x00030003"); e("s_mov_b32 exec_hi, 0x00030003")
    e("buffer_store_dwordx4 v[44:47], v42, s[44:47], s50 offen sc1")
    e("s_mov_b64 exec, -1")
    e("s_cmp_lt_u32 s54, 4"); e("s_cbranch_scc1 L_htiles")
    c("job 4: finish head h (both batches), multiply by the wo slice")
    e("v_lshrrev_b32 v42, 5, v0")
    e("v_lshlrev_b32 v43, 14, v42"); e("v_lshl_add_u32 v43, v1, 7, v43")
    e("v_and_b32 v47, 1, v2")
    e("v_lshlrev_b32 v35, 17, v42"); e("v_lshl_add_u32 v35, v47, 10, v35"); e("v_lshl_add_u32 v35, v1, 4, v35")
    e("v_lshl_add_u32 v33, v42, 5, v47"); e("v_lshlrev_b32 v33, 2, v33")
    e("s_lshr_b32 s51, s31, 3")
    e("s_lshl_b32 s52, s30, 11"); e("s_lshl_b32 s53, s51, 5"); e("s_add_u32 s52, s52, s53"); e(f"s_add_u32 s52, s52, {PBML:#x}")
    e("s_lshl_b32 s53, s30, 14"); e("s_lshl_b32 s51, s51, 8"); e("s_add_u32 s53, s53, s51"); e(f"s_add_u32 s53, s53, {PBO:#x}")
    lds_wait(8, 4 * 256 * (NA1 + 4 + T4) - 768 + 256 * pt)
    n = poll_begin()
    e("buffer_load_dwordx4 v[8:11], v43, s[44:47], s52 offen sc1")
    e("s_waitcnt vmcnt(0)")
    get_tag(16, 8, 2); e("v_perm_b32 v8, v8, v10, s57"); e("v_cmp_eq_u32 vcc, s55, v16")
    poll_end(n, slp)
    for t in range(8):
        e(f"buffer_load_dwordx4 v[{192+4*t}:{195+4*t}], v35, s[44:47], s53 offen offset:{2048*(t%2)} sc1")
        if t % 2 and t < 7: e("s_addk_i32 s53, 0x1000")
    e(f"v_max_f32_dpp v12, v8, v8 quad_perm:[1,0,3,2] {DPP}"); e("s_nop 1")
    for d in ("quad_perm:[2,3,0,1]", "row_ror:4", "row_ror:8"):
        e(f"v_max_f32_dpp v12, v12, v12 {d} {DPP}"); e("s_nop 1")
    e("v_sub_f32 v8, v8, v12"); e("v_exp_f32 v8, v8"); e("s_nop 0"); e("v_mul_f32 v9, v8, v9"); e("s_nop 1")
    for d in ("quad_perm:[1,0,3,2]", "quad_perm:[2,3,0,1]", "row_ror:4", "row_ror:8"):
        e(f"v_add_f32_dpp v9, v9, v9 {d} {DPP}"); e("s_nop 1")
    e("v_rcp_f32 v9, v9"); e("s_nop 0"); e("v_mul_f32 v8, v8, v9")
    for t in range(8): e(f"ds_bpermute_b32 v{48+t}, v33, v8 offset:{8*t}")
    for k in range(8): e(f"v_mov_b32 v{16+k}, 0")
    e("s_waitcnt vmcnt(0) lgkmcnt(0)")
    for t in range(8):
        for k in range(4):
            e(f"v_lshlrev_b32 v24, 16, v{192+4*t+k}"); e(f"v_and_b32 v25, 0xffff0000, v{192+4*t+k}")
            e(f"v_fmac_f32 v{16+2*k}, v{48+t}, v24"); e(f"v_fmac_f32 v{17+2*k}, v{48+t}, v25")
    e("s_nop 1")
    for k in range(4): e(f"v_permlane16_swap_b32 v{16+k}, v{20+k}")
    for k in range(4): e(f"v_add_f32 v{16+k}, v{16+k}, v{20+k}")
    e("v_cvt_pk_bf16_f32 v16, v16, v17"); e("v_cvt_pk_bf16_f32 v17, v18, v19")
    e("v_lshl_add_u32 v46, v1, 1, v47"); e("s_and_b32 s51, s32, 7"); e("s_lshl_b32 s51, s51, 2")
    e("v_xor_b32 v46, s51, v46"); e("v_lshlrev_b32 v46, 1, v46"); e("v_lshl_add_u32 v46, v42, 8, v46")
    for k in range(4): e(f"ds_write_b16{'_d16_hi' if k%2 else ''} v46, v{16+k//2} offset:{L_SCR + 64*k}")
    e("v_lshlrev_b32 v46, 8, v34"); e("v_lshl_add_u32 v46, v2, 6, v46")
    e("s_waitcnt lgkmcnt(0)")
    for k in range(4): e(f"ds_read_b128 v[{8+4*k}:{11+4*k}], v46 offset:{L_SCR + 16*k}")
    e("s_waitcnt lgkmcnt(0)")
    rows_mfma(False)
    c("line (b, cq*4 + ((l>>3)&3)) of head h")
    e("s_lshl_b32 s52, s32, 7"); e("s_and_b32 s51, s54, 3"); e(f"s_mul_i32 s51, s51, {4*YBS}")
    e("s_add_u32 s52, s52, s51"); e(f"s_add_u32 s52, s52, {YB:#x}")
    e("v_bfe_u32 v60, v0, 3, 2"); e("v_lshl_add_u32 v60, v42, 4, v60"); e(f"v_mul_u32_u24 v60, {YBS}, v60")
    e("v_and_b32 v24, 7, v0"); e("v_lshl_add_u32 v60, v24, 4, v60")
    put_tag(56, 63)
    if YBT >= 0:
        if YBT: lds_wait(8, 4 * 256 * YBT - 768 + 256 * pt)
        e("buffer_store_dwordx4 v[56:59], v60, s[44:47], s52 offen sc1")

    lab("L_htiles")
    lds_wait(24, 1, 32)
    wo_tiles()
    if cw:
        e("s_cmp_lg_u32 s33, 3"); e("s_cbranch_scc1 L_hfinal")
        c("helper 3 reads a 1/32 slice of this kernel's code now and then, so that it waits in L2 when first executed")
        e("s_getpc_b64 s[52:53]")
        lab("L_pc")
        e(f"s_sub_u32 s52, s52, L_pc-{NAME}_kernel"); e("s_subb_u32 s53, s53, 0")
        e("s_lshl_b32 s50, s31, 10"); e("v_add_u32 v42, s50, v40")
        e(f"s_mov_b32 s50, L_last-{NAME}_kernel-16"); e("v_min_u32 v42, s50, v42")
        e("v_mov_b32 v43, s53"); e("v_add_co_u32 v42, vcc, s52, v42"); e("s_nop 1"); e("v_addc_co_u32 v43, vcc, 0, v43, vcc")
        for tick in [int(z) for z in cw.split(".")]:
            lds_wait(8, 256 * (tick + pt))
            e("global_load_dwordx4 v[44:47], v[42:43], off")
    lab("L_hfinal")
    e("v_and_b32 v8, 3, v0"); e(f"v_mul_u32_u24 v8, {RECA}, v8"); e("v_lshl_add_u32 v8, v2, 4, v8"); e("v_mov_b32 v9, 0")
    e("s_and_b32 s50, s31, 3"); e("s_lshl_b32 s50, s50, 5"); e("s_add_u32 s50, s50, s32"); e("s_lshl_b32 s50, s50, 7")
    e("s_bfe_u32 s51, s2, 0x10005"); e("s_lshl2_add_u32 s51, s51, s33"); e(f"s_mul_i32 s51, s51, {4*YAS}")
    e("s_add_u32 s50, s50, s51"); e(f"s_add_u32 s50, s50, {YA:#x}"); e(f"s_add_u32 s51, s50, {2*YAS}")
    e(f"v_mul_u32_u24 v10, {YAS}, v34"); e("v_and_b32 v11, 7, v0"); e("v_lshl_add_u32 v10, v11, 4, v10")
    e("v_lshl_add_u32 v10, v2, 28, v10")
    e("s_and_b32 s48, s54, 4"); e("s_add_u32 s48, s48, s33")
    if rh:
        c("helper 0 is here early: it runs the block once with an empty store range, which loads the instruction cache")
        e("s_cmp_lg_u32 s33, 0"); e("s_cselect_b32 s46, s46, 0"); e("s_cbranch_scc0 L_hf1")
        lab("L_hf0")
    e("s_waitcnt vmcnt(0) lgkmcnt(0)")
    e("s_barrier")
    if rh: lab("L_hf1")
    if stamps >= 2: e("s_memrealtime s[86:87]"); e("s_waitcnt lgkmcnt(0)")
    for kb in range(4): e(f"ds_read_b128 v[{16+4*kb}:{19+4*kb}], v8 offset:{L_RECA + kb*64}")
    e(f"ds_read_b128 v[12:15], v9 offset:{L_MA}")
    if YBT < 0:
        e("s_cmp_lg_u32 s48, 5"); e("s_cbranch_scc1 L_hf2")
        e("buffer_store_dwordx4 v[56:59], v60, s[44:47], s52 offen sc1")
        lab("L_hf2")
    def tile(nb, kb):
        d = 64 + 4 * nb; r = 128 + 4 * (nb * 4 + kb)
        e(f"v_mfma_f32_16x16x32_bf16 v[{d}:{d+3}], v[{16+4*kb}:{19+4*kb}], v[{r}:{r+3}], {f'v[{d}:{d+3}]' if kb else '0'}")
    fill = []
    fill += ["s_waitcnt lgkmcnt(0)", "v_max3_f32 v11, v12, v13, v14", "v_max_f32 v11, v11, v15"]
    fill += [f"v_sub_f32 v{12+w}, v{12+w}, v11" for w in range(4)]
    fill += [f"v_exp_f32 v{12+w}, v{12+w}" for w in range(4)]
    def comb(nb):
        d = 64 + 4 * nb; y = 32 + nb
        return [f"v_mul_f32 v{y}, v12, v{d}"] + [f"v_fmac_f32 v{y}, v{12+w}, v{d+w}" for w in range(1, 4)] + \
               [f"v_perm_b32 v{y}, v{y}, v63, s{56 + nb % 4}"]
    for nb in range(8):
        if nb >= 2: fill += comb(nb - 2)
        if nb == 5 and es: fill.append("buffer_store_dwordx4 v[32:35], v10, s[44:47], s50 offen sc1")
        for kb in range(4):
            if nb == 0: e(f"s_waitcnt lgkmcnt({4-kb})")
            tile(nb, kb)
            if nb >= 1:
                for _ in range(2):
                    if fill: e(fill.pop(0))
    for x in fill: e(x)
    if not es: e("buffer_store_dwordx4 v[32:35], v10, s[44:47], s50 offen sc1")
    for x in comb(6): e(x)
    e(f"s_nop {2 if es else 1}")
    for x in comb(7): e(x)
    e("buffer_store_dwordx4 v[36:39], v10, s[44:47], s51 offen sc1")
    if rh:
        e("s_cmp_eq_u32 s46, 0"); e(f"s_mov_b32 s46, {WSSZ:#x}"); e("s_cbranch_scc1 L_hf0")
    if stamps:
        e("s_cmp_lg_u32 s33, 0"); e("s_cbranch_scc1 L_end")
        e("s_memrealtime s[84:85]"); e("s_waitcnt lgkmcnt(0)")
        e("s_mov_b64 exec, 1"); e("s_mov_b32 s44, s28"); e("s_mov_b32 s45, s29")
        for k in range(8): e(f"v_mov_b32 v{16+k}, s{82+k}")
        e("s_lshl_b32 s51, s2, 7"); e("s_add_u32 s51, s51, 0x20030")
        e("buffer_store_dwordx4 v[16:19], off, s[44:47], s51")
        e("buffer_store_dwordx4 v[20:23], off, s[44:47], s51 offset:16")
    lab("L_end")
    e("s_endpgm")
    lab("L_balance")
    c("helper 2: every 8 loads of the stream it brings a few rows of wo_A into LDS, and (speed only) compares this")
    c("workgroup's progress with its neighbours' to set the depth of the load queue")
    e("s_mul_i32 s52, s30, 4352"); e(f"s_add_u32 s52, s52, {PROG:#x}")
    e("s_lshl1_add_u32 s53, s31, s52")
    e("v_lshlrev_b32 v42, 1, v0"); e("v_mov_b32 v12, 0")
    e("s_cmp_lg_u32 s31, 0"); e("s_cbranch_scc1 L_pi")
    e("s_mov_b64 exec, 0xff")
    e("buffer_store_dwordx4 v[28:31], v40, s[44:47], s52 offen sc1")
    e("s_cmp_lg_u32 s30, 0"); e("s_cbranch_scc1 L_pi")
    e("s_mov_b64 exec, -1")
    e("v_mul_u32_u24 v13, 0x1100, v0"); e(f"s_mov_b32 s50, {PROG + 0x10000:#x}")
    e("buffer_store_dword v12, v13, s[44:47], s50 offen sc1")
    lab("L_pi")
    e("s_mov_b64 exec, -1")
    e("v_lshlrev_b32 v33, 10, v2"); e("v_lshl_add_u32 v33, v1, 4, v33")
    e("s_mov_b32 s40, s12"); e("s_mov_b32 s41, s13")
    e("s_lshl_b32 s62, s32, 17")
    e("s_and_b32 s63, s54, 3"); e("s_lshl_b32 s63, s63, 3")
    e("s_mov_b32 s36, 128")
    e(f"s_mov_b32 s49, {256*n0 - 128}"); e(f"s_mov_b32 s79, {spin << 4}")
    e("s_mov_b32 s60, 0"); e("s_mov_b32 s61, 0")
    def wo_piece():
        e("s_lshl_b32 s37, s63, 10"); e(f"s_add_u32 m0, s37, {L_WO}")
        e("s_lshl_b32 s50, s63, 12"); e("s_add_u32 s50, s50, s62")
        for k in range(4):
            e(f"buffer_load_dwordx4 v33, s[40:43], s50 offen {wpol} lds")
            if k < 3: e("s_add_u32 m0, m0, 0x8000"); e("s_addk_i32 s50, 256")
        e("s_add_u32 s63, s63, 1"); e("s_and_b32 s63, s63, 31")
        e("s_sub_u32 s36, s36, 4")
    c("wo_A: piece = four rows, one load per column quarter; four workgroups fetch a quarter each right away (into L2 too)")
    hmark(0)
    e("s_cmp_ge_u32 s54, 4"); e("s_cbranch_scc1 L_pb")
    lab("L_pa")
    wo_piece()
    e("s_cmp_gt_u32 s36, 96"); e("s_cbranch_scc1 L_pa")
    lab("L_pb")
    hmark(1)
    if hb >= 0: e("s_barrier")
    hdump(14)
    lab("L_pl")
    e("ds_read_b32 v24, v41 offset:8"); e("s_waitcnt lgkmcnt(0)")
    e("v_readfirstlane_b32 s51, v24"); e("s_sub_i32 s79, s79, 1"); e("s_cmp_lt_i32 s79, 0"); e("s_cbranch_scc1 L_pt")
    e("s_cmp_ge_u32 s51, s49"); e("s_cbranch_scc1 L_pt")
    e("s_sleep 2"); e("s_branch L_pl")
    lab("L_pt")
    e("s_add_u32 s48, s51, 128"); e("s_lshr_b32 s48, s48, 8")
    e("s_lshl_b32 s49, s48, 8"); e("s_add_u32 s49, s49, 128"); e(f"s_min_u32 s49, s49, {(76 + pt)*256}")
    e("v_mov_b32 v12, s48")
    e("s_mov_b32 exec_hi, 1")
    e("buffer_load_sshort v13, v42, s[44:47], s52 offen nt")
    e("s_mov_b64 exec, 1")
    e("buffer_store_short v12, off, s[44:47], s53")
    if xk:
        c("column leaders rank the columns every few steps")
        e("s_cmp_lg_u32 s31, 0"); e("s_cbranch_scc1 L_pn")
        e(f"s_lshr_b32 s50, s48, {xp.bit_length()-1}"); e("s_cmp_eq_u32 s50, s60"); e("s_cbranch_scc1 L_pn")
        e("s_mov_b32 s60, s50"); e("s_mul_i32 s50, s50, 0x1100"); e(f"s_add_u32 s50, s50, {PROG + 0x10000:#x}")
        e("v_mov_b32 v14, 2")
        e("buffer_atomic_add v14, off, s[44:47], s50 sc0 sc1")
        e("s_waitcnt vmcnt(0)")
        e("v_readfirstlane_b32 s50, v14"); e("s_sub_i32 s50, s50, 7"); e(f"s_mul_i32 s50, s50, {xk}")
        if ls:
            e(f"s_ashr_i32 s51, s61, {ls}"); e("s_sub_i32 s61, s61, s51"); e("s_add_i32 s61, s61, s50"); e(f"s_ashr_i32 s50, s61, {xs}")
        e("v_mov_b32 v14, s50")
        e("buffer_store_short v14, off, s[44:47], s52 offset:64")
        lab("L_pn")
    e("s_mov_b32 exec_lo, -1")
    e("s_waitcnt vmcnt(1)")
    e("v_readlane_b32 s50, v13, 32")
    e("v_subrev_u32 v13, s48, v13")
    for d in range(-2, 3):
        e(f"v_cmp_le_i32 vcc, {d}, v13"); e("s_bcnt1_i32_b64 s51, vcc"); e("s_add_i32 s50, s50, s51")
    e("s_mov_b64 exec, -1")
    e(f"s_sub_i32 s37, s50, {e1}"); e("s_max_i32 s37, s37, 0"); e(f"s_lshr_b32 s37, s37, {g2}"); e("s_min_u32 s37, s37, 16")
    e("s_bfm_b32 s37, s37, 16")
    e(f"s_sub_i32 s50, s50, {e0}"); e("s_abs_i32 s51, s50")
    if db: e(f"s_sub_i32 s51, s51, {db}"); e("s_max_i32 s51, s51, 0")
    e(f"s_lshr_b32 s51, s51, {gs}"); e("s_min_u32 s51, s51, 8")
    e("s_bfm_b32 s51, s51, 0")
    e("s_cmp_lt_i32 s50, 0"); e("s_cselect_b32 s50, 8, 0"); e("s_lshl_b32 s51, s51, s50")
    e("s_or_b32 s51, s51, s37")
    e("v_mov_b32 v12, s51"); e("ds_write_b32 v41, v12 offset:12")
    if tl:
        e("s_cmp_ge_u32 s2, 16"); e("s_cbranch_scc1 L_tl")
        e("s_memrealtime s[90:91]"); e("s_waitcnt lgkmcnt(0)"); e("v_mov_b32 v12, s90")
        e("s_lshl_b32 s50, s2, 9"); e("s_lshl2_add_u32 s50, s48, s50"); e("s_add_u32 s50, s50, 0x30000")
        e("s_mov_b64 exec, 1"); e("buffer_store_dword v12, off, s[44:47], s50"); e("s_mov_b64 exec, -1")
        lab("L_tl")
    e(f"s_cmp_lt_u32 s48, {w0}"); e("s_cbranch_scc1 L_pl")
    e("s_cmp_lt_i32 s36, 0"); e("s_cbranch_scc1 L_pe")
    e("s_cmp_eq_u32 s36, 0"); e("s_cbranch_scc1 L_pw")
    c("wo_A: piece = four rows, one load per column quarter")
    lab("L_pd")
    wo_piece()
    e(f"s_cmp_ge_u32 s48, {26 + pt}"); e("s_cbranch_scc1 L_pq")
    e(f"s_cmp_gt_u32 s36, {wk2}"); e(f"s_cselect_b32 s50, 7, {wk-1}"); e("s_and_b32 s50, s36, s50"); e("s_cbranch_scc1 L_pd")
    e("s_branch L_pl")
    lab("L_pq")
    e("s_cmp_lg_u32 s36, 0"); e("s_cbranch_scc1 L_pd")
    lab("L_pw")
    e("v_mov_b32 v12, 1"); e("s_waitcnt vmcnt(0)"); e("ds_write_b32 v41, v12 offset:24")
    e("ds_read_b32 v63, v41 offset:20")
    wo_tiles()
    e("v_mov_b32 v12, 2"); e("ds_write_b32 v41, v12 offset:24")
    e("s_mov_b32 s36, -1")
    lab("L_pe")
    e(f"s_cmp_lt_u32 s48, {75 + pt}"); e("s_cbranch_scc0 L_hfinal")
    e("s_cmp_lt_i32 s79, 0"); e("s_cbranch_scc0 L_pl")
    e("s_branch L_hfinal")

    if cw: lab("L_last")
    if drop or plain:
        job = None
        for k, t in enumerate(L):
            if t.startswith("  ; job "): job = t[8]
            if t.startswith("  ; helper 0 adds"): job = "q"
            if t.startswith("  ; helper 0: 128"): job = "h"
            if t.startswith("L_pl:"): job = None
            if t.startswith("  ; wo_B slice"): job = "b"
            if t.startswith("  ; wo_A: piece"): job = "a"
            if t.startswith("L_hfinal"): job = "f"
            if t.startswith("L_balance"): job = None
            if job is not None and "buffer_" in t and "off," not in t:
                if job + ("s" if "store" in t else "l") in drop.split("."): L[k] = "  s_nop 0"
                if job + ("s" if "store" in t else "l") in plain.split("."): L[k] = t.replace(" sc1", "" if "store" in t or pdef else " nt")
    L.append('.section .rodata,"a"'); L.append(".p2align 6")
    L.append(f".amdhsa_kernel {NAME}_kernel")
    for s in ("next_free_vgpr 256", "next_free_sgpr 96", "accum_offset 256", "group_segment_fixed_size 0",
              "kernarg_size 104", "user_sgpr_count 2", "user_sgpr_kernarg_segment_ptr 1",
              "system_sgpr_workgroup_id_x 1", "float_denorm_mode_32 3"):
        L.append("  .amdhsa_" + s)
    L.append(".end_amdhsa_kernel")
    return "\n".join(L) + "\n"

if __name__ == "__main__":
    import os
    names = []
    os.makedirs("k", exist_ok=True)
    for spec in sys.argv[1:]:
        p = {}
        for x in spec.split(","):
            if not x: continue
            k, v = x.split("=")
            p[k] = v.replace("+", " ") if k in ("wpol", "drop", "ms", "plain", "kvp", "bb", "cw") else int(v)
            if k == "wpol" and v == "def": p[k] = ""
            if k in ("ms", "cw") and v == "no": p[k] = ""
        fn = "k/k_" + (spec.replace(",", "_").replace("=", "").replace("+", "") or "base") + ".s"
        open(fn, "w").write(gen(**p))
        names.append("dev/" + fn)
    print(" ".join(names))
```

```python
import sys, math, struct
NAME = "concat_heads__mha_block_cached__gqa_block_cached__decode"

HEADER = """; Kernarg layout for this problem (104 bytes, ptrs only, base s[0:1]):
"""

def f2u(x): return struct.unpack("<I", struct.pack("<f", x))[0]

WSB  = 0x100000
EPOCH = WSB
QB   = WSB + 0x010000
PBO  = WSB + 0x040000
PBML = WSB + 0x0C0000
YB   = WSB + 0x0D0000
YBS  = 4096 + 256
YA   = WSB + 0x140000
YAS  = 16384 + 256
MLA  = WSB + 0x1E0000
MLS  = 2048 + 256
QP   = WSB + 0x200000
PROG = WSB + 0x280000
WSSZ = 0x400000
L_QA   = 0x0000
L_QB   = 0x0400
L_FLAG = 0x0800
L_SCR  = 0x0100
L_MA   = 0x0A00
L_RED  = 0x0A40
L_RECA = 0x0D00; RECA = 576
L_RECB = 0x1800; RECB = 2560
L_WO   = 0x4000
L_SB   = L_WO + 0x10000
L_S    = L_WO + 0x20000
LDS_BYTES = L_S + 0x4000

def gen(inf=5, inf0=5, m1=9, bb='16.19', m2=1, m3=0, m4=0, tbl=0, wpol="", stamps=0, spin=1 << 20, slp=64, wsoff=0,
        T1=5, T2=7, T4=3, YBT=-1, qslp=8, rspin=1 << 22, gspin=1 << 20, drop="",
        hi=7, lo=4, pace=1, n0=1, e0=80, gs=2, xk=1, xp=4, ls=0, xs=0, li=0, ff=2, wk=8, wk2=64, w0=1, es=1, ot2=16, e1=64, g2=2, pq=14, hb=24, nb0=4, cw='26.66', pad=0, rh=0, pt=0, db=0, tl=0, plain='', pdef=0, qspin=1 << 20, kvp='nt', diagw=0, jit=0, mv=1, one=0, amp=0, ampb=88, amps=-1, mlr=4, rsl=0, rw=1, rd=0, rwb=1, rdb=0, pd=0, pn=1, wb0=3, wb2=0, wb3=3, ot=4):
    L = []
    def e(s): L.append("  " + s)
    def lab(s): L.append(s + ":")
    def c(s): L.append("  ; " + s)
    uid = [0]
    def u():
        uid[0] += 1; return uid[0]
    SC = f2u(128 ** -0.5 * math.log2(math.e))
    NA1 = 8
    DPP = "row_mask:0xf bank_mask:0xf"

    L.append(HEADER.rstrip("\n"))
    L.append(f"; @launch grid=(256,1,1) block=(512,1,1) lds={LDS_BYTES}")
    L.append('.amdgcn_target "amdgcn-amd-amdhsa--gfx950"')
    L.append(".text"); L.append(f".globl {NAME}_kernel"); L.append(".p2align 8")
    L.append(f".type {NAME}_kernel,@function"); L.append(f"{NAME}_kernel:")

    def stamp(k, lvl=1):
        if stamps >= lvl or (amp and lvl == 1): e(f"s_memrealtime s[{64+2*k}:{65+2*k}]")
    def hmark(k):
        if stamps >= 5: e(f"s_memrealtime s[{64+2*k}:{65+2*k}]")
    def hdump(slot):
        if stamps >= 5:
            e("s_waitcnt lgkmcnt(0)"); e("s_mov_b64 exec, 1")
            for k in range(4): e(f"v_mov_b32 v{44+k}, s{64+k}")
            e("s_lshl_b32 s51, s2, 7"); e(f"s_add_u32 s51, s51, {0x20000 + 8*slot}")
            e("buffer_store_dwordx4 v[44:47], off, s[44:47], s51"); e("s_mov_b64 exec, -1")
    def tag_consts():
        for k in range(4): e(f"s_mov_b32 s{56+k}, {0x07060500 + k:#x}")
        e("s_mov_b32 s76, 0x0c0c0400"); e("s_mov_b32 s77, 0x0c040100"); e("s_mov_b32 s78, 0x04020100")
        e("s_movk_i32 s94, 0xff00")
    def put_tag(r, vn):
        for k in range(4): e(f"v_perm_b32 v{r+k}, v{r+k}, v{vn}, s{56+k}")
    def get_tag(t, r, n=4):
        e(f"v_perm_b32 v{t}, v{r+1}, v{r}, s76"); e(f"v_perm_b32 v{t}, v{r+2}, v{t}, s77"); e(f"v_perm_b32 v{t}, v{r+3}, v{t}, s78")
        for k in range(n): e(f"v_and_b32 v{r+k}, s94, v{r+k}")

    e("s_cmp_ge_u32 s2, 256"); e("s_cbranch_scc1 L_end")
    e("s_load_dwordx16 s[4:19], s[0:1], 0")
    e("s_load_dwordx8 s[20:27], s[0:1], 64")
    e("s_load_dwordx2 s[28:29], s[0:1], 96")
    if stamps or diagw: e("s_memrealtime s[60:61]")
    e("v_lshrrev_b32 v1, 6, v0")
    e("s_and_b32 s30, s2, 7")
    e("v_readfirstlane_b32 s3, v1")
    e("s_lshr_b32 s31, s2, 3")
    e("v_and_b32 v0, 63, v0")
    e("s_lshr_b32 s33, s2, 6"); e("s_lshl2_add_u32 s32, s30, s33")
    e("s_and_b32 s35, s2, 32"); e("s_add_u32 s35, s35, s32")
    e("s_mov_b32 s42, 0x400000"); e("s_mov_b32 s43, 0x20000"); e("s_mov_b32 s39, s43")
    if jit & 1:
        e("s_mul_i32 s50, s2, 37"); e("s_and_b32 s50, s50, 31"); e("s_cmp_lg_u32 s50, 5"); e("s_cbranch_scc1 L_j1x")
        for _ in range(40): e("s_sleep 127")
        lab("L_j1x")
    if jit & 2:
        e("s_add_u32 s50, s2, s3"); e("s_and_b32 s50, s50, 7"); e("s_cmp_lg_u32 s50, 3"); e("s_cbranch_scc1 L_j2x")
        for _ in range(6): e("s_sleep 127")
        lab("L_j2x")
    e("s_cmp_ge_u32 s3, 4"); e("s_cbranch_scc1 L_helper")

    RING = 128
    def issue(p):
        r = RING + 4 * p; j = p % 8
        if j == 4: e("s_xor_b32 s44, s44, 0x200000")
        e(f"buffer_load_dwordx4 v[{r}:{r+3}], v36, s[36:39], s44 offen offset:{(j%4)*1024} {kvp}")
        if j == 7:
            e("s_sub_u32 s44, s44, s45"); e("s_and_b32 s44, s44, s45")
    def set_src(ptr, unit, voff):
        e(f"s_add_u32 s36, s{ptr}, s{unit}"); e(f"s_addc_u32 s37, s{ptr+1}, 0")
        if voff: e(f"v_mov_b32 v36, v{voff}")
    def wi(p, last=False):
        if last and p >= 32 - ot:
            pass
        elif pace:
            n = u(); j = p % 8
            if last and p >= 32 - ot2:
                e(f"s_bitcmp1_b32 s33, {16+31-p}"); e(f"s_cbranch_scc1 L_v{n}")
            e(f"s_bitcmp1_b32 s33, {j}"); e(f"s_cbranch_scc1 L_t{n}")
            e(f"s_bitcmp0_b32 s33, {8+j}"); e(f"s_cbranch_scc1 L_u{n}")
            e(f"s_waitcnt vmcnt({lo-1})")
            lab(f"L_u{n}")
            e(f"s_waitcnt vmcnt({inf-1})")
            lab(f"L_t{n}")
            e(f"s_waitcnt vmcnt({hi-1})")
            if last and p >= 32 - ot2: lab(f"L_v{n}")
        else:
            e(f"s_waitcnt vmcnt({inf-1})")
        issue(p)
    def pick_mask():
        if pace:
            c("queue depth for this step: bits 0-7 deeper, bits 8-15 shallower; late waves of the workgroup go a bit deeper")
            e("s_waitcnt lgkmcnt(0)"); e("v_readfirstlane_b32 s33, v90"); e("v_readfirstlane_b32 s50, v91")
            e("ds_read_b32 v90, v14 offset:12")
            if one: e("s_mov_b64 exec, 1"); e("ds_add_rtn_u32 v91, v14, v92 offset:8"); e("s_mov_b64 exec, -1")
            else: e("ds_add_rtn_u32 v91, v14, v15 offset:8")
            e("s_sub_i32 s50, s50, s34"); e("s_addk_i32 s34, 256")
            if wb0:
                e("s_cmp_lt_i32 s50, 64"); e(f"s_cselect_b32 s51, {((1 << wb0) - 1) << 8:#x}, 0"); e("s_or_b32 s33, s33, s51")
            if wb2:
                e("s_cmp_ge_i32 s50, 128"); e(f"s_cselect_b32 s51, {(1 << wb2) - 1:#x}, 0"); e("s_or_b32 s33, s33, s51")
            if wb3:
                e("s_cmp_ge_i32 s50, 192"); e(f"s_cselect_b32 s51, {(1 << wb3) - 1:#x}, 0"); e("s_or_b32 s33, s33, s51")
        else:
            e("ds_add_u32 v14, v15 offset:8")
    c("K lane offset: key=(l>>2)&3, d=(l>>4)*32+(l&3)*8 ; V lane offset: l*16")
    e("v_lshlrev_b32 v3, 4, v0")
    e("v_and_b32 v2, 48, v3"); e("v_and_b32 v4, 12, v0"); e("v_lshl_add_u32 v2, v4, 6, v2")
    e("v_and_b32 v5, 48, v0"); e("v_lshl_add_u32 v36, v5, 2, v2")
    e("s_and_b32 s41, s31, 3"); e("s_lshl2_add_u32 s41, s41, s3"); e("s_lshl_b32 s41, s41, 12")
    e(f"s_mul_i32 s44, s35, {m1}"); e("s_lshl_b32 s44, s44, 27"); e("s_lshr_b32 s44, s44, 11")
    e("s_mov_b32 s38, s42"); e("s_lshl_b32 s40, s35, 22"); e("s_or_b32 s40, s40, s41"); e("s_mov_b32 s49, s44")
    e("s_waitcnt lgkmcnt(0)")
    if tbl:
        e("s_lshl_b32 s50, s2, 4"); e("s_load_dwordx4 s[80:83], s[26:27], s50"); e("s_waitcnt lgkmcnt(0)")
        e("s_mov_b32 s44, s80"); e("s_mov_b32 s49, s80")
    set_src(6, 40, 0)
    assert inf0 <= 7
    for p in range(nb0): issue(p)
    if mv: e("s_branch L_stream")
    stream_cut = len(L)
    lab("L_stream")
    e("s_mov_b32 s45, 0x1f0000"); e("v_mov_b32 v2, v36")
    c("score buffer addresses: v37 write / v38 read (one head), v39 both (four heads)")
    e("s_lshl_b32 s50, s3, 12"); e(f"s_add_u32 s95, s50, {L_S}")
    e("v_add_u32 v38, s95, v5"); e("v_add_u32 v37, v38, v4")
    e(f"s_add_u32 s95, s50, {L_SB}")
    e("v_and_b32 v39, 60, v0"); e("v_lshl_add_u32 v39, v39, 2, s95")
    c("constants while the first loads fly")
    e("v_and_b32 v6, 1, v0"); e("v_lshlrev_b32 v6, 4, v6"); e("v_mov_b32 v7, 0xffff"); e("v_lshlrev_b32 v6, v6, v7")
    e("v_and_b32 v7, 2, v0"); e("v_cmp_eq_u32 vcc, 0, v7")
    e(f"s_mov_b32 s48, {SC:#x}")
    e("v_mov_b32 v8, 0xff800000")
    e("v_cndmask_b32 v4, 0, v6, vcc")
    e("v_xor_b32 v5, v4, v6")
    e("v_mov_b32 v10, 0")
    e("v_mov_b32 v11, v8"); e("v_mov_b32 v13, 0")
    for r in range(40, 56): e(f"v_mov_b32 v{r}, 0")
    c("LDS address of the q operand: (g*32 + (l&3)*8)*2")
    e("v_and_b32 v6, 0xff, v2")
    e("v_bfe_u32 v7, v0, 2, 2")
    for s in range(4): e(f"v_cmp_eq_u32 s[{84+2*s}:{85+2*s}], {s}, v7")
    tag_consts()
    e(f"v_mov_b32 v14, {L_FLAG}"); e("v_mov_b32 v15, 1"); e("v_mov_b32 v90, 0"); e("v_mov_b32 v91, 0xffffff40")
    if one: e("v_mov_b32 v92, 64")
    e("s_mov_b32 s33, 0"); e("s_movk_i32 s34, -256")
    if hb >= 0: e("s_barrier")
    for p in range(nb0, 32):
        if p % 8 == 0 and p >= 32 - 8 * pt: pick_mask()
        if p >= 32 - 8 * pt and p >= inf0: wi(p)
        else:
            if p >= inf0: e(f"s_waitcnt vmcnt({inf0-1})")
            issue(p)
        if p == pq: e("ds_write_b32 v14, v15 offset:28")
    stamp(0)
    e(f"s_mov_b32 s50, {spin << 5}")
    lab("L_wqa")
    e("ds_read_b64 v[108:109], v14 offset:16"); e(f"ds_read_b128 v[104:107], v6 offset:{L_QA}")
    e("s_waitcnt lgkmcnt(0)")
    e("v_readfirstlane_b32 s51, v108"); e("v_readfirstlane_b32 s55, v109"); e("s_sub_u32 s50, s50, 1")
    e("s_cbranch_scc1 L_wqa_done")
    e("s_cmp_eq_u32 s51, 0"); e("s_cbranch_scc1 L_wqa")
    lab("L_wqa_done")
    for s in range(4):
        for k in range(4): e(f"v_cndmask_b32 v{16+4*s+k}, 0, v{104+k}, s[{84+2*s}:{85+2*s}]")
    stamp(1)

    def diag(t, d):
        e(f"v_mov_b32_dpp v{t}, v{d} quad_perm:[0,0,0,0] {DPP}")
        for k in range(1, 4):
            e(f"v_add_f32_dpp v{t}, v{d+k}, v{t} quad_perm:[{k},{k},{k},{k}] {DPP}")
    def xrow_max(v, t):
        e(f"v_mov_b32 v{t}, v{v}"); e("s_nop 1"); e(f"v_permlane16_swap_b32 v{v}, v{t}"); e("s_nop 1")
        e(f"v_max_f32 v{v}, v{v}, v{t}")
        e(f"v_mov_b32 v{t}, v{v}"); e("s_nop 1"); e(f"v_permlane32_swap_b32 v{v}, v{t}"); e("s_nop 1")
        e(f"v_max_f32 v{v}, v{v}, v{t}")
    def k_iter(gqa):
        for st in range(8):
            if st % 2 == 0: pick_mask()
            for j in range(4):
                r = RING + 4 * (4 * st + j)
                if gqa: e(f"v_mfma_f32_16x16x32_bf16 v[{56+4*j}:{59+4*j}], v[{r}:{r+3}], v[32:35], 0")
                else:   e(f"v_mfma_f32_16x16x32_bf16 v[56:59], v[{r}:{r+3}], v[{16+4*j}:{19+4*j}], {'v[56:59]' if j else '0'}")
                wi(4 * st + j)
            if gqa:
                for j in range(4): diag(72 + j, 56 + 4 * j)
                e(f"ds_write_b128 v1, v[72:75] offset:{256*st}")
                e("v_max3_f32 v11, v11, v72, v73"); e("v_max3_f32 v11, v11, v74, v75")
            else:
                e(f"s_nop {3 if pace else 5}")
                diag(72, 56)
                e(f"ds_write_b32 v1, v72 offset:{64*st}")
                e("v_max_f32 v8, v8, v72")
        e(f"v_add_u32 v1, {2048 if gqa else 512}, v1")
    def probs(sr, a, Mc, l):
        x = [f"v_fma_f32 v{sr+j}, v{sr+j}, s48, -v{Mc}" for j in range(4)]
        x += [f"v_exp_f32 v{sr+j}, v{sr+j}" for j in range(4)]
        x += [f"v_cvt_pk_bf16_f32 v{a+2*j+1}, v{sr+j}, v{sr+j}" for j in range(4)]
        for j in range(4): x += [f"v_and_b32 v{a+2*j}, v{a+2*j+1}, v4", f"v_and_b32 v{a+2*j+1}, v{a+2*j+1}, v5"]
        x += [f"v_add_f32 v{l}, v{l}, v{sr+j}" for j in range(4)]
        return x
    def pv_mfma(O, a, p, hf):
        r = RING + 4 * p
        e(f"v_mfma_f32_16x16x16_bf16 v[{O+4*hf}:{O+4*hf+3}], v[{a}:{a+1}], v[{r+2*hf}:{r+2*hf+1}], v[{O+4*hf}:{O+4*hf+3}]")
    def v_iter(gqa):
        O, Mc, l, stride = (48, 12, 13, 256) if gqa else (40, 9, 10, 64)
        for st in range(8):
            if st % 2 == 0: pick_mask()
            if st % 2 or not pace: e("s_waitcnt lgkmcnt(0)")
            nx = 76 + 4 * ((st + 1) % 2)
            e(f"ds_read_b128 v[{nx}:{nx+3}], v1 offset:{stride*(st+1)}")
            for x in probs(76 + 4 * (st % 2), 96, Mc, l): e(x)
            for j in range(4):
                pv_mfma(O, 96 + 2 * j, 4 * st + j, 0); pv_mfma(O, 96 + 2 * j, 4 * st + j, 1)
                wi(4 * st + j)
        e(f"v_add_u32 v1, {8*stride}, v1")

    for _ in range(pad): e("s_nop 0")
    c("---- the four tensors are read one after the other: K of A, K of B, V of B, V of A")
    e("s_mov_b32 s47, 8"); e("v_mov_b32 v1, v37")
    lab("L_km")
    e("s_cmp_lg_u32 s47, 1"); e("s_cbranch_scc1 L_km_go")
    c("issue side moves on to K of the B unit")
    BB = [int(z) for z in bb.split(".")]; TB = [q for q in range(16, 21) if q not in BB]
    def scat(dst, src, lo, bits, first=False):
        for k, q in enumerate(bits):
            t = dst if first and k == 0 else 51
            e(f"s_bfe_u32 s{t}, s{src}, {(1 << 16) | (lo + k):#x}"); e(f"s_lshl_b32 s{t}, s{t}, {q}")
            if t != dst: e(f"s_or_b32 s{dst}, s{dst}, s51")
    e("s_lshr_b32 s52, s31, 4"); e("s_lshl3_add_u32 s50, s52, s30")
    e("s_lshl_b32 s51, s50, 22"); e("s_or_b32 s41, s41, s51")
    if tbl: e("s_or_b32 s41, s41, s81")
    else: scat(41, 31, 2, BB)
    set_src(16, 41, 0)
    e(f"s_mul_i32 s50, s50, {m2}")
    if m3: e("s_bfe_u32 s51, s31, 0x20002"); e(f"s_mul_i32 s51, s51, {m3}"); e("s_add_u32 s50, s50, s51")
    if m4: e(f"s_mul_i32 s51, s52, {m4}"); e("s_add_u32 s50, s50, s51")
    scat(44, 50, 0, TB, True)
    e(f"s_mov_b32 s45, {sum(1 << q for q in TB):#x}")
    if tbl: e("s_mov_b32 s44, s82"); e("s_mov_b32 s45, s83")
    lab("L_km_go")
    k_iter(False)
    e("s_sub_u32 s47, s47, 1"); e("s_cmp_lg_u32 s47, 0"); e("s_cbranch_scc1 L_km")
    stamp(2)
    e(f"s_mov_b32 s50, {spin << 5}")
    lab("L_wqb")
    e("ds_read_b32 v7, v14"); e(f"ds_read_b128 v[32:35], v2 offset:{L_QB}")
    e("s_waitcnt lgkmcnt(0)")
    e("v_readfirstlane_b32 s51, v7"); e("s_sub_u32 s50, s50, 1")
    e("s_cbranch_scc1 L_wqb_done")
    e("s_cmp_eq_u32 s51, 0"); e("s_cbranch_scc1 L_wqb")
    lab("L_wqb_done")
    e("s_mov_b32 s47, 2"); e("v_mov_b32 v1, v39")
    lab("L_kg")
    e("s_cmp_lg_u32 s47, 1"); e("s_cbranch_scc1 L_kg_go")
    set_src(18, 41, 3)
    lab("L_kg_go")
    k_iter(True)
    e("s_sub_u32 s47, s47, 1"); e("s_cmp_lg_u32 s47, 0"); e("s_cbranch_scc1 L_kg")
    e("ds_read_b128 v[76:79], v39"); e("v_mov_b32 v1, v39")
    xrow_max(11, 89)
    e("v_mul_f32 v12, s48, v11")
    e("s_mov_b32 s47, 2")
    lab("L_vg")
    e("s_cmp_lg_u32 s47, 1"); e("s_cbranch_scc1 L_vg_go")
    set_src(8, 40, 3); e("s_mov_b32 s44, s49"); e("s_mov_b32 s45, 0x1f0000")
    lab("L_vg_go")
    v_iter(True)
    e("s_sub_u32 s47, s47, 1"); e("s_cmp_lg_u32 s47, 0"); e("s_cbranch_scc1 L_vg")
    c("hand the B partial of this wave to the agent through LDS")
    e(f"s_mul_i32 s50, s3, {RECB}"); e(f"s_add_u32 s50, s50, {L_RECB}")
    e("v_lshl_add_u32 v6, v0, 5, s50"); e("v_lshl_add_u32 v7, v0, 2, s50")
    e("ds_write_b128 v6, v[48:51]"); e("ds_write_b128 v6, v[52:55] offset:16")
    e("ds_write_b32 v7, v12 offset:2048"); e("ds_write_b32 v7, v13 offset:2304")
    e("ds_add_u32 v14, v15 offset:4")
    stamp(3)

    if jit & 8:
        e("s_add_u32 s50, s2, s3"); e("s_and_b32 s50, s50, 15"); e("s_cmp_lg_u32 s50, 9"); e("s_cbranch_scc1 L_j8x")
        for _ in range(20): e("s_sleep 127")
        lab("L_j8x")
    c("max over all keys of this wave")
    e("ds_read_b128 v[76:79], v38"); e("v_mov_b32 v1, v38")
    e(f"v_max_f32_dpp v8, v8, v8 row_ror:4 {DPP}"); e("s_nop 1")
    e(f"v_max_f32_dpp v8, v8, v8 row_ror:8 {DPP}")
    xrow_max(8, 89)
    e("v_mul_f32 v9, s48, v8")
    e("s_mov_b32 s47, 6")
    lab("L_vm")
    v_iter(False)
    e("s_sub_u32 s47, s47, 1"); e("s_cmp_lg_u32 s47, 0"); e("s_cbranch_scc1 L_vm")
    c("last 16 steps: the arithmetic catches up with the loads, so little is left when the last one lands")
    def v_step(st, pos=None, mid=None):
        if st not in (0, 4) or not pace: e("s_waitcnt lgkmcnt(0)")
        nx = 76 + 4 * ((st + 1) % 2)
        e(f"ds_read_b128 v[{nx}:{nx+3}], v1 offset:{64*(st+1)}")
        for x in probs(76 + 4 * (st % 2), 96, 9, 10): e(x)
        if mid is not None: wi(mid, True)
        if st >= 8: e(f"s_waitcnt vmcnt({pos - (4*(st-8) + 3)})")
        for j in range(4):
            pv_mfma(40, 96 + 2 * j, 4 * (st % 8) + j, 0); pv_mfma(40, 96 + 2 * j, 4 * (st % 8) + j, 1)
    for st in range(8):
        if st % 4 == 0: pick_mask()
        v_step(st, None, 2 * st - 1 if st else None)
        wi(2 * st, True)
    for k, st in enumerate(range(8, 12)):
        v_step(st, 15 + 2 * k, 15 + 2 * k)
        if k == 0: pick_mask()
        wi(16 + 2 * k, True)
    wi(23, True); pick_mask()
    if not pace: e("s_waitcnt lgkmcnt(0)")
    e(f"s_mul_i32 s50, s3, {RECA}"); e(f"s_add_u32 s50, s50, {L_RECA}")
    e("v_add_u32 v6, s50, v3"); e("v_lshl_add_u32 v7, v0, 2, s50")
    e("s_lshl_b32 s50, s3, 2"); e("v_mov_b32 v14, s50")
    for st in range(13, 16): e(f"ds_read_b128 v[{4+4*st}:{7+4*st}], v1 offset:{64*st}")
    e(f"ds_write_b32 v14, v9 offset:{L_MA}")
    for k, sr in enumerate((76, 56, 60, 64)):
        if k == 1: e("s_waitcnt lgkmcnt(0)")
        for x in probs(sr, 96 + 8 * k, 9, 10): e(x)
        wi(24 + k, True)
    e("ds_write_b32 v7, v10 offset:256")
    e("s_mov_b32 s40, s24"); e("s_mov_b32 s41, s25"); e("s_mov_b32 s42, 4096")
    for p in range(16, 32):
        if p < 20: wi(12 + p, True)
        if p == 19:
            stamp(4)
            e(f"s_add_u32 s36, s28, {wsoff<<20:#x}"); e("s_addc_u32 s37, s29, 0")
        e(f"s_waitcnt vmcnt({min(12 + p, 31) - p})")
        for hf in range(2): pv_mfma(40, 96 + 2 * (p - 16), p, hf)
    c("A partial of this wave -> LDS")
    e("s_nop 5")
    e("s_mov_b64 exec, 0xffff")
    for k in range(4): e(f"v_cvt_pk_bf16_f32 v{40+k}, v{40+2*k}, v{41+2*k}")
    e("ds_write_b128 v6, v[40:43]")
    e("s_mov_b64 exec, -1")
    e("s_waitcnt lgkmcnt(0)")
    stamp(5)
    e("s_barrier")
    stamp(0, 2); stamp(1, 2); stamp(2, 2); stamp(3, 2)
    e("s_cmp_lg_u32 s3, 0"); e("s_cbranch_scc1 L_red")
    c("wave 0 publishes (M, L) of the workgroup: lane = (w, row)")
    e("v_and_b32 v6, 12, v0"); e("v_and_b32 v7, 3, v0"); e("v_lshlrev_b32 v7, 6, v7")
    e(f"s_movk_i32 s50, {RECA//4}"); e("v_mad_u32_u24 v7, v6, s50, v7")
    e(f"ds_read_b32 v16, v6 offset:{L_MA}"); e(f"ds_read_b32 v17, v7 offset:{L_RECA+256}")
    e("s_and_b32 s51, s31, 3"); e("s_lshl2_add_u32 s50, s32, s51"); e("s_lshl_b32 s50, s50, 4")
    e("s_bfe_u32 s51, s2, 0x10005"); e(f"s_mul_i32 s51, s51, {MLS*mlr}"); e("s_add_u32 s50, s50, s51"); e(f"s_add_u32 s50, s50, {MLA:#x}")
    e(f"v_mul_u32_u24 v18, {MLS}, v0")
    e("v_mov_b32 v19, s55"); e("v_lshrrev_b32 v23, 24, v19")
    e("s_waitcnt lgkmcnt(0)")
    e(f"v_max_f32_dpp v20, v16, v16 row_ror:4 {DPP}"); e("s_nop 1")
    e(f"v_max_f32_dpp v20, v20, v20 row_ror:8 {DPP}")
    e("v_sub_f32 v16, v16, v20"); e("v_exp_f32 v16, v16")
    e("v_lshlrev_b32 v22, 8, v20")
    e("v_mul_f32 v21, v16, v17"); e("v_perm_b32 v20, v20, v19, s56"); e("v_perm_b32 v22, v22, v19, s58")
    for d in ("quad_perm:[1,0,3,2]", "quad_perm:[2,3,0,1]", "row_ror:4", "row_ror:8"):
        e(f"v_add_f32_dpp v21, v21, v21 {d} {DPP}")
        if d != "row_ror:8": e("s_nop 1")
    e("v_perm_b32 v21, v21, v19, s57")
    e(f"s_mov_b64 exec, {(1 << mlr) - 1:#x}")
    e("buffer_store_dwordx4 v[20:23], v18, s[36:39], s50 offen sc1")
    e("s_mov_b64 exec, -1")
    lab("L_red")
    e("s_cmp_ge_u32 s2, 64"); e("s_cbranch_scc1 L_sdone")
    c("reducers: b = (id>>4)&1, one 128-byte line of every contribution; lane = (row, granule)")
    e("v_lshrrev_b32 v6, 3, v0"); e("v_and_b32 v14, 7, v0")
    e("v_bfe_u32 v8, v0, 4, 1"); e("v_lshrrev_b32 v9, 5, v0"); e("v_lshl_add_u32 v8, v8, 1, v9")
    e("v_lshlrev_b32 v10, 3, v0")
    e("s_bfe_u32 s48, s2, 0x10004"); e("s_bfe_u32 s49, s2, 0x20002")
    e("s_lshl_b32 s44, s48, 11"); e("s_lshl_b32 s45, s49, 8"); e("s_add_u32 s44, s44, s45")
    e(f"s_lshl_b32 s54, s3, 7")
    e(f"s_mov_b32 s50, {rspin}")
    e("s_cmp_ge_u32 s2, 32"); e("s_cbranch_scc1 L_redb")
    c("branch A: wave = 8 heads x 4 splits; column = quarter*128 + half*64 + k*16 + (id&1)*8 + granule")
    e("v_and_b32 v11, 3, v0")
    e("v_lshlrev_b32 v7, 6, v6"); e("v_lshl_add_u32 v7, v11, 4, v7")
    e(f"s_mul_i32 s52, s2, {YAS}"); e("s_lshl_b32 s51, s3, 10"); e("s_add_u32 s52, s52, s51"); e(f"s_add_u32 s52, s52, {YA:#x}")
    for q in range(1, 4): e(f"s_add_u32 s{[0,53,62,63][q]}, s52, {4096*q}")
    e(f"s_and_b32 s51, s2, {mlr-1}"); e(f"s_mul_i32 s45, s48, {mlr}"); e("s_add_u32 s51, s51, s45"); e(f"s_mul_i32 s51, s51, {MLS}")
    e("s_lshl_b32 s45, s3, 9"); e("s_add_u32 s51, s51, s45"); e(f"s_add_u32 s51, s51, {MLA:#x}")
    e("v_lshl_add_u32 v8, v8, 3, v14"); e("v_lshl_add_u32 v8, v8, 2, s54")
    e("v_lshrrev_b32 v9, 2, v0"); e("v_lshlrev_b32 v9, 5, v9"); e("v_lshl_add_u32 v9, v11, 2, v9")
    e("s_and_b32 s45, s2, 2"); e("s_lshl_b32 s45, s45, 6"); e("s_add_u32 s44, s44, s45")
    e("s_and_b32 s45, s2, 1"); e("s_lshl4_add_u32 s44, s45, s44")
    if rw: e("s_barrier")
    if rd: e(f"s_sleep {rd}")
    def ra_loads():
        e("buffer_load_dwordx4 v[40:43], v7, s[36:39], s51 offen sc1")
        for q in range(4): e(f"buffer_load_dwordx4 v[{24+4*q}:{27+4*q}], v3, s[36:39], s{[52,53,62,63][q]} offen sc1")
    def ra_check(W):
        e("s_mov_b64 s[46:47], exec")
        e(f"s_waitcnt vmcnt({W+4})"); get_tag(16, 40, 0)
        e("v_perm_b32 v80, v40, v42, s57"); e("v_and_b32 v81, s94, v41")
        for q in range(4):
            e(f"s_waitcnt vmcnt({W+3-q})"); get_tag(17 + q, 24 + 4 * q, 0)
            for k in range(4): e(f"v_and_b32 v{64+4*q+k}, s94, v{24+4*q+k}")
        for q in range(5): e(f"v_cmpx_eq_u32 vcc, s55, v{16+q}")
    if pd:
        ra_loads(); ra_check(0)
        e("s_andn2_b64 exec, s[46:47], vcc"); e("s_cbranch_scc0 L_rdone")
        for _ in range(pn):
            ra_loads(); e(f"s_sleep {pd}")
    lab("L_rpoll")
    ra_loads(); ra_check(5 * pn if pd else 0)
    e("s_sub_u32 s50, s50, 1"); e("s_cbranch_scc1 L_rdone")
    if rsl:
        e("s_andn2_b64 exec, s[46:47], vcc"); e("s_cbranch_scc0 L_rdone"); e(f"s_sleep {rsl}"); e("s_branch L_rpoll")
    else:
        e("s_andn2_b64 exec, s[46:47], vcc"); e("s_cbranch_scc1 L_rpoll")
    lab("L_rdone")
    stamp(1, 2)
    if stamps >= 3:
        e(f"s_sub_u32 s72, {rspin}, s50"); e("s_mul_i32 s72, s72, 100"); e("s_add_u32 s72, s72, s60"); e("s_addc_u32 s73, s61, 0")
    e("s_mov_b64 exec, -1"); e("s_nop 1")
    e(f"v_max_f32_dpp v15, v80, v80 quad_perm:[1,0,3,2] {DPP}"); e("s_nop 1")
    e(f"v_max_f32_dpp v15, v15, v15 quad_perm:[2,3,0,1] {DPP}")
    e("v_sub_f32 v16, v80, v15"); e("v_exp_f32 v16, v16"); e("s_nop 0"); e("v_mul_f32 v15, v16, v81")
    e(f"v_mul_f32_dpp v56, v16, v64 quad_perm:[0,0,0,0] {DPP}"); e(f"v_mul_f32_dpp v57, v16, v65 quad_perm:[0,0,0,0] {DPP}")
    e(f"v_add_f32_dpp v15, v15, v15 quad_perm:[1,0,3,2] {DPP}")
    e(f"v_mul_f32_dpp v58, v16, v66 quad_perm:[0,0,0,0] {DPP}"); e(f"v_mul_f32_dpp v59, v16, v67 quad_perm:[0,0,0,0] {DPP}")
    e(f"v_add_f32_dpp v15, v15, v15 quad_perm:[2,3,0,1] {DPP}")
    e("v_rcp_f32 v15, v15")
    for q in range(1, 4):
        for k in range(4): e(f"v_fmac_f32_dpp v{56+k}, v16, v{64+4*q+k} quad_perm:[{q},{q},{q},{q}] {DPP}")
    for k in range(4): e(f"v_mul_f32 v{56+k}, v15, v{56+k}")
    lab("L_rsum")
    c("sum v[56:59] over lane bits 5,4,3: row r ends with component [0,2,1,3][r]")
    e("s_nop 0")
    e("v_permlane32_swap_b32 v56, v57"); e("v_permlane32_swap_b32 v58, v59")
    e("v_add_f32 v56, v56, v57"); e("v_add_f32 v58, v58, v59"); e("s_nop 1")
    e("v_permlane16_swap_b32 v56, v58")
    e("v_add_f32 v56, v56, v58"); e("s_nop 1")
    e(f"v_add_f32_dpp v56, v56, v56 row_ror:8 {DPP}")
    e(f"ds_write_b32 v8, v56 offset:{L_RED}")
    e("s_waitcnt lgkmcnt(0)")
    e("s_barrier")
    stamp(2, 2)
    e("s_cmp_lg_u32 s3, 0"); e("s_cbranch_scc1 L_sdone")
    e("s_mov_b64 exec, 0xffff")
    for w in range(4): e(f"ds_read_b64 v[{60+2*w}:{61+2*w}], v10 offset:{L_RED + w*128}")
    e("s_waitcnt lgkmcnt(2)")
    e("v_add_f32 v60, v60, v62"); e("v_add_f32 v61, v61, v63")
    e("s_waitcnt lgkmcnt(0)")
    e("v_add_f32 v64, v64, v66"); e("v_add_f32 v65, v65, v67")
    e("v_add_f32 v60, v60, v64"); e("v_add_f32 v61, v61, v65")
    e("v_cvt_pk_bf16_f32 v60, v60, v61")
    e("buffer_store_dword v60, v9, s[40:43], s44 offen")
    stamp(3, 2)
    c("workgroup 32 has seen data that depends on every workgroup, so all have read the old tag: leave the new one")
    e("s_cmp_lg_u32 s2, 32"); e("s_cbranch_scc1 L_sdone")
    e(f"s_mov_b32 s50, {EPOCH:#x}"); e("v_mov_b32 v61, s55")
    e("s_mov_b64 exec, 1"); e("buffer_store_dword v61, off, s[36:39], s50 sc1")
    lab("L_sdone")
    if diagw:
        e(f"s_mov_b32 s51, {diagw*100}")
        if amp:
            e("s_waitcnt vmcnt(0)"); e("s_memrealtime s[62:63]"); e("s_waitcnt lgkmcnt(0)")
            e(f"s_sub_u32 s50, s{62 if amps < 0 else 64 + 2*amps}, s60"); e(f"s_sub_i32 s50, s50, {ampb*100}"); e(f"s_mul_i32 s50, s50, {amp}"); e("s_add_i32 s51, s51, s50")
        lab("L_diag")
        e("s_memrealtime s[62:63]"); e("s_waitcnt lgkmcnt(0)")
        e("s_sub_u32 s62, s62, s60"); e("s_cmp_lt_i32 s62, s51"); e("s_cbranch_scc1 L_diag")
    if stamps:
        e("s_cmp_lg_u32 s3, 0"); e("s_cbranch_scc1 L_end")
        e("s_waitcnt vmcnt(0)")
        e("s_memrealtime s[62:63]"); e("s_getreg_b32 s50, hwreg(HW_REG_XCC_ID)"); e("s_waitcnt lgkmcnt(0)")
        e("s_mov_b64 exec, 1"); e("s_mov_b32 s36, s28"); e("s_mov_b32 s37, s29")
        for k in range(4): e(f"v_mov_b32 v{16+k}, s{60+k}")
        e("s_lshl_b32 s51, s2, 4"); e("buffer_store_dwordx4 v[16:19], off, s[36:39], s51")
        e("v_mov_b32 v20, s50"); e("s_lshl_b32 s51, s2, 2"); e("s_add_u32 s51, s51, 0x10000")
        e("buffer_store_dword v20, off, s[36:39], s51")
        for k in range(12): e(f"v_mov_b32 v{24+k}, s{64+k}")
        e("s_lshl_b32 s51, s2, 7"); e("s_add_u32 s51, s51, 0x20000")
        for k in range(3): e(f"buffer_store_dwordx4 v[{24+4*k}:{27+4*k}], off, s[36:39], s51 offset:{16*k}")
    e("s_endpgm")
    lab("L_redb")
    c("branch B: wave = 8 heads; column = 512 + quarter*128 + ((id&1)*8 + granule)*8 + half*4 + k")
    e(f"s_mul_i32 s52, s2, {YBS}"); e("s_lshl_b32 s51, s3, 10"); e("s_add_u32 s52, s52, s51"); e(f"s_add_u32 s52, s52, {YB - 32*YBS:#x}")
    e("v_lshl_add_u32 v8, v14, 2, v8"); e("v_lshl_add_u32 v8, v8, 2, s54")
    e("v_lshrrev_b32 v9, 1, v0"); e("v_lshlrev_b32 v9, 4, v9"); e("v_and_b32 v11, 1, v0"); e("v_lshl_add_u32 v9, v11, 2, v9")
    e("s_and_b32 s45, s2, 1"); e("s_lshl_b32 s45, s45, 7"); e("s_add_u32 s44, s44, s45")
    e("s_and_b32 s45, s2, 2"); e("s_lshl2_add_u32 s44, s45, s44"); e("s_add_u32 s44, s44, 1024")
    if rwb: e("s_barrier")
    if rdb: e(f"s_sleep {rdb}")
    lab("L_bpoll")
    e("buffer_load_dwordx4 v[56:59], v3, s[36:39], s52 offen sc1")
    e("s_waitcnt vmcnt(0)"); get_tag(16, 56)
    e("v_cmp_ne_u32 vcc, s55, v16")
    e("s_sub_u32 s50, s50, 1"); e("s_cbranch_scc1 L_bdone")
    e("s_and_b64 exec, exec, vcc"); e("s_cbranch_scc1 L_bpoll")
    lab("L_bdone")
    stamp(1, 2)
    e("s_mov_b64 exec, -1")
    e("s_branch L_rsum")

    helper_start = len(L)
    lab("L_helper")
    c("every helper first sends out its share of the weights")
    e("s_sub_u32 s33, s3, 4")
    e("s_and_b32 s54, s31, 7"); e("s_and_b32 s49, s31, 3")
    e("v_and_b32 v1, 15, v0")
    e("v_lshrrev_b32 v2, 4, v0")
    e("v_lshlrev_b32 v33, 10, v2"); e("v_lshl_add_u32 v33, v1, 4, v33")
    e("s_cmp_eq_u32 s33, 0"); e("s_cbranch_scc1 L_h0a")
    e("s_lshl_b32 s62, s32, 17")
    e("s_cmp_eq_u32 s33, 1"); e("s_cbranch_scc1 L_h1a")
    e(f"v_mov_b32 v41, {L_FLAG}")
    for k in range(4): e(f"v_mov_b32 v{28+k}, 0")
    e("ds_write_b128 v41, v[28:31]"); e("ds_write_b128 v41, v[28:31] offset:16")
    e("s_lshl_b32 s63, s49, 3"); e("s_movk_i32 s36, 128")
    e("s_and_b32 s50, s54, 4"); e("s_add_u32 s50, s50, s33"); e("s_cmp_lg_u32 s50, 2")
    e("s_waitcnt lgkmcnt(0)")
    e("s_mov_b32 s40, s12"); e("s_mov_b32 s41, s13")
    hmark(0)
    e("s_cbranch_scc1 L_hz")
    def wo_piece():
        e("s_lshl_b32 s37, s63, 10"); e(f"s_add_u32 m0, s37, {L_WO}")
        e("s_lshl_b32 s50, s63, 12"); e("s_add_u32 s50, s50, s62")
        for k in range(4):
            e(f"buffer_load_dwordx4 v33, s[40:43], s50 offen {wpol} lds")
            if k < 3: e("s_add_u32 m0, m0, 0x8000"); e("s_addk_i32 s50, 256")
        e("s_add_u32 s63, s63, 1"); e("s_and_b32 s63, s63, 31")
        e("s_sub_u32 s36, s36, 4")
    c("wo_A: piece = four rows, one load per column quarter; helper 2 of four workgroups fetches a quarter (into L2 too)")
    lab("L_pa")
    wo_piece()
    e("s_cmp_gt_u32 s36, 96"); e("s_cbranch_scc1 L_pa")
    e("s_branch L_hz")
    lab("L_h1a")
    c("wo_B slice (helper 1 of four workgroups per head): slot s holds row h*128 + 4s + g, columns (j&3)*128..")
    e("s_lshl_b32 s50, s49, 8"); e("s_add_u32 s50, s50, s62")
    e("s_cmp_lt_u32 s54, 4")
    e("s_waitcnt lgkmcnt(0)")
    e("s_mov_b32 s40, s22"); e("s_mov_b32 s41, s23")
    hmark(0)
    e("s_cbranch_scc1 L_hz")
    for s_ in range(32):
        e(f"buffer_load_dwordx4 v[{64+4*s_}:{67+4*s_}], v33, s[40:43], s50 offen nt")
        if s_ < 31: e("s_addk_i32 s50, 0x1000")
    lab("L_hz")
    hmark(1)
    e("s_barrier")
    e("s_branch L_hc")
    lab("L_h0a")
    e("v_lshlrev_b32 v3, 18, v2"); e("v_lshl_add_u32 v3, v1, 4, v3")
    e("v_and_b32 v35, 8, v0"); e("v_lshlrev_b32 v35, 7, v35"); e("v_lshl_add_u32 v35, v2, 6, v35")
    e("s_lshl_b32 s50, s32, 8"); e("s_lshl_b32 s51, s49, 20"); e("s_add_u32 s50, s50, s51"); e("s_lshl_b32 s51, s49, 8")
    e("s_movk_i32 s38, 2048")
    e("s_cmp_lt_u32 s54, 4")
    e("s_waitcnt lgkmcnt(0)")
    e("s_cselect_b32 s36, s4, s14"); e("s_cselect_b32 s37, s5, s15"); e("s_cselect_b32 s40, s10, s20"); e("s_cselect_b32 s41, s11, s21")
    hmark(0)
    c("helper 0: 128 of the 512 rows of the q projection of head h (branch A for j < 4, else branch B)")
    for k in range(4): e(f"buffer_load_dwordx4 v[{8+4*k}:{11+4*k}], v35, s[36:39], s51 offen offset:{16*k}")
    for t in range(32):
        e(f"buffer_load_dwordx4 v[{64+4*t}:{67+4*t}], v3, s[40:43], s50 offen nt")
        if t < 31: e("s_addk_i32 s50, 0x2000")
    hmark(1)
    e(f"s_add_u32 s52, s28, {(wsoff<<20) + EPOCH:#x}"); e("s_addc_u32 s53, s29, 0")
    e("s_load_dword s55, s[52:53], 0")
    lab("L_hc")
    e(f"v_mov_b32 v41, {L_FLAG}"); e("v_bfe_u32 v34, v0, 3, 1")
    c("diagonal masks m_i: e=l&7 ; (e>>1==i) ? half(e&1) : 0")
    e("v_and_b32 v24, 1, v0"); e("v_lshlrev_b32 v24, 4, v24"); e("v_mov_b32 v25, 0xffff"); e("v_lshlrev_b32 v24, v24, v25")
    e("v_bfe_u32 v25, v0, 1, 2")
    for i in range(4):
        e(f"v_cmp_eq_u32 vcc, {i}, v25"); e("s_nop 1"); e(f"v_cndmask_b32 v{4+i}, 0, v24, vcc")
    e("v_lshlrev_b32 v40, 4, v0"); e("v_mov_b32 v60, 0")
    e(f"s_add_u32 s44, s28, {wsoff<<20:#x}"); e("s_addc_u32 s45, s29, 0"); e("s_mov_b32 s46, s42"); e("s_mov_b32 s47, s43")
    tag_consts()
    def lds_wait(off, val, sl=16):
        n = u()
        e(f"s_mov_b32 s50, {(spin << 6) // (sl + 2)}")
        lab(f"L_p{n}")
        e(f"ds_read_b32 v24, v41 offset:{off}"); e("s_waitcnt lgkmcnt(0)")
        e("v_readfirstlane_b32 s51, v24"); e("s_sub_u32 s50, s50, 1"); e(f"s_cbranch_scc1 L_pd{n}")
        e(f"s_cmp_ge_u32 s51, {val}"); e(f"s_cbranch_scc1 L_pd{n}")
        e(f"s_sleep {sl}"); e(f"s_branch L_p{n}")
        lab(f"L_pd{n}")
    e("s_cmp_lg_u32 s33, 0"); e("s_cbranch_scc1 L_hb")
    e("s_waitcnt lgkmcnt(0)")
    e("s_add_u32 s55, s55, 0x04030201"); e("v_mov_b32 v63, s55"); e("v_mov_b32 v62, 1")
    def rows_mfma(waits):
        e("s_mov_b32 s52, 0x01000100"); e("s_mov_b32 s53, 0x03020302")
        if waits: e("s_waitcnt vmcnt(32)")
        for s_ in range(32):
            e(f"v_perm_b32 v32, v{8 + s_//2}, v{8 + s_//2}, s{52 + s_%2}")
            for i in range(4): e(f"v_and_b32 v{24+i}, v32, v{4+i}")
            if waits: e(f"s_waitcnt vmcnt({31-s_})"); e("s_nop 0")
            else: e("s_nop 1")
            e(f"v_mfma_f32_16x16x32_bf16 v[56:59], v[24:27], v[{64+4*s_}:{67+4*s_}], {'v[56:59]' if s_ else '0'}")
            if waits and s_ == hb: e("s_barrier")
    rows_mfma(True)
    e("s_lshl_b32 s52, s32, 13"); e(f"s_add_u32 s52, s52, {QP:#x}")
    e("s_lshl_b32 s51, s54, 10"); e("s_add_u32 s51, s51, s52")
    e("s_nop 3")
    put_tag(56, 63)
    e("buffer_store_dwordx4 v[56:59], v40, s[44:47], s51 offen sc1")
    def poll_begin(g=None):
        n = u(); e(f"s_mov_b32 s79, {gspin if g is None else g}"); lab(f"L_g{n}"); return n
    def poll_end(n, sl):
        e("s_not_b64 s[80:81], vcc"); e("s_mov_b64 exec, -1"); e(f"s_cbranch_scc0 L_gd{n}")
        e("s_sub_u32 s79, s79, 1"); e(f"s_cbranch_scc1 L_gd{n}")
        if sl: e(f"s_sleep {sl}")
        e(f"s_branch L_g{n}")
        lab(f"L_gd{n}")
    if stamps: e("s_memrealtime s[86:87]")
    c("helper 0 adds up the four branch-A slices for this workgroup's batch")
    e("v_and_b32 v42, 31, v0"); e("v_lshlrev_b32 v42, 4, v42"); e("v_lshrrev_b32 v24, 5, v0"); e("v_lshl_add_u32 v42, v24, 10, v42")
    e("v_lshlrev_b32 v43, 4, v1"); e("v_lshl_add_u32 v43, v24, 2, v43"); e("v_and_b32 v24, 1, v2"); e("v_lshl_add_u32 v43, v24, 3, v43")
    e("s_and_b32 s51, s2, 32"); e("s_lshl4_add_u32 s52, s51, s52")
    e("s_waitcnt vmcnt(0)")
    if stamps: e("s_memrealtime s[88:89]")
    lds_wait(28, 1, 2)
    n = poll_begin(qspin)
    for t in range(2): e(f"buffer_load_dwordx4 v[{8+4*t}:{11+4*t}], v42, s[44:47], s52 offen offset:{2048*t} sc1")
    for t in range(2):
        e(f"s_waitcnt vmcnt({1-t})"); get_tag(24 + t, 8 + 4 * t)
    for t in range(2): e(f"v_cmpx_eq_u32 vcc, s55, v{24+t}")
    poll_end(n, qslp)
    for k in range(4): e(f"v_add_f32 v{8+k}, v{8+k}, v{12+k}")
    e("s_nop 0")
    e("v_permlane32_swap_b32 v8, v10"); e("v_permlane32_swap_b32 v9, v11")
    e("v_add_f32 v8, v8, v10"); e("v_add_f32 v9, v9, v11")
    e("v_cvt_pk_bf16_f32 v8, v8, v9")
    e(f"ds_write_b32 v43, v8 offset:{L_QA}")
    e("ds_write_b64 v41, v[62:63] offset:16")
    if stamps: e("s_memrealtime s[82:83]")
    hdump(10)
    e("s_branch L_htiles")
    if mv:
        blk = L[helper_start:]; del L[helper_start:]; L[stream_cut:stream_cut] = blk
    lab("L_hb")
    e("s_cmp_eq_u32 s33, 2"); e("s_cbranch_scc1 L_balance")
    def get_launch_tag():
        lds_wait(16, 1, 4)
        e("ds_read_b32 v63, v41 offset:20"); e("s_waitcnt lgkmcnt(0)")
        e("v_readfirstlane_b32 s55, v63")
    e("s_cmp_eq_u32 s33, 1"); e("s_cbranch_scc1 L_agent")
    get_launch_tag()
    def wo_tiles():
        e("s_lshl_b32 s50, s33, 15"); e(f"s_add_u32 s50, s50, {L_WO}")
        e("v_lshrrev_b32 v33, 2, v1"); e("v_lshl_add_u32 v33, v2, 3, v33"); e("v_lshlrev_b32 v33, 8, v33")
        e("v_and_b32 v24, 3, v0"); e("v_lshl_add_u32 v33, v24, 3, v33"); e("v_add_u32 v33, s50, v33")
        for nb in range(8):
            for kb in range(4):
                r = 128 + 4 * (nb * 4 + kb)
                for hh in range(2):
                    e(f"ds_read_b64_tr_b16 v[{r+2*hh}:{r+2*hh+1}], v33 offset:{kb*8192 + hh*1024 + nb*32}")
            e("s_waitcnt lgkmcnt(0)")
    e("s_branch L_htiles")

    lab("L_agent")
    hdump(12)
    get_launch_tag()
    c("job 1: add up line j of the slices of head h")
    e("s_lshl_b32 s52, s32, 13"); e("s_lshl_b32 s51, s54, 7"); e("s_add_u32 s52, s52, s51"); e(f"s_add_u32 s52, s52, {QP + 4096:#x}")
    e("v_bfe_u32 v42, v0, 3, 2"); e("v_lshlrev_b32 v42, 10, v42"); e("v_and_b32 v24, 7, v0"); e("v_lshl_add_u32 v42, v24, 4, v42")
    if T1: lds_wait(8, 4 * 256 * T1 - 768 + 256 * pt)
    n = poll_begin()
    e("s_mov_b32 exec_hi, 0")
    e("buffer_load_dwordx4 v[8:11], v42, s[44:47], s52 offen sc1")
    e("s_waitcnt vmcnt(0)")
    get_tag(16, 8); e("v_cmp_eq_u32 vcc, s55, v16")
    e("s_nop 0"); e("s_mov_b32 vcc_hi, vcc_lo")
    poll_end(n, slp)
    for k in range(4): e(f"v_add_f32_dpp v{8+k}, v{8+k}, v{8+k} row_ror:8 {DPP}")
    for sw in (16,):
        for k in range(4): e(f"v_mov_b32 v{12+k}, v{8+k}")
        e("s_nop 0")
        for k in range(4): e(f"v_permlane{sw}_swap_b32 v{8+k}, v{12+k}")
        for k in range(4): e(f"v_add_f32 v{8+k}, v{8+k}, v{12+k}")
    put_tag(8, 63)
    e("s_lshl3_add_u32 s50, s32, s54"); e("s_lshl_b32 s50, s50, 7"); e(f"s_add_u32 s50, s50, {QB:#x}")
    e("s_mov_b64 exec, 0xff"); e("buffer_store_dwordx4 v[8:11], v40, s[44:47], s50 offen sc1"); e("s_mov_b64 exec, -1")
    c("job 2: q of the four heads of this workgroup's B unit -> LDS; lane = (head&1, half, c)")
    e("v_and_b32 v42, 31, v0"); e("v_lshlrev_b32 v42, 4, v42"); e("v_lshrrev_b32 v24, 5, v0"); e("v_lshl_add_u32 v42, v24, 10, v42")
    e("v_lshlrev_b32 v43, 4, v1"); e("v_lshl_add_u32 v43, v24, 8, v43"); e("v_and_b32 v24, 1, v2"); e("v_lshl_add_u32 v43, v24, 3, v43")
    e("s_lshl_b32 s52, s30, 12"); e("s_lshr_b32 s51, s31, 4"); e("s_lshl_b32 s51, s51, 9"); e("s_add_u32 s52, s52, s51")
    e(f"s_add_u32 s52, s52, {QB:#x}")
    lds_wait(8, 4 * 256 * T2 - 768 + 256 * pt)
    n = poll_begin()
    e("buffer_load_dwordx4 v[8:11], v42, s[44:47], s52 offen sc1")
    e("buffer_load_dwordx4 v[12:15], v42, s[44:47], s52 offen offset:2048 sc1")
    e("s_waitcnt vmcnt(0)")
    get_tag(16, 8); get_tag(17, 12)
    e("v_cmpx_eq_u32 vcc, s55, v16"); e("v_cmpx_eq_u32 vcc, s55, v17")
    poll_end(n, slp)
    for q in range(4): e(f"v_cvt_pk_bf16_f32 v{16+q}, v{8+2*q}, v{9+2*q}")
    e(f"ds_write_b64 v43, v[16:17] offset:{L_QB}"); e(f"ds_write_b64 v43, v[18:19] offset:{L_QB+512}")
    lds_wait(24, 2)
    e("v_mov_b32 v25, 1")
    e("ds_write_b32 v41, v25")
    if jit & 16:
        e("s_and_b32 s50, s2, 3"); e("s_cmp_lg_u32 s50, 1"); e("s_cbranch_scc1 L_j16x")
        for _ in range(30): e("s_sleep 127")
        lab("L_j16x")
    c("job 3: merge the four waves' B partials, publish (outputs first, then the tagged max/sum line)")
    lds_wait(4, 256)
    e("v_lshlrev_b32 v42, 4, v2")
    e("v_lshlrev_b32 v43, 5, v0")
    for w in range(4): e(f"ds_read_b32 v{8+w}, v42 offset:{L_RECB + w*RECB + 2048}")
    e("s_waitcnt lgkmcnt(0)")
    for w in range(4):
        for a in range(4): e(f"ds_read_b32 v{12+4*w+a}, v42 offset:{L_RECB + w*RECB + 2304 + 64*a}")
        e("s_waitcnt lgkmcnt(0)")
    e("v_max3_f32 v44, v8, v9, v10"); e("v_max_f32 v44, v44, v11")
    for w in range(4): e(f"v_sub_f32 v{8+w}, v{8+w}, v44")
    for w in range(4): e(f"v_exp_f32 v{8+w}, v{8+w}")
    e("v_mov_b32 v45, 0"); e("v_lshlrev_b32 v46, 8, v44"); e("v_mov_b32 v47, 0")
    for w in range(4):
        for a in range(4): e(f"v_fmac_f32 v45, v{8+w}, v{12+4*w+a}")
    put_tag(44, 63)
    for k in range(8): e(f"v_mov_b32 v{48+k}, 0")
    for w in range(4):
        e(f"ds_read_b128 v[12:15], v43 offset:{L_RECB + w*RECB}")
        e(f"ds_read_b128 v[16:19], v43 offset:{L_RECB + w*RECB + 16}")
        e("s_waitcnt lgkmcnt(0)")
        for k in range(8): e(f"v_fmac_f32 v{48+k}, v{8+w}, v{12+k}")
    for k in range(4): e(f"v_cvt_pk_bf16_f32 v{48+k}, v{48+2*k}, v{49+2*k}")
    e("s_lshr_b32 s52, s31, 4"); e("s_lshl3_add_u32 s52, s52, s30")
    e("s_and_b32 s51, s31, 15"); e("s_lshl4_add_u32 s52, s52, s51")
    e("s_lshl_b32 s50, s52, 10"); e(f"s_add_u32 s50, s50, {PBO:#x}")
    e("buffer_store_dwordx4 v[48:51], v40, s[44:47], s50 offen sc1")
    e("s_lshl_b32 s50, s52, 7"); e(f"s_add_u32 s50, s50, {PBML:#x}")
    e("v_lshlrev_b32 v42, 5, v2"); e("v_lshl_add_u32 v42, v1, 4, v42")
    e("s_waitcnt vmcnt(0)")
    e("s_mov_b32 exec_lo, 0x00030003"); e("s_mov_b32 exec_hi, 0x00030003")
    e("buffer_store_dwordx4 v[44:47], v42, s[44:47], s50 offen sc1")
    e("s_mov_b64 exec, -1")
    e("s_cmp_lt_u32 s54, 4"); e("s_cbranch_scc1 L_htiles")
    c("job 4: finish head h (both batches), multiply by the wo slice")
    e("v_lshrrev_b32 v42, 5, v0")
    e("v_lshlrev_b32 v43, 14, v42"); e("v_lshl_add_u32 v43, v1, 7, v43")
    e("v_and_b32 v47, 1, v2")
    e("v_lshlrev_b32 v35, 17, v42"); e("v_lshl_add_u32 v35, v47, 10, v35"); e("v_lshl_add_u32 v35, v1, 4, v35")
    e("v_lshl_add_u32 v33, v42, 5, v47"); e("v_lshlrev_b32 v33, 2, v33")
    e("s_lshr_b32 s51, s31, 3")
    e("s_lshl_b32 s52, s30, 11"); e("s_lshl_b32 s53, s51, 5"); e("s_add_u32 s52, s52, s53"); e(f"s_add_u32 s52, s52, {PBML:#x}")
    e("s_lshl_b32 s53, s30, 14"); e("s_lshl_b32 s51, s51, 8"); e("s_add_u32 s53, s53, s51"); e(f"s_add_u32 s53, s53, {PBO:#x}")
    lds_wait(8, 4 * 256 * (NA1 + 4 + T4) - 768 + 256 * pt)
    n = poll_begin()
    e("buffer_load_dwordx4 v[8:11], v43, s[44:47], s52 offen sc1")
    e("s_waitcnt vmcnt(0)")
    get_tag(16, 8, 2); e("v_perm_b32 v8, v8, v10, s57"); e("v_cmp_eq_u32 vcc, s55, v16")
    poll_end(n, slp)
    for t in range(8):
        e(f"buffer_load_dwordx4 v[{192+4*t}:{195+4*t}], v35, s[44:47], s53 offen offset:{2048*(t%2)} sc1")
        if t % 2 and t < 7: e("s_addk_i32 s53, 0x1000")
    e(f"v_max_f32_dpp v12, v8, v8 quad_perm:[1,0,3,2] {DPP}"); e("s_nop 1")
    for d in ("quad_perm:[2,3,0,1]", "row_ror:4", "row_ror:8"):
        e(f"v_max_f32_dpp v12, v12, v12 {d} {DPP}"); e("s_nop 1")
    e("v_sub_f32 v8, v8, v12"); e("v_exp_f32 v8, v8"); e("s_nop 0"); e("v_mul_f32 v9, v8, v9"); e("s_nop 1")
    for d in ("quad_perm:[1,0,3,2]", "quad_perm:[2,3,0,1]", "row_ror:4", "row_ror:8"):
        e(f"v_add_f32_dpp v9, v9, v9 {d} {DPP}"); e("s_nop 1")
    e("v_rcp_f32 v9, v9"); e("s_nop 0"); e("v_mul_f32 v8, v8, v9")
    for t in range(8): e(f"ds_bpermute_b32 v{48+t}, v33, v8 offset:{8*t}")
    for k in range(8): e(f"v_mov_b32 v{16+k}, 0")
    e("s_waitcnt vmcnt(0) lgkmcnt(0)")
    for t in range(8):
        for k in range(4):
            e(f"v_lshlrev_b32 v24, 16, v{192+4*t+k}"); e(f"v_and_b32 v25, 0xffff0000, v{192+4*t+k}")
            e(f"v_fmac_f32 v{16+2*k}, v{48+t}, v24"); e(f"v_fmac_f32 v{17+2*k}, v{48+t}, v25")
    e("s_nop 1")
    for k in range(4): e(f"v_permlane16_swap_b32 v{16+k}, v{20+k}")
    for k in range(4): e(f"v_add_f32 v{16+k}, v{16+k}, v{20+k}")
    e("v_cvt_pk_bf16_f32 v16, v16, v17"); e("v_cvt_pk_bf16_f32 v17, v18, v19")
    e("v_lshl_add_u32 v46, v1, 1, v47")
    e("v_lshlrev_b32 v46, 1, v46"); e("v_lshl_add_u32 v46, v42, 8, v46")
    for k in range(4): e(f"ds_write_b16{'_d16_hi' if k%2 else ''} v46, v{16+k//2} offset:{L_SCR + 64*k}")
    e("v_lshlrev_b32 v46, 8, v34"); e("v_lshl_add_u32 v46, v2, 6, v46")
    e("s_waitcnt lgkmcnt(0)")
    for k in range(4): e(f"ds_read_b128 v[{8+4*k}:{11+4*k}], v46 offset:{L_SCR + 16*k}")
    e("s_waitcnt lgkmcnt(0)")
    rows_mfma(False)
    c("line (b, cq*4 + ((l>>3)&3)) of head h")
    e("s_lshl_b32 s52, s32, 7"); e("s_and_b32 s51, s54, 3"); e(f"s_mul_i32 s51, s51, {4*YBS}")
    e("s_add_u32 s52, s52, s51"); e(f"s_add_u32 s52, s52, {YB:#x}")
    e("v_bfe_u32 v60, v0, 3, 2"); e("v_lshl_add_u32 v60, v42, 4, v60"); e(f"v_mul_u32_u24 v60, {YBS}, v60")
    e("v_and_b32 v24, 7, v0"); e("v_lshl_add_u32 v60, v24, 4, v60")
    put_tag(56, 63)
    if YBT >= 0:
        if YBT: lds_wait(8, 4 * 256 * YBT - 768 + 256 * pt)
        e("buffer_store_dwordx4 v[56:59], v60, s[44:47], s52 offen sc1")

    lab("L_htiles")
    lds_wait(24, 1, 32)
    wo_tiles()
    if cw:
        e("s_cmp_lg_u32 s33, 3"); e("s_cbranch_scc1 L_hfinal")
        c("helper 3 reads a 1/32 slice of this kernel's code now and then, so that it waits in L2 when first executed")
        e("s_getpc_b64 s[52:53]")
        lab("L_pc")
        e(f"s_sub_u32 s52, s52, L_pc-{NAME}_kernel"); e("s_subb_u32 s53, s53, 0")
        e("s_lshl_b32 s50, s31, 10"); e("v_add_u32 v42, s50, v40")
        e(f"s_mov_b32 s50, L_last-{NAME}_kernel-16"); e("v_min_u32 v42, s50, v42")
        e("v_mov_b32 v43, s53"); e("v_add_co_u32 v42, vcc, s52, v42"); e("s_nop 1"); e("v_addc_co_u32 v43, vcc, 0, v43, vcc")
        for tick in [int(z) for z in cw.split(".")]:
            lds_wait(8, 256 * (tick + pt))
            e("global_load_dwordx4 v[44:47], v[42:43], off")
    lab("L_hfinal")
    e("v_and_b32 v8, 3, v0"); e(f"v_mul_u32_u24 v8, {RECA}, v8"); e("v_lshl_add_u32 v8, v2, 4, v8"); e("v_mov_b32 v9, 0")
    e("s_and_b32 s50, s31, 3"); e("s_lshl_b32 s50, s50, 5"); e("s_add_u32 s50, s50, s32"); e("s_lshl_b32 s50, s50, 7")
    e("s_bfe_u32 s51, s2, 0x10005"); e("s_lshl2_add_u32 s51, s51, s33"); e(f"s_mul_i32 s51, s51, {4*YAS}")
    e("s_add_u32 s50, s50, s51"); e(f"s_add_u32 s50, s50, {YA:#x}"); e(f"s_add_u32 s51, s50, {2*YAS}")
    e(f"v_mul_u32_u24 v10, {YAS}, v34"); e("v_and_b32 v11, 7, v0"); e("v_lshl_add_u32 v10, v11, 4, v10")
    e("v_lshl_add_u32 v10, v2, 28, v10")
    e("s_and_b32 s48, s54, 4"); e("s_add_u32 s48, s48, s33")
    if rh:
        c("helper 0 is here early: it runs the block once with an empty store range, which loads the instruction cache")
        e("s_cmp_lg_u32 s33, 0"); e("s_cselect_b32 s46, s46, 0"); e("s_cbranch_scc0 L_hf1")
        lab("L_hf0")
    e("s_waitcnt vmcnt(0) lgkmcnt(0)")
    e("s_barrier")
    if rh: lab("L_hf1")
    if stamps >= 2: e("s_memrealtime s[86:87]"); e("s_waitcnt lgkmcnt(0)")
    for kb in range(4): e(f"ds_read_b128 v[{16+4*kb}:{19+4*kb}], v8 offset:{L_RECA + kb*64}")
    e(f"ds_read_b128 v[12:15], v9 offset:{L_MA}")
    if YBT < 0:
        e("s_cmp_lg_u32 s48, 5"); e("s_cbranch_scc1 L_hf2")
        e("buffer_store_dwordx4 v[56:59], v60, s[44:47], s52 offen sc1")
        lab("L_hf2")
    def tile(nb, kb):
        d = 64 + 4 * nb; r = 128 + 4 * (nb * 4 + kb)
        e(f"v_mfma_f32_16x16x32_bf16 v[{d}:{d+3}], v[{16+4*kb}:{19+4*kb}], v[{r}:{r+3}], {f'v[{d}:{d+3}]' if kb else '0'}")
    fill = []
    fill += ["s_waitcnt lgkmcnt(0)", "v_max3_f32 v11, v12, v13, v14", "v_max_f32 v11, v11, v15"]
    fill += [f"v_sub_f32 v{12+w}, v{12+w}, v11" for w in range(4)]
    fill += [f"v_exp_f32 v{12+w}, v{12+w}" for w in range(4)]
    def comb(nb):
        d = 64 + 4 * nb; y = 32 + nb
        return [f"v_mul_f32 v{y}, v12, v{d}"] + [f"v_fmac_f32 v{y}, v{12+w}, v{d+w}" for w in range(1, 4)] + \
               [f"v_perm_b32 v{y}, v{y}, v63, s{56 + nb % 4}"]
    for nb in range(8):
        if nb >= 2: fill += comb(nb - 2)
        if nb == 5 and es: fill.append("buffer_store_dwordx4 v[32:35], v10, s[44:47], s50 offen sc1")
        for kb in range(4):
            if nb == 0: e(f"s_waitcnt lgkmcnt({4-kb})")
            tile(nb, kb)
            if nb >= 1:
                for _ in range(2):
                    if fill: e(fill.pop(0))
    for x in fill: e(x)
    if not es: e("buffer_store_dwordx4 v[32:35], v10, s[44:47], s50 offen sc1")
    for x in comb(6): e(x)
    e(f"s_nop {2 if es else 1}")
    for x in comb(7): e(x)
    e("buffer_store_dwordx4 v[36:39], v10, s[44:47], s51 offen sc1")
    if rh:
        e("s_cmp_eq_u32 s46, 0"); e(f"s_mov_b32 s46, {WSSZ:#x}"); e("s_cbranch_scc1 L_hf0")
    if stamps:
        e("s_cmp_lg_u32 s33, 0"); e("s_cbranch_scc1 L_end")
        e("s_memrealtime s[84:85]"); e("s_waitcnt lgkmcnt(0)")
        e("s_mov_b64 exec, 1"); e("s_mov_b32 s44, s28"); e("s_mov_b32 s45, s29")
        for k in range(8): e(f"v_mov_b32 v{16+k}, s{82+k}")
        e("s_lshl_b32 s51, s2, 7"); e("s_add_u32 s51, s51, 0x20030")
        e("buffer_store_dwordx4 v[16:19], off, s[44:47], s51")
        e("buffer_store_dwordx4 v[20:23], off, s[44:47], s51 offset:16")
    lab("L_end")
    e("s_endpgm")
    lab("L_balance")
    c("helper 2: every 8 loads of the stream it brings a few rows of wo_A into LDS, and (speed only) compares this")
    c("workgroup's progress with its neighbours' to set the depth of the load queue")
    e("s_mul_i32 s52, s30, 4352"); e(f"s_add_u32 s52, s52, {PROG:#x}")
    e("s_lshl1_add_u32 s53, s31, s52")
    e("v_lshlrev_b32 v42, 1, v0"); e("v_mov_b32 v12, 0")
    e("s_cmp_lg_u32 s31, 0"); e("s_cbranch_scc1 L_pi")
    e("s_mov_b64 exec, 0xff")
    e("buffer_store_dwordx4 v[28:31], v40, s[44:47], s52 offen sc1")
    e("s_cmp_lg_u32 s30, 0"); e("s_cbranch_scc1 L_pi")
    e("s_mov_b64 exec, -1")
    e("v_mul_u32_u24 v13, 0x1100, v0"); e(f"s_mov_b32 s50, {PROG + 0x10000:#x}")
    e("buffer_store_dword v12, v13, s[44:47], s50 offen sc1")
    lab("L_pi")
    e("s_mov_b64 exec, -1")
    e(f"s_mov_b32 s49, {256*n0 - 128}"); e(f"s_mov_b32 s79, {spin << 4}")
    e("s_mov_b32 s60, 0"); e("s_mov_b32 s61, 0")
    hdump(14)
    lab("L_pl")
    e("ds_read_b32 v24, v41 offset:8"); e("s_waitcnt lgkmcnt(0)")
    e("v_readfirstlane_b32 s51, v24"); e("s_sub_i32 s79, s79, 1"); e("s_cmp_lt_i32 s79, 0"); e("s_cbranch_scc1 L_pt")
    e("s_cmp_ge_u32 s51, s49"); e("s_cbranch_scc1 L_pt")
    e("s_sleep 2"); e("s_branch L_pl")
    lab("L_pt")
    if jit & 4:
        for _ in range(2): e("s_sleep 127")
    e("s_add_u32 s48, s51, 128"); e("s_lshr_b32 s48, s48, 8")
    e("s_lshl_b32 s49, s48, 8"); e("s_add_u32 s49, s49, 128"); e(f"s_min_u32 s49, s49, {(76 + pt)*256}")
    e("v_mov_b32 v12, s48")
    e("s_mov_b32 exec_hi, 1")
    e("buffer_load_sshort v13, v42, s[44:47], s52 offen nt")
    e("s_mov_b64 exec, 1")
    e("buffer_store_short v12, off, s[44:47], s53")
    if xk:
        c("column leaders rank the columns every few steps")
        e("s_cmp_lg_u32 s31, 0"); e("s_cbranch_scc1 L_pn")
        e(f"s_lshr_b32 s50, s48, {xp.bit_length()-1}"); e("s_cmp_eq_u32 s50, s60"); e("s_cbranch_scc1 L_pn")
        e("s_mov_b32 s60, s50"); e("s_mul_i32 s50, s50, 0x1100"); e(f"s_add_u32 s50, s50, {PROG + 0x10000:#x}")
        e("v_mov_b32 v14, 2")
        e("buffer_atomic_add v14, off, s[44:47], s50 sc0 sc1")
        e("s_waitcnt vmcnt(0)")
        e("v_readfirstlane_b32 s50, v14"); e("s_sub_i32 s50, s50, 7"); e(f"s_mul_i32 s50, s50, {xk}")
        if ls:
            e(f"s_ashr_i32 s51, s61, {ls}"); e("s_sub_i32 s61, s61, s51"); e("s_add_i32 s61, s61, s50"); e(f"s_ashr_i32 s50, s61, {xs}")
        if li:
            e("s_add_i32 s61, s61, s50"); e(f"s_lshl_b32 s50, s50, {li - xs}"); e("s_add_i32 s50, s50, s61")
            e(f"s_add_i32 s50, s50, {1 << (li - 1)}"); e(f"s_ashr_i32 s50, s50, {li}")
        if ff:
            c("even dies see slightly longer latencies than odd ones: small fixed bias (speed only)")
            e("s_getreg_b32 s51, hwreg(HW_REG_XCC_ID)"); e("s_bitcmp1_b32 s51, 0"); e(f"s_cselect_b32 s51, {-ff}, {ff}"); e("s_add_i32 s50, s50, s51")
        e("v_mov_b32 v14, s50")
        e("buffer_store_short v14, off, s[44:47], s52 offset:64")
        lab("L_pn")
    e("s_mov_b32 exec_lo, -1")
    e("s_waitcnt vmcnt(1)")
    e("v_readlane_b32 s50, v13, 32")
    e("v_subrev_u32 v13, s48, v13")
    for d in range(-2, 3):
        e(f"v_cmp_le_i32 vcc, {d}, v13"); e("s_bcnt1_i32_b64 s51, vcc"); e("s_add_i32 s50, s50, s51")
    e("s_mov_b64 exec, -1")
    e(f"s_sub_i32 s37, s50, {e1}"); e("s_max_i32 s37, s37, 0"); e(f"s_lshr_b32 s37, s37, {g2}"); e("s_min_u32 s37, s37, 16")
    e("s_bfm_b32 s37, s37, 16")
    e(f"s_sub_i32 s50, s50, {e0}"); e("s_abs_i32 s51, s50")
    if db: e(f"s_sub_i32 s51, s51, {db}"); e("s_max_i32 s51, s51, 0")
    e(f"s_lshr_b32 s51, s51, {gs}"); e("s_min_u32 s51, s51, 8")
    e("s_bfm_b32 s51, s51, 0")
    e("s_cmp_lt_i32 s50, 0"); e("s_cselect_b32 s50, 8, 0"); e("s_lshl_b32 s51, s51, s50")
    e("s_or_b32 s51, s51, s37")
    e("v_mov_b32 v12, s51"); e("ds_write_b32 v41, v12 offset:12")
    if tl:
        e("s_cmp_ge_u32 s2, 16"); e("s_cbranch_scc1 L_tl")
        e("s_memrealtime s[90:91]"); e("s_waitcnt lgkmcnt(0)"); e("v_mov_b32 v12, s90")
        e("s_lshl_b32 s50, s2, 9"); e("s_lshl2_add_u32 s50, s48, s50"); e("s_add_u32 s50, s50, 0x30000")
        e("s_mov_b64 exec, 1"); e("buffer_store_dword v12, off, s[44:47], s50"); e("s_mov_b64 exec, -1")
        lab("L_tl")
    e(f"s_cmp_lt_u32 s48, {w0}"); e("s_cbranch_scc1 L_pl")
    e("s_cmp_lt_i32 s36, 0"); e("s_cbranch_scc1 L_pe")
    e("s_cmp_eq_u32 s36, 0"); e("s_cbranch_scc1 L_pw")
    c("wo_A: piece = four rows, one load per column quarter")
    lab("L_pd")
    wo_piece()
    e(f"s_cmp_ge_u32 s48, {26 + pt}"); e("s_cbranch_scc1 L_pq")
    e(f"s_cmp_gt_u32 s36, {wk2}"); e(f"s_cselect_b32 s50, 7, {wk-1}"); e("s_and_b32 s50, s36, s50"); e("s_cbranch_scc1 L_pd")
    e("s_branch L_pl")
    lab("L_pq")
    e("s_cmp_lg_u32 s36, 0"); e("s_cbranch_scc1 L_pd")
    lab("L_pw")
    e("v_mov_b32 v12, 1"); e("s_waitcnt vmcnt(0)"); e("ds_write_b32 v41, v12 offset:24")
    e("ds_read_b32 v63, v41 offset:20")
    wo_tiles()
    e("v_mov_b32 v12, 2"); e("ds_write_b32 v41, v12 offset:24")
    e("s_mov_b32 s36, -1")
    lab("L_pe")
    e(f"s_cmp_lt_u32 s48, {75 + pt}"); e("s_cbranch_scc0 L_hfinal")
    e("s_cmp_lt_i32 s79, 0"); e("s_cbranch_scc0 L_pl")
    e("s_branch L_hfinal")

    if cw: lab("L_last")
    if drop or plain:
        job = None
        for k, t in enumerate(L):
            if t.startswith("  ; job "): job = t[8]
            if t.startswith("  ; helper 0 adds"): job = "q"
            if t.startswith("  ; helper 0: 128"): job = "h"
            if t.startswith("L_pl:"): job = None
            if t.startswith("  ; wo_B slice"): job = "b"
            if t.startswith("  ; wo_A: piece"): job = "a"
            if t.startswith("L_hfinal"): job = "f"
            if t.startswith("L_balance"): job = None
            if job is not None and "buffer_" in t and "off," not in t:
                if job + ("s" if "store" in t else "l") in drop.split("."): L[k] = "  s_nop 0"
                if job + ("s" if "store" in t else "l") in plain.split("."): L[k] = t.replace(" sc1", "" if "store" in t or pdef else " nt")
    L.append('.section .rodata,"a"'); L.append(".p2align 6")
    L.append(f".amdhsa_kernel {NAME}_kernel")
    for s in ("next_free_vgpr 256", "next_free_sgpr 96", "accum_offset 256", "group_segment_fixed_size 0",
              "kernarg_size 104", "user_sgpr_count 2", "user_sgpr_kernarg_segment_ptr 1",
              "system_sgpr_workgroup_id_x 1", "float_denorm_mode_32 3"):
        L.append("  .amdhsa_" + s)
    L.append(".end_amdhsa_kernel")
    return "\n".join(L) + "\n"

if __name__ == "__main__":
    import os
    names = []
    os.makedirs("k", exist_ok=True)
    for spec in sys.argv[1:]:
        p = {}
        for x in spec.split(","):
            if not x: continue
            k, v = x.split("=")
            p[k] = v.replace("+", " ") if k in ("wpol", "drop", "ms", "plain", "kvp", "bb", "cw") else int(v)
            if k == "wpol" and v == "def": p[k] = ""
            if k in ("ms", "cw") and v == "no": p[k] = ""
        fn = "k/k_" + (spec.replace(",", "_").replace("=", "").replace("+", "") or "base") + ".s"
        open(fn, "w").write(gen(**p))
        names.append("dev/" + fn)
    print(" ".join(names))
```

```python
import sys, math, struct
NAME = "concat_heads__mha_block_cached__gqa_block_cached__decode"

HEADER = """; Kernarg layout for this problem (104 bytes, ptrs only, base s[0:1]):
"""

def f2u(x): return struct.unpack("<I", struct.pack("<f", x))[0]

WSB  = 0x100000
EPOCH = WSB
QB   = WSB + 0x010000
PBO  = WSB + 0x040000
PBML = WSB + 0x0C0000
YB   = WSB + 0x0D0000
YBS  = 4096 + 256
YA   = WSB + 0x140000
YAS  = 16384 + 256
MLA  = WSB + 0x1E0000
MLS  = 2048 + 256
QP   = WSB + 0x200000
PROG = WSB + 0x280000
WSSZ = 0x400000
L_QA   = 0x0000
L_QB   = 0x0400
L_FLAG = 0x0800
L_SCR  = 0x0100
L_MA   = 0x0A00
L_RED  = 0x0A40
L_RECA = 0x0D00; RECA = 576
L_RECB = 0x1800; RECB = 2560
L_WO   = 0x4000
L_SB   = L_WO + 0x10000
L_S    = L_WO + 0x20000
LDS_BYTES = L_S + 0x4000

def gen(inf=5, inf0=5, m1=9, bb='16.19', m2=1, m3=0, m4=0, tbl=0, wpol="", stamps=0, spin=1 << 20, slp=64, wsoff=0,
        T1=5, T2=7, T4=3, YBT=-1, qslp=8, rspin=1 << 22, gspin=1 << 20, drop="",
        hi=7, lo=4, pace=1, n0=1, e0=80, gs=2, xk=1, xp=4, ls=0, xs=0, li=0, ff=2, wk=8, wk2=64, w0=1, es=1, ot2=16, e1=64, g2=2, pq=14, hb=24, nb0=4, cw='26.66', cw0=2, pad=0, rh=0, pt=0, db=0, tl=0, plain='', pdef=0, qspin=1 << 20, kvp='nt', diagw=0, jit=0, mv=1, one=0, amp=0, ampb=88, amps=-1, mlr=4, rsl=0, rw=1, rd=0, rwb=1, rdb=0, pd=0, pn=1, wb0=3, wb2=0, wb3=3, ot=4):
    L = []
    def e(s): L.append("  " + s)
    def lab(s): L.append(s + ":")
    def c(s): L.append("  ; " + s)
    uid = [0]
    def u():
        uid[0] += 1; return uid[0]
    SC = f2u(128 ** -0.5 * math.log2(math.e))
    NA1 = 8
    DPP = "row_mask:0xf bank_mask:0xf"

    L.append(HEADER.rstrip("\n"))
    L.append(f"; @launch grid=(256,1,1) block=(512,1,1) lds={LDS_BYTES}")
    L.append('.amdgcn_target "amdgcn-amd-amdhsa--gfx950"')
    L.append(".text"); L.append(f".globl {NAME}_kernel"); L.append(".p2align 8")
    L.append(f".type {NAME}_kernel,@function"); L.append(f"{NAME}_kernel:")

    def stamp(k, lvl=1):
        if stamps >= lvl or (amp and lvl == 1): e(f"s_memrealtime s[{64+2*k}:{65+2*k}]")
    def hmark(k):
        if stamps >= 5: e(f"s_memrealtime s[{64+2*k}:{65+2*k}]")
    def hdump(slot):
        if stamps >= 5:
            e("s_waitcnt lgkmcnt(0)"); e("s_mov_b64 exec, 1")
            for k in range(4): e(f"v_mov_b32 v{44+k}, s{64+k}")
            e("s_lshl_b32 s51, s2, 7"); e(f"s_add_u32 s51, s51, {0x20000 + 8*slot}")
            e("buffer_store_dwordx4 v[44:47], off, s[44:47], s51"); e("s_mov_b64 exec, -1")
    def tag_consts():
        for k in range(4): e(f"s_mov_b32 s{56+k}, {0x07060500 + k:#x}")
        e("s_mov_b32 s76, 0x0c0c0400"); e("s_mov_b32 s77, 0x0c040100"); e("s_mov_b32 s78, 0x04020100")
        e("s_movk_i32 s94, 0xff00")
    def put_tag(r, vn):
        for k in range(4): e(f"v_perm_b32 v{r+k}, v{r+k}, v{vn}, s{56+k}")
    def get_tag(t, r, n=4):
        e(f"v_perm_b32 v{t}, v{r+1}, v{r}, s76"); e(f"v_perm_b32 v{t}, v{r+2}, v{t}, s77"); e(f"v_perm_b32 v{t}, v{r+3}, v{t}, s78")
        for k in range(n): e(f"v_and_b32 v{r+k}, s94, v{r+k}")

    e("s_cmp_ge_u32 s2, 256"); e("s_cbranch_scc1 L_end")
    e("s_load_dwordx16 s[4:19], s[0:1], 0")
    e("s_load_dwordx8 s[20:27], s[0:1], 64")
    e("s_load_dwordx2 s[28:29], s[0:1], 96")
    if stamps or diagw: e("s_memrealtime s[60:61]")
    e("v_lshrrev_b32 v1, 6, v0")
    e("s_and_b32 s30, s2, 7")
    e("v_readfirstlane_b32 s3, v1")
    e("s_lshr_b32 s31, s2, 3")
    e("v_and_b32 v0, 63, v0")
    e("s_lshr_b32 s33, s2, 6"); e("s_lshl2_add_u32 s32, s30, s33")
    e("s_and_b32 s35, s2, 32"); e("s_add_u32 s35, s35, s32")
    e("s_mov_b32 s42, 0x400000"); e("s_mov_b32 s43, 0x20000"); e("s_mov_b32 s39, s43")
    if jit & 1:
        e("s_mul_i32 s50, s2, 37"); e("s_and_b32 s50, s50, 31"); e("s_cmp_lg_u32 s50, 5"); e("s_cbranch_scc1 L_j1x")
        for _ in range(40): e("s_sleep 127")
        lab("L_j1x")
    if jit & 2:
        e("s_add_u32 s50, s2, s3"); e("s_and_b32 s50, s50, 7"); e("s_cmp_lg_u32 s50, 3"); e("s_cbranch_scc1 L_j2x")
        for _ in range(6): e("s_sleep 127")
        lab("L_j2x")
    e("s_cmp_ge_u32 s3, 4"); e("s_cbranch_scc1 L_helper")

    RING = 128
    def issue(p):
        r = RING + 4 * p; j = p % 8
        if j == 4: e("s_xor_b32 s44, s44, 0x200000")
        e(f"buffer_load_dwordx4 v[{r}:{r+3}], v36, s[36:39], s44 offen offset:{(j%4)*1024} {kvp}")
        if j == 7:
            e("s_sub_u32 s44, s44, s45"); e("s_and_b32 s44, s44, s45")
    def set_src(ptr, unit, voff):
        e(f"s_add_u32 s36, s{ptr}, s{unit}"); e(f"s_addc_u32 s37, s{ptr+1}, 0")
        if voff: e(f"v_mov_b32 v36, v{voff}")
    def wi(p, last=False):
        if last and p >= 32 - ot:
            pass
        elif pace:
            n = u(); j = p % 8
            if last and p >= 32 - ot2:
                e(f"s_bitcmp1_b32 s33, {16+31-p}"); e(f"s_cbranch_scc1 L_v{n}")
            e(f"s_bitcmp1_b32 s33, {j}"); e(f"s_cbranch_scc1 L_t{n}")
            e(f"s_bitcmp0_b32 s33, {8+j}"); e(f"s_cbranch_scc1 L_u{n}")
            e(f"s_waitcnt vmcnt({lo-1})")
            lab(f"L_u{n}")
            e(f"s_waitcnt vmcnt({inf-1})")
            lab(f"L_t{n}")
            e(f"s_waitcnt vmcnt({hi-1})")
            if last and p >= 32 - ot2: lab(f"L_v{n}")
        else:
            e(f"s_waitcnt vmcnt({inf-1})")
        issue(p)
    def pick_mask():
        if pace:
            c("queue depth for this step: bits 0-7 deeper, bits 8-15 shallower; late waves of the workgroup go a bit deeper")
            e("s_waitcnt lgkmcnt(0)"); e("v_readfirstlane_b32 s33, v90"); e("v_readfirstlane_b32 s50, v91")
            e("ds_read_b32 v90, v14 offset:12")
            if one: e("s_mov_b64 exec, 1"); e("ds_add_rtn_u32 v91, v14, v92 offset:8"); e("s_mov_b64 exec, -1")
            else: e("ds_add_rtn_u32 v91, v14, v15 offset:8")
            e("s_sub_i32 s50, s50, s34"); e("s_addk_i32 s34, 256")
            if wb0:
                e("s_cmp_lt_i32 s50, 64"); e(f"s_cselect_b32 s51, {((1 << wb0) - 1) << 8:#x}, 0"); e("s_or_b32 s33, s33, s51")
            if wb2:
                e("s_cmp_ge_i32 s50, 128"); e(f"s_cselect_b32 s51, {(1 << wb2) - 1:#x}, 0"); e("s_or_b32 s33, s33, s51")
            if wb3:
                e("s_cmp_ge_i32 s50, 192"); e(f"s_cselect_b32 s51, {(1 << wb3) - 1:#x}, 0"); e("s_or_b32 s33, s33, s51")
        else:
            e("ds_add_u32 v14, v15 offset:8")
    c("K lane offset: key=(l>>2)&3, d=(l>>4)*32+(l&3)*8 ; V lane offset: l*16")
    e("v_lshlrev_b32 v3, 4, v0")
    e("v_and_b32 v2, 48, v3"); e("v_and_b32 v4, 12, v0"); e("v_lshl_add_u32 v2, v4, 6, v2")
    e("v_and_b32 v5, 48, v0"); e("v_lshl_add_u32 v36, v5, 2, v2")
    e("s_and_b32 s41, s31, 3"); e("s_lshl2_add_u32 s41, s41, s3"); e("s_lshl_b32 s41, s41, 12")
    e(f"s_mul_i32 s44, s35, {m1}"); e("s_lshl_b32 s44, s44, 27"); e("s_lshr_b32 s44, s44, 11")
    e("s_mov_b32 s38, s42"); e("s_lshl_b32 s40, s35, 22"); e("s_or_b32 s40, s40, s41"); e("s_mov_b32 s49, s44")
    e("s_waitcnt lgkmcnt(0)")
    if tbl:
        e("s_lshl_b32 s50, s2, 4"); e("s_load_dwordx4 s[80:83], s[26:27], s50"); e("s_waitcnt lgkmcnt(0)")
        e("s_mov_b32 s44, s80"); e("s_mov_b32 s49, s80")
    set_src(6, 40, 0)
    assert inf0 <= 7
    for p in range(nb0): issue(p)
    if mv: e("s_branch L_stream")
    stream_cut = len(L)
    lab("L_stream")
    e("s_mov_b32 s45, 0x1f0000"); e("v_mov_b32 v2, v36")
    c("score buffer addresses: v37 write / v38 read (one head), v39 both (four heads)")
    e("s_lshl_b32 s50, s3, 12"); e(f"s_add_u32 s95, s50, {L_S}")
    e("v_add_u32 v38, s95, v5"); e("v_add_u32 v37, v38, v4")
    e(f"s_add_u32 s95, s50, {L_SB}")
    e("v_and_b32 v39, 60, v0"); e("v_lshl_add_u32 v39, v39, 2, s95")
    c("constants while the first loads fly")
    e("v_and_b32 v6, 1, v0"); e("v_lshlrev_b32 v6, 4, v6"); e("v_mov_b32 v7, 0xffff"); e("v_lshlrev_b32 v6, v6, v7")
    e("v_and_b32 v7, 2, v0"); e("v_cmp_eq_u32 vcc, 0, v7")
    e(f"s_mov_b32 s48, {SC:#x}")
    e("v_mov_b32 v8, 0xff800000")
    e("v_cndmask_b32 v4, 0, v6, vcc")
    e("v_xor_b32 v5, v4, v6")
    e("v_mov_b32 v10, 0")
    e("v_mov_b32 v11, v8"); e("v_mov_b32 v13, 0")
    for r in range(40, 56): e(f"v_mov_b32 v{r}, 0")
    c("LDS address of the q operand: (g*32 + (l&3)*8)*2")
    e("v_and_b32 v6, 0xff, v2")
    e("v_bfe_u32 v7, v0, 2, 2")
    for s in range(4): e(f"v_cmp_eq_u32 s[{84+2*s}:{85+2*s}], {s}, v7")
    tag_consts()
    e(f"v_mov_b32 v14, {L_FLAG}"); e("v_mov_b32 v15, 1"); e("v_mov_b32 v90, 0"); e("v_mov_b32 v91, 0xffffff40")
    if one: e("v_mov_b32 v92, 64")
    e("s_mov_b32 s33, 0"); e("s_movk_i32 s34, -256")
    if hb >= 0: e("s_barrier")
    for p in range(nb0, 32):
        if p % 8 == 0 and p >= 32 - 8 * pt: pick_mask()
        if p >= 32 - 8 * pt and p >= inf0: wi(p)
        else:
            if p >= inf0: e(f"s_waitcnt vmcnt({inf0-1})")
            issue(p)
        if p == pq: e("ds_write_b32 v14, v15 offset:28")
    stamp(0)
    e(f"s_mov_b32 s50, {spin << 5}")
    lab("L_wqa")
    e("ds_read_b64 v[108:109], v14 offset:16"); e(f"ds_read_b128 v[104:107], v6 offset:{L_QA}")
    e("s_waitcnt lgkmcnt(0)")
    e("v_readfirstlane_b32 s51, v108"); e("v_readfirstlane_b32 s55, v109"); e("s_sub_u32 s50, s50, 1")
    e("s_cbranch_scc1 L_wqa_done")
    e("s_cmp_eq_u32 s51, 0"); e("s_cbranch_scc1 L_wqa")
    lab("L_wqa_done")
    for s in range(4):
        for k in range(4): e(f"v_cndmask_b32 v{16+4*s+k}, 0, v{104+k}, s[{84+2*s}:{85+2*s}]")
    stamp(1)

    def diag(t, d):
        e(f"v_mov_b32_dpp v{t}, v{d} quad_perm:[0,0,0,0] {DPP}")
        for k in range(1, 4):
            e(f"v_add_f32_dpp v{t}, v{d+k}, v{t} quad_perm:[{k},{k},{k},{k}] {DPP}")
    def xrow_max(v, t):
        e(f"v_mov_b32 v{t}, v{v}"); e("s_nop 1"); e(f"v_permlane16_swap_b32 v{v}, v{t}"); e("s_nop 1")
        e(f"v_max_f32 v{v}, v{v}, v{t}")
        e(f"v_mov_b32 v{t}, v{v}"); e("s_nop 1"); e(f"v_permlane32_swap_b32 v{v}, v{t}"); e("s_nop 1")
        e(f"v_max_f32 v{v}, v{v}, v{t}")
    def k_iter(gqa):
        for st in range(8):
            if st % 2 == 0: pick_mask()
            for j in range(4):
                r = RING + 4 * (4 * st + j)
                if gqa: e(f"v_mfma_f32_16x16x32_bf16 v[{56+4*j}:{59+4*j}], v[{r}:{r+3}], v[32:35], 0")
                else:   e(f"v_mfma_f32_16x16x32_bf16 v[56:59], v[{r}:{r+3}], v[{16+4*j}:{19+4*j}], {'v[56:59]' if j else '0'}")
                wi(4 * st + j)
            if gqa:
                for j in range(4): diag(72 + j, 56 + 4 * j)
                e(f"ds_write_b128 v1, v[72:75] offset:{256*st}")
                e("v_max3_f32 v11, v11, v72, v73"); e("v_max3_f32 v11, v11, v74, v75")
            else:
                e(f"s_nop {3 if pace else 5}")
                diag(72, 56)
                e(f"ds_write_b32 v1, v72 offset:{64*st}")
                e("v_max_f32 v8, v8, v72")
        e(f"v_add_u32 v1, {2048 if gqa else 512}, v1")
    def probs(sr, a, Mc, l):
        x = [f"v_fma_f32 v{sr+j}, v{sr+j}, s48, -v{Mc}" for j in range(4)]
        x += [f"v_exp_f32 v{sr+j}, v{sr+j}" for j in range(4)]
        x += [f"v_cvt_pk_bf16_f32 v{a+2*j+1}, v{sr+j}, v{sr+j}" for j in range(4)]
        for j in range(4): x += [f"v_and_b32 v{a+2*j}, v{a+2*j+1}, v4", f"v_and_b32 v{a+2*j+1}, v{a+2*j+1}, v5"]
        x += [f"v_add_f32 v{l}, v{l}, v{sr+j}" for j in range(4)]
        return x
    def pv_mfma(O, a, p, hf):
        r = RING + 4 * p
        e(f"v_mfma_f32_16x16x16_bf16 v[{O+4*hf}:{O+4*hf+3}], v[{a}:{a+1}], v[{r+2*hf}:{r+2*hf+1}], v[{O+4*hf}:{O+4*hf+3}]")
    def v_iter(gqa):
        O, Mc, l, stride = (48, 12, 13, 256) if gqa else (40, 9, 10, 64)
        for st in range(8):
            if st % 2 == 0: pick_mask()
            if st % 2 or not pace: e("s_waitcnt lgkmcnt(0)")
            nx = 76 + 4 * ((st + 1) % 2)
            e(f"ds_read_b128 v[{nx}:{nx+3}], v1 offset:{stride*(st+1)}")
            for x in probs(76 + 4 * (st % 2), 96, Mc, l): e(x)
            for j in range(4):
                pv_mfma(O, 96 + 2 * j, 4 * st + j, 0); pv_mfma(O, 96 + 2 * j, 4 * st + j, 1)
                wi(4 * st + j)
        e(f"v_add_u32 v1, {8*stride}, v1")

    for _ in range(pad): e("s_nop 0")
    c("---- the four tensors are read one after the other: K of A, K of B, V of B, V of A")
    e("s_mov_b32 s47, 8"); e("v_mov_b32 v1, v37")
    lab("L_km")
    e("s_cmp_lg_u32 s47, 1"); e("s_cbranch_scc1 L_km_go")
    c("issue side moves on to K of the B unit")
    BB = [int(z) for z in bb.split(".")]; TB = [q for q in range(16, 21) if q not in BB]
    def scat(dst, src, lo, bits, first=False):
        for k, q in enumerate(bits):
            t = dst if first and k == 0 else 51
            e(f"s_bfe_u32 s{t}, s{src}, {(1 << 16) | (lo + k):#x}"); e(f"s_lshl_b32 s{t}, s{t}, {q}")
            if t != dst: e(f"s_or_b32 s{dst}, s{dst}, s51")
    e("s_lshr_b32 s52, s31, 4"); e("s_lshl3_add_u32 s50, s52, s30")
    e("s_lshl_b32 s51, s50, 22"); e("s_or_b32 s41, s41, s51")
    if tbl: e("s_or_b32 s41, s41, s81")
    else: scat(41, 31, 2, BB)
    set_src(16, 41, 0)
    e(f"s_mul_i32 s50, s50, {m2}")
    if m3: e("s_bfe_u32 s51, s31, 0x20002"); e(f"s_mul_i32 s51, s51, {m3}"); e("s_add_u32 s50, s50, s51")
    if m4: e(f"s_mul_i32 s51, s52, {m4}"); e("s_add_u32 s50, s50, s51")
    scat(44, 50, 0, TB, True)
    e(f"s_mov_b32 s45, {sum(1 << q for q in TB):#x}")
    if tbl: e("s_mov_b32 s44, s82"); e("s_mov_b32 s45, s83")
    lab("L_km_go")
    k_iter(False)
    e("s_sub_u32 s47, s47, 1"); e("s_cmp_lg_u32 s47, 0"); e("s_cbranch_scc1 L_km")
    stamp(2)
    e(f"s_mov_b32 s50, {spin << 5}")
    lab("L_wqb")
    e("ds_read_b32 v7, v14"); e(f"ds_read_b128 v[32:35], v2 offset:{L_QB}")
    e("s_waitcnt lgkmcnt(0)")
    e("v_readfirstlane_b32 s51, v7"); e("s_sub_u32 s50, s50, 1")
    e("s_cbranch_scc1 L_wqb_done")
    e("s_cmp_eq_u32 s51, 0"); e("s_cbranch_scc1 L_wqb")
    lab("L_wqb_done")
    e("s_mov_b32 s47, 2"); e("v_mov_b32 v1, v39")
    lab("L_kg")
    e("s_cmp_lg_u32 s47, 1"); e("s_cbranch_scc1 L_kg_go")
    set_src(18, 41, 3)
    lab("L_kg_go")
    k_iter(True)
    e("s_sub_u32 s47, s47, 1"); e("s_cmp_lg_u32 s47, 0"); e("s_cbranch_scc1 L_kg")
    e("ds_read_b128 v[76:79], v39"); e("v_mov_b32 v1, v39")
    xrow_max(11, 89)
    e("v_mul_f32 v12, s48, v11")
    e("s_mov_b32 s47, 2")
    lab("L_vg")
    e("s_cmp_lg_u32 s47, 1"); e("s_cbranch_scc1 L_vg_go")
    set_src(8, 40, 3); e("s_mov_b32 s44, s49"); e("s_mov_b32 s45, 0x1f0000")
    lab("L_vg_go")
    v_iter(True)
    e("s_sub_u32 s47, s47, 1"); e("s_cmp_lg_u32 s47, 0"); e("s_cbranch_scc1 L_vg")
    c("hand the B partial of this wave to the agent through LDS")
    e(f"s_mul_i32 s50, s3, {RECB}"); e(f"s_add_u32 s50, s50, {L_RECB}")
    e("v_lshl_add_u32 v6, v0, 5, s50"); e("v_lshl_add_u32 v7, v0, 2, s50")
    e("ds_write_b128 v6, v[48:51]"); e("ds_write_b128 v6, v[52:55] offset:16")
    e("ds_write_b32 v7, v12 offset:2048"); e("ds_write_b32 v7, v13 offset:2304")
    e("ds_add_u32 v14, v15 offset:4")
    stamp(3)

    if jit & 8:
        e("s_add_u32 s50, s2, s3"); e("s_and_b32 s50, s50, 15"); e("s_cmp_lg_u32 s50, 9"); e("s_cbranch_scc1 L_j8x")
        for _ in range(20): e("s_sleep 127")
        lab("L_j8x")
    c("max over all keys of this wave")
    e("ds_read_b128 v[76:79], v38"); e("v_mov_b32 v1, v38")
    e(f"v_max_f32_dpp v8, v8, v8 row_ror:4 {DPP}"); e("s_nop 1")
    e(f"v_max_f32_dpp v8, v8, v8 row_ror:8 {DPP}")
    xrow_max(8, 89)
    e("v_mul_f32 v9, s48, v8")
    e("s_mov_b32 s47, 6")
    lab("L_vm")
    v_iter(False)
    e("s_sub_u32 s47, s47, 1"); e("s_cmp_lg_u32 s47, 0"); e("s_cbranch_scc1 L_vm")
    c("last 16 steps: the arithmetic catches up with the loads, so little is left when the last one lands")
    def v_step(st, pos=None, mid=None):
        if st not in (0, 4) or not pace: e("s_waitcnt lgkmcnt(0)")
        nx = 76 + 4 * ((st + 1) % 2)
        e(f"ds_read_b128 v[{nx}:{nx+3}], v1 offset:{64*(st+1)}")
        for x in probs(76 + 4 * (st % 2), 96, 9, 10): e(x)
        if mid is not None: wi(mid, True)
        if st >= 8: e(f"s_waitcnt vmcnt({pos - (4*(st-8) + 3)})")
        for j in range(4):
            pv_mfma(40, 96 + 2 * j, 4 * (st % 8) + j, 0); pv_mfma(40, 96 + 2 * j, 4 * (st % 8) + j, 1)
    for st in range(8):
        if st % 4 == 0: pick_mask()
        v_step(st, None, 2 * st - 1 if st else None)
        wi(2 * st, True)
    for k, st in enumerate(range(8, 12)):
        v_step(st, 15 + 2 * k, 15 + 2 * k)
        if k == 0: pick_mask()
        wi(16 + 2 * k, True)
    wi(23, True); pick_mask()
    if not pace: e("s_waitcnt lgkmcnt(0)")
    e(f"s_mul_i32 s50, s3, {RECA}"); e(f"s_add_u32 s50, s50, {L_RECA}")
    e("v_add_u32 v6, s50, v3"); e("v_lshl_add_u32 v7, v0, 2, s50")
    e("s_lshl_b32 s50, s3, 2"); e("v_mov_b32 v14, s50")
    for st in range(13, 16): e(f"ds_read_b128 v[{4+4*st}:{7+4*st}], v1 offset:{64*st}")
    e(f"ds_write_b32 v14, v9 offset:{L_MA}")
    for k, sr in enumerate((76, 56, 60, 64)):
        if k == 1: e("s_waitcnt lgkmcnt(0)")
        for x in probs(sr, 96 + 8 * k, 9, 10): e(x)
        wi(24 + k, True)
    e("ds_write_b32 v7, v10 offset:256")
    e("s_mov_b32 s40, s24"); e("s_mov_b32 s41, s25"); e("s_mov_b32 s42, 4096")
    for p in range(16, 32):
        if p < 20: wi(12 + p, True)
        if p == 19:
            stamp(4)
            e(f"s_add_u32 s36, s28, {wsoff<<20:#x}"); e("s_addc_u32 s37, s29, 0")
        e(f"s_waitcnt vmcnt({min(12 + p, 31) - p})")
        for hf in range(2): pv_mfma(40, 96 + 2 * (p - 16), p, hf)
    c("A partial of this wave -> LDS")
    e("s_nop 5")
    e("s_mov_b64 exec, 0xffff")
    for k in range(4): e(f"v_cvt_pk_bf16_f32 v{40+k}, v{40+2*k}, v{41+2*k}")
    e("ds_write_b128 v6, v[40:43]")
    e("s_mov_b64 exec, -1")
    e("s_waitcnt lgkmcnt(0)")
    stamp(5)
    e("s_barrier")
    stamp(0, 2); stamp(1, 2); stamp(2, 2); stamp(3, 2)
    e("s_cmp_lg_u32 s3, 0"); e("s_cbranch_scc1 L_red")
    c("wave 0 publishes (M, L) of the workgroup: lane = (w, row)")
    e("v_and_b32 v6, 12, v0"); e("v_and_b32 v7, 3, v0"); e("v_lshlrev_b32 v7, 6, v7")
    e(f"s_movk_i32 s50, {RECA//4}"); e("v_mad_u32_u24 v7, v6, s50, v7")
    e(f"ds_read_b32 v16, v6 offset:{L_MA}"); e(f"ds_read_b32 v17, v7 offset:{L_RECA+256}")
    e("s_and_b32 s51, s31, 3"); e("s_lshl2_add_u32 s50, s32, s51"); e("s_lshl_b32 s50, s50, 4")
    e("s_bfe_u32 s51, s2, 0x10005"); e(f"s_mul_i32 s51, s51, {MLS*mlr}"); e("s_add_u32 s50, s50, s51"); e(f"s_add_u32 s50, s50, {MLA:#x}")
    e(f"v_mul_u32_u24 v18, {MLS}, v0")
    e("v_mov_b32 v19, s55"); e("v_lshrrev_b32 v23, 24, v19")
    e("s_waitcnt lgkmcnt(0)")
    e(f"v_max_f32_dpp v20, v16, v16 row_ror:4 {DPP}"); e("s_nop 1")
    e(f"v_max_f32_dpp v20, v20, v20 row_ror:8 {DPP}")
    e("v_sub_f32 v16, v16, v20"); e("v_exp_f32 v16, v16")
    e("v_lshlrev_b32 v22, 8, v20")
    e("v_mul_f32 v21, v16, v17"); e("v_perm_b32 v20, v20, v19, s56"); e("v_perm_b32 v22, v22, v19, s58")
    for d in ("quad_perm:[1,0,3,2]", "quad_perm:[2,3,0,1]", "row_ror:4", "row_ror:8"):
        e(f"v_add_f32_dpp v21, v21, v21 {d} {DPP}")
        if d != "row_ror:8": e("s_nop 1")
    e("v_perm_b32 v21, v21, v19, s57")
    e(f"s_mov_b64 exec, {(1 << mlr) - 1:#x}")
    e("buffer_store_dwordx4 v[20:23], v18, s[36:39], s50 offen sc1")
    e("s_mov_b64 exec, -1")
    lab("L_red")
    e("s_cmp_ge_u32 s2, 64"); e("s_cbranch_scc1 L_sdone")
    c("reducers: b = (id>>4)&1, one 128-byte line of every contribution; lane = (row, granule)")
    e("v_lshrrev_b32 v6, 3, v0"); e("v_and_b32 v14, 7, v0")
    e("v_bfe_u32 v8, v0, 4, 1"); e("v_lshrrev_b32 v9, 5, v0"); e("v_lshl_add_u32 v8, v8, 1, v9")
    e("v_lshlrev_b32 v10, 3, v0")
    e("s_bfe_u32 s48, s2, 0x10004"); e("s_bfe_u32 s49, s2, 0x20002")
    e("s_lshl_b32 s44, s48, 11"); e("s_lshl_b32 s45, s49, 8"); e("s_add_u32 s44, s44, s45")
    e(f"s_lshl_b32 s54, s3, 7")
    e(f"s_mov_b32 s50, {rspin}")
    e("s_cmp_ge_u32 s2, 32"); e("s_cbranch_scc1 L_redb")
    c("branch A: wave = 8 heads x 4 splits; column = quarter*128 + half*64 + k*16 + (id&1)*8 + granule")
    e("v_and_b32 v11, 3, v0")
    e("v_lshlrev_b32 v7, 6, v6"); e("v_lshl_add_u32 v7, v11, 4, v7")
    e(f"s_mul_i32 s52, s2, {YAS}"); e("s_lshl_b32 s51, s3, 10"); e("s_add_u32 s52, s52, s51"); e(f"s_add_u32 s52, s52, {YA:#x}")
    for q in range(1, 4): e(f"s_add_u32 s{[0,53,62,63][q]}, s52, {4096*q}")
    e(f"s_and_b32 s51, s2, {mlr-1}"); e(f"s_mul_i32 s45, s48, {mlr}"); e("s_add_u32 s51, s51, s45"); e(f"s_mul_i32 s51, s51, {MLS}")
    e("s_lshl_b32 s45, s3, 9"); e("s_add_u32 s51, s51, s45"); e(f"s_add_u32 s51, s51, {MLA:#x}")
    e("v_lshl_add_u32 v8, v8, 3, v14"); e("v_lshl_add_u32 v8, v8, 2, s54")
    e("v_lshrrev_b32 v9, 2, v0"); e("v_lshlrev_b32 v9, 5, v9"); e("v_lshl_add_u32 v9, v11, 2, v9")
    e("s_and_b32 s45, s2, 2"); e("s_lshl_b32 s45, s45, 6"); e("s_add_u32 s44, s44, s45")
    e("s_and_b32 s45, s2, 1"); e("s_lshl4_add_u32 s44, s45, s44")
    if rw: e("s_barrier")
    if rd: e(f"s_sleep {rd}")
    def ra_loads():
        e("buffer_load_dwordx4 v[40:43], v7, s[36:39], s51 offen sc1")
        for q in range(4): e(f"buffer_load_dwordx4 v[{24+4*q}:{27+4*q}], v3, s[36:39], s{[52,53,62,63][q]} offen sc1")
    def ra_check(W):
        e("s_mov_b64 s[46:47], exec")
        e(f"s_waitcnt vmcnt({W+4})"); get_tag(16, 40, 0)
        e("v_perm_b32 v80, v40, v42, s57"); e("v_and_b32 v81, s94, v41")
        for q in range(4):
            e(f"s_waitcnt vmcnt({W+3-q})"); get_tag(17 + q, 24 + 4 * q, 0)
            for k in range(4): e(f"v_and_b32 v{64+4*q+k}, s94, v{24+4*q+k}")
        for q in range(5): e(f"v_cmpx_eq_u32 vcc, s55, v{16+q}")
    if pd:
        ra_loads(); ra_check(0)
        e("s_andn2_b64 exec, s[46:47], vcc"); e("s_cbranch_scc0 L_rdone")
        for _ in range(pn):
            ra_loads(); e(f"s_sleep {pd}")
    lab("L_rpoll")
    ra_loads(); ra_check(5 * pn if pd else 0)
    e("s_sub_u32 s50, s50, 1"); e("s_cbranch_scc1 L_rdone")
    if rsl:
        e("s_andn2_b64 exec, s[46:47], vcc"); e("s_cbranch_scc0 L_rdone"); e(f"s_sleep {rsl}"); e("s_branch L_rpoll")
    else:
        e("s_andn2_b64 exec, s[46:47], vcc"); e("s_cbranch_scc1 L_rpoll")
    lab("L_rdone")
    stamp(1, 2)
    if stamps >= 3:
        e(f"s_sub_u32 s72, {rspin}, s50"); e("s_mul_i32 s72, s72, 100"); e("s_add_u32 s72, s72, s60"); e("s_addc_u32 s73, s61, 0")
    e("s_mov_b64 exec, -1"); e("s_nop 1")
    e(f"v_max_f32_dpp v15, v80, v80 quad_perm:[1,0,3,2] {DPP}"); e("s_nop 1")
    e(f"v_max_f32_dpp v15, v15, v15 quad_perm:[2,3,0,1] {DPP}")
    e("v_sub_f32 v16, v80, v15"); e("v_exp_f32 v16, v16"); e("s_nop 0"); e("v_mul_f32 v15, v16, v81")
    e(f"v_mul_f32_dpp v56, v16, v64 quad_perm:[0,0,0,0] {DPP}"); e(f"v_mul_f32_dpp v57, v16, v65 quad_perm:[0,0,0,0] {DPP}")
    e(f"v_add_f32_dpp v15, v15, v15 quad_perm:[1,0,3,2] {DPP}")
    e(f"v_mul_f32_dpp v58, v16, v66 quad_perm:[0,0,0,0] {DPP}"); e(f"v_mul_f32_dpp v59, v16, v67 quad_perm:[0,0,0,0] {DPP}")
    e(f"v_add_f32_dpp v15, v15, v15 quad_perm:[2,3,0,1] {DPP}")
    e("v_rcp_f32 v15, v15")
    for q in range(1, 4):
        for k in range(4): e(f"v_fmac_f32_dpp v{56+k}, v16, v{64+4*q+k} quad_perm:[{q},{q},{q},{q}] {DPP}")
    for k in range(4): e(f"v_mul_f32 v{56+k}, v15, v{56+k}")
    lab("L_rsum")
    c("sum v[56:59] over lane bits 5,4,3: row r ends with component [0,2,1,3][r]")
    e("s_nop 0")
    e("v_permlane32_swap_b32 v56, v57"); e("v_permlane32_swap_b32 v58, v59")
    e("v_add_f32 v56, v56, v57"); e("v_add_f32 v58, v58, v59"); e("s_nop 1")
    e("v_permlane16_swap_b32 v56, v58")
    e("v_add_f32 v56, v56, v58"); e("s_nop 1")
    e(f"v_add_f32_dpp v56, v56, v56 row_ror:8 {DPP}")
    e(f"ds_write_b32 v8, v56 offset:{L_RED}")
    e("s_waitcnt lgkmcnt(0)")
    e("s_barrier")
    stamp(2, 2)
    e("s_cmp_lg_u32 s3, 0"); e("s_cbranch_scc1 L_sdone")
    e("s_mov_b64 exec, 0xffff")
    for w in range(4): e(f"ds_read_b64 v[{60+2*w}:{61+2*w}], v10 offset:{L_RED + w*128}")
    e("s_waitcnt lgkmcnt(2)")
    e("v_add_f32 v60, v60, v62"); e("v_add_f32 v61, v61, v63")
    e("s_waitcnt lgkmcnt(0)")
    e("v_add_f32 v64, v64, v66"); e("v_add_f32 v65, v65, v67")
    e("v_add_f32 v60, v60, v64"); e("v_add_f32 v61, v61, v65")
    e("v_cvt_pk_bf16_f32 v60, v60, v61")
    e("buffer_store_dword v60, v9, s[40:43], s44 offen")
    stamp(3, 2)
    c("workgroup 32 has seen data that depends on every workgroup, so all have read the old tag: leave the new one")
    e("s_cmp_lg_u32 s2, 32"); e("s_cbranch_scc1 L_sdone")
    e(f"s_mov_b32 s50, {EPOCH:#x}"); e("v_mov_b32 v61, s55")
    e("v_mul_u32_u24 v62, 0x1100, v0")
    e("s_mov_b64 exec, 0xff"); e("buffer_store_dword v61, v62, s[36:39], s50 offen sc1")
    lab("L_sdone")
    if diagw:
        e(f"s_mov_b32 s51, {diagw*100}")
        if amp:
            e("s_waitcnt vmcnt(0)"); e("s_memrealtime s[62:63]"); e("s_waitcnt lgkmcnt(0)")
            e(f"s_sub_u32 s50, s{62 if amps < 0 else 64 + 2*amps}, s60"); e(f"s_sub_i32 s50, s50, {ampb*100}"); e(f"s_mul_i32 s50, s50, {amp}"); e("s_add_i32 s51, s51, s50")
        lab("L_diag")
        e("s_memrealtime s[62:63]"); e("s_waitcnt lgkmcnt(0)")
        e("s_sub_u32 s62, s62, s60"); e("s_cmp_lt_i32 s62, s51"); e("s_cbranch_scc1 L_diag")
    if stamps:
        e("s_cmp_lg_u32 s3, 0"); e("s_cbranch_scc1 L_end")
        e("s_waitcnt vmcnt(0)")
        e("s_memrealtime s[62:63]"); e("s_getreg_b32 s50, hwreg(HW_REG_XCC_ID)"); e("s_waitcnt lgkmcnt(0)")
        e("s_mov_b64 exec, 1"); e("s_mov_b32 s36, s28"); e("s_mov_b32 s37, s29")
        for k in range(4): e(f"v_mov_b32 v{16+k}, s{60+k}")
        e("s_lshl_b32 s51, s2, 4"); e("buffer_store_dwordx4 v[16:19], off, s[36:39], s51")
        e("v_mov_b32 v20, s50"); e("s_lshl_b32 s51, s2, 2"); e("s_add_u32 s51, s51, 0x10000")
        e("buffer_store_dword v20, off, s[36:39], s51")
        for k in range(12): e(f"v_mov_b32 v{24+k}, s{64+k}")
        e("s_lshl_b32 s51, s2, 7"); e("s_add_u32 s51, s51, 0x20000")
        for k in range(3): e(f"buffer_store_dwordx4 v[{24+4*k}:{27+4*k}], off, s[36:39], s51 offset:{16*k}")
    e("s_endpgm")
    lab("L_redb")
    c("branch B: wave = 8 heads; column = 512 + quarter*128 + ((id&1)*8 + granule)*8 + half*4 + k")
    e(f"s_mul_i32 s52, s2, {YBS}"); e("s_lshl_b32 s51, s3, 10"); e("s_add_u32 s52, s52, s51"); e(f"s_add_u32 s52, s52, {YB - 32*YBS:#x}")
    e("v_lshl_add_u32 v8, v14, 2, v8"); e("v_lshl_add_u32 v8, v8, 2, s54")
    e("v_lshrrev_b32 v9, 1, v0"); e("v_lshlrev_b32 v9, 4, v9"); e("v_and_b32 v11, 1, v0"); e("v_lshl_add_u32 v9, v11, 2, v9")
    e("s_and_b32 s45, s2, 1"); e("s_lshl_b32 s45, s45, 7"); e("s_add_u32 s44, s44, s45")
    e("s_and_b32 s45, s2, 2"); e("s_lshl2_add_u32 s44, s45, s44"); e("s_add_u32 s44, s44, 1024")
    if rwb: e("s_barrier")
    if rdb: e(f"s_sleep {rdb}")
    lab("L_bpoll")
    e("buffer_load_dwordx4 v[56:59], v3, s[36:39], s52 offen sc1")
    e("s_waitcnt vmcnt(0)"); get_tag(16, 56)
    e("v_cmp_ne_u32 vcc, s55, v16")
    e("s_sub_u32 s50, s50, 1"); e("s_cbranch_scc1 L_bdone")
    e("s_and_b64 exec, exec, vcc"); e("s_cbranch_scc1 L_bpoll")
    lab("L_bdone")
    stamp(1, 2)
    e("s_mov_b64 exec, -1")
    e("s_branch L_rsum")

    def code_addr():
        c("helper 3 reads a 1/32 slice of this kernel's code now and then, so that it waits in L2 when first executed")
        e("s_getpc_b64 s[52:53]")
        n = u(); lab(f"L_pc{n}")
        e(f"s_sub_u32 s52, s52, L_pc{n}-{NAME}_kernel"); e("s_subb_u32 s53, s53, 0")
        e("s_lshl_b32 s50, s31, 10"); e("v_lshl_add_u32 v42, v0, 4, s50")
        e(f"s_mov_b32 s50, L_last-{NAME}_kernel-16"); e("v_min_u32 v42, s50, v42")
        e("v_mov_b32 v43, s53"); e("v_add_co_u32 v42, vcc, s52, v42"); e("s_nop 1"); e("v_addc_co_u32 v43, vcc, 0, v43, vcc")
    helper_start = len(L)
    lab("L_helper")
    c("every helper first sends out its share of the weights")
    e("s_sub_u32 s33, s3, 4")
    e("s_and_b32 s54, s31, 7"); e("s_and_b32 s49, s31, 3")
    e("v_and_b32 v1, 15, v0")
    e("v_lshrrev_b32 v2, 4, v0")
    e("v_lshlrev_b32 v33, 10, v2"); e("v_lshl_add_u32 v33, v1, 4, v33")
    e("s_cmp_eq_u32 s33, 0"); e("s_cbranch_scc1 L_h0a")
    e("s_lshl_b32 s62, s32, 17")
    e("s_cmp_eq_u32 s33, 1"); e("s_cbranch_scc1 L_h1a")
    if cw and cw0 == 2:
        e("s_cmp_eq_u32 s33, 3"); e("s_cbranch_scc1 L_h3a")
    e(f"v_mov_b32 v41, {L_FLAG}")
    for k in range(4): e(f"v_mov_b32 v{28+k}, 0")
    e("ds_write_b128 v41, v[28:31]"); e("ds_write_b128 v41, v[28:31] offset:16")
    e("s_lshl_b32 s63, s49, 3"); e("s_movk_i32 s36, 128")
    e("s_and_b32 s50, s54, 4"); e("s_add_u32 s50, s50, s33"); e("s_cmp_lg_u32 s50, 2")
    e("s_waitcnt lgkmcnt(0)")
    e("s_mov_b32 s40, s12"); e("s_mov_b32 s41, s13")
    hmark(0)
    e("s_cbranch_scc1 L_hz")
    def wo_piece():
        e("s_lshl_b32 s37, s63, 10"); e(f"s_add_u32 m0, s37, {L_WO}")
        e("s_lshl_b32 s50, s63, 12"); e("s_add_u32 s50, s50, s62")
        for k in range(4):
            e(f"buffer_load_dwordx4 v33, s[40:43], s50 offen {wpol} lds")
            if k < 3: e("s_add_u32 m0, m0, 0x8000"); e("s_addk_i32 s50, 256")
        e("s_add_u32 s63, s63, 1"); e("s_and_b32 s63, s63, 31")
        e("s_sub_u32 s36, s36, 4")
    c("wo_A: piece = four rows, one load per column quarter; helper 2 of four workgroups fetches a quarter (into L2 too)")
    lab("L_pa")
    wo_piece()
    e("s_cmp_gt_u32 s36, 96"); e("s_cbranch_scc1 L_pa")
    e("s_branch L_hz")
    lab("L_h1a")
    c("wo_B slice (helper 1 of four workgroups per head): slot s holds row h*128 + 4s + g, columns (j&3)*128..")
    e("s_lshl_b32 s50, s49, 8"); e("s_add_u32 s50, s50, s62")
    e("s_cmp_lt_u32 s54, 4")
    e("s_waitcnt lgkmcnt(0)")
    e("s_mov_b32 s40, s22"); e("s_mov_b32 s41, s23")
    hmark(0)
    e("s_cbranch_scc1 L_hz")
    for s_ in range(32):
        e(f"buffer_load_dwordx4 v[{64+4*s_}:{67+4*s_}], v33, s[40:43], s50 offen nt")
        if s_ < 31: e("s_addk_i32 s50, 0x1000")
    if cw and cw0 == 2:
        e("s_branch L_hz")
        lab("L_h3a")
        code_addr()
        e("global_load_dwordx4 v[44:47], v[42:43], off")
        e("s_waitcnt lgkmcnt(0)")
        e("s_mov_b32 s40, s12"); e("s_mov_b32 s41, s13")
    lab("L_hz")
    hmark(1)
    e("s_barrier")
    e("s_branch L_hc")
    lab("L_h0a")
    e("v_lshlrev_b32 v3, 18, v2"); e("v_lshl_add_u32 v3, v1, 4, v3")
    e("v_and_b32 v35, 8, v0"); e("v_lshlrev_b32 v35, 7, v35"); e("v_lshl_add_u32 v35, v2, 6, v35")
    e("s_lshl_b32 s50, s32, 8"); e("s_lshl_b32 s51, s49, 20"); e("s_add_u32 s50, s50, s51"); e("s_lshl_b32 s51, s49, 8")
    e("s_movk_i32 s38, 2048")
    e("s_cmp_lt_u32 s54, 4")
    e("s_waitcnt lgkmcnt(0)")
    e("s_cselect_b32 s36, s4, s14"); e("s_cselect_b32 s37, s5, s15"); e("s_cselect_b32 s40, s10, s20"); e("s_cselect_b32 s41, s11, s21")
    hmark(0)
    c("helper 0: 128 of the 512 rows of the q projection of head h (branch A for j < 4, else branch B)")
    for k in range(4): e(f"buffer_load_dwordx4 v[{8+4*k}:{11+4*k}], v35, s[36:39], s51 offen offset:{16*k}")
    for t in range(32):
        e(f"buffer_load_dwordx4 v[{64+4*t}:{67+4*t}], v3, s[40:43], s50 offen nt")
        if t < 31: e("s_addk_i32 s50, 0x2000")
    hmark(1)
    e(f"s_add_u32 s52, s28, {(wsoff<<20) + EPOCH:#x}"); e("s_addc_u32 s53, s29, 0")
    for k in range(8): e(f"s_load_dword s{[55,84,85,90,91,92,93,95][k]}, s[52:53], {0x1100*k:#x}")
    lab("L_hc")
    e(f"v_mov_b32 v41, {L_FLAG}"); e("v_bfe_u32 v34, v0, 3, 1")
    c("diagonal masks m_i: e=l&7 ; (e>>1==i) ? half(e&1) : 0")
    e("v_and_b32 v24, 1, v0"); e("v_lshlrev_b32 v24, 4, v24"); e("v_mov_b32 v25, 0xffff"); e("v_lshlrev_b32 v24, v24, v25")
    e("v_bfe_u32 v25, v0, 1, 2")
    for i in range(4):
        e(f"v_cmp_eq_u32 vcc, {i}, v25"); e("s_nop 1"); e(f"v_cndmask_b32 v{4+i}, 0, v24, vcc")
    e("v_lshlrev_b32 v40, 4, v0"); e("v_mov_b32 v60, 0")
    e(f"s_add_u32 s44, s28, {wsoff<<20:#x}"); e("s_addc_u32 s45, s29, 0"); e("s_mov_b32 s46, s42"); e("s_mov_b32 s47, s43")
    tag_consts()
    def lds_wait(off, val, sl=16):
        n = u()
        e(f"s_mov_b32 s50, {(spin << 6) // (sl + 2)}")
        lab(f"L_p{n}")
        e(f"ds_read_b32 v24, v41 offset:{off}"); e("s_waitcnt lgkmcnt(0)")
        e("v_readfirstlane_b32 s51, v24"); e("s_sub_u32 s50, s50, 1"); e(f"s_cbranch_scc1 L_pd{n}")
        e(f"s_cmp_ge_u32 s51, {val}"); e(f"s_cbranch_scc1 L_pd{n}")
        e(f"s_sleep {sl}"); e(f"s_branch L_p{n}")
        lab(f"L_pd{n}")
    e("s_cmp_lg_u32 s33, 0"); e("s_cbranch_scc1 L_hb")
    e("s_waitcnt lgkmcnt(0)")
    c("new tag = old tag + odd constant (every byte changes); copies that disagree scramble it")
    e("s_add_u32 s51, s55, 0x04030201")
    for k in range(1, 8):
        r = [55,84,85,90,91,92,93,95][k]
        e(f"s_sub_u32 s{r}, s{r}, s55"); e(f"s_mul_i32 s{r}, s{r}, {(0x9E3779B1 * (2*k+1) ** 3) & 0xffffffff | 1:#x}"); e(f"s_add_u32 s51, s51, s{r}")
    e("s_mov_b32 s55, s51"); e("v_mov_b32 v63, s55"); e("v_mov_b32 v62, 1")
    def rows_mfma(waits):
        e("s_mov_b32 s52, 0x01000100"); e("s_mov_b32 s53, 0x03020302")
        if waits: e("s_waitcnt vmcnt(32)")
        for s_ in range(32):
            e(f"v_perm_b32 v32, v{8 + s_//2}, v{8 + s_//2}, s{52 + s_%2}")
            for i in range(4): e(f"v_and_b32 v{24+i}, v32, v{4+i}")
            if waits: e(f"s_waitcnt vmcnt({31-s_})"); e("s_nop 0")
            else: e("s_nop 1")
            e(f"v_mfma_f32_16x16x32_bf16 v[56:59], v[24:27], v[{64+4*s_}:{67+4*s_}], {'v[56:59]' if s_ else '0'}")
            if waits and s_ == hb: e("s_barrier")
    rows_mfma(True)
    e("s_lshl_b32 s52, s32, 13"); e(f"s_add_u32 s52, s52, {QP:#x}")
    e("s_lshl_b32 s51, s54, 10"); e("s_add_u32 s51, s51, s52")
    e("s_nop 3")
    put_tag(56, 63)
    e("buffer_store_dwordx4 v[56:59], v40, s[44:47], s51 offen sc1")
    def poll_begin(g=None):
        n = u(); e(f"s_mov_b32 s79, {gspin if g is None else g}"); lab(f"L_g{n}"); return n
    def poll_end(n, sl):
        e("s_not_b64 s[80:81], vcc"); e("s_mov_b64 exec, -1"); e(f"s_cbranch_scc0 L_gd{n}")
        e("s_sub_u32 s79, s79, 1"); e(f"s_cbranch_scc1 L_gd{n}")
        if sl: e(f"s_sleep {sl}")
        e(f"s_branch L_g{n}")
        lab(f"L_gd{n}")
    if stamps: e("s_memrealtime s[86:87]")
    c("helper 0 adds up the four branch-A slices for this workgroup's batch")
    e("v_and_b32 v42, 31, v0"); e("v_lshlrev_b32 v42, 4, v42"); e("v_lshrrev_b32 v24, 5, v0"); e("v_lshl_add_u32 v42, v24, 10, v42")
    e("v_lshlrev_b32 v43, 4, v1"); e("v_lshl_add_u32 v43, v24, 2, v43"); e("v_and_b32 v24, 1, v2"); e("v_lshl_add_u32 v43, v24, 3, v43")
    e("s_and_b32 s51, s2, 32"); e("s_lshl4_add_u32 s52, s51, s52")
    e("s_waitcnt vmcnt(0)")
    if stamps: e("s_memrealtime s[88:89]")
    lds_wait(28, 1, 2)
    n = poll_begin(qspin)
    for t in range(2): e(f"buffer_load_dwordx4 v[{8+4*t}:{11+4*t}], v42, s[44:47], s52 offen offset:{2048*t} sc1")
    for t in range(2):
        e(f"s_waitcnt vmcnt({1-t})"); get_tag(24 + t, 8 + 4 * t)
    for t in range(2): e(f"v_cmpx_eq_u32 vcc, s55, v{24+t}")
    poll_end(n, qslp)
    for k in range(4): e(f"v_add_f32 v{8+k}, v{8+k}, v{12+k}")
    e("s_nop 0")
    e("v_permlane32_swap_b32 v8, v10"); e("v_permlane32_swap_b32 v9, v11")
    e("v_add_f32 v8, v8, v10"); e("v_add_f32 v9, v9, v11")
    e("v_cvt_pk_bf16_f32 v8, v8, v9")
    e(f"ds_write_b32 v43, v8 offset:{L_QA}")
    e("ds_write_b64 v41, v[62:63] offset:16")
    if stamps: e("s_memrealtime s[82:83]")
    hdump(10)
    e("s_branch L_htiles")
    if mv:
        blk = L[helper_start:]; del L[helper_start:]; L[stream_cut:stream_cut] = blk
    lab("L_hb")
    e("s_cmp_eq_u32 s33, 2"); e("s_cbranch_scc1 L_balance")
    def get_launch_tag():
        lds_wait(16, 1, 4)
        e("ds_read_b32 v63, v41 offset:20"); e("s_waitcnt lgkmcnt(0)")
        e("v_readfirstlane_b32 s55, v63")
    e("s_cmp_eq_u32 s33, 1"); e("s_cbranch_scc1 L_agent")
    if cw:
        code_addr()
        if cw0 == 1: e("global_load_dwordx4 v[44:47], v[42:43], off")
    get_launch_tag()
    def wo_tiles():
        e("s_lshl_b32 s50, s33, 15"); e(f"s_add_u32 s50, s50, {L_WO}")
        e("v_lshrrev_b32 v33, 2, v1"); e("v_lshl_add_u32 v33, v2, 3, v33"); e("v_lshlrev_b32 v33, 8, v33")
        e("v_and_b32 v24, 3, v0"); e("v_lshl_add_u32 v33, v24, 3, v33"); e("v_add_u32 v33, s50, v33")
        for nb in range(8):
            for kb in range(4):
                r = 128 + 4 * (nb * 4 + kb)
                for hh in range(2):
                    e(f"ds_read_b64_tr_b16 v[{r+2*hh}:{r+2*hh+1}], v33 offset:{kb*8192 + hh*1024 + nb*32}")
            e("s_waitcnt lgkmcnt(0)")
    e("s_branch L_htiles")

    lab("L_agent")
    hdump(12)
    get_launch_tag()
    c("job 1: add up line j of the slices of head h")
    e("s_lshl_b32 s52, s32, 13"); e("s_lshl_b32 s51, s54, 7"); e("s_add_u32 s52, s52, s51"); e(f"s_add_u32 s52, s52, {QP + 4096:#x}")
    e("v_bfe_u32 v42, v0, 3, 2"); e("v_lshlrev_b32 v42, 10, v42"); e("v_and_b32 v24, 7, v0"); e("v_lshl_add_u32 v42, v24, 4, v42")
    if T1: lds_wait(8, 4 * 256 * T1 - 768 + 256 * pt)
    n = poll_begin()
    e("s_mov_b32 exec_hi, 0")
    e("buffer_load_dwordx4 v[8:11], v42, s[44:47], s52 offen sc1")
    e("s_waitcnt vmcnt(0)")
    get_tag(16, 8); e("v_cmp_eq_u32 vcc, s55, v16")
    e("s_nop 0"); e("s_mov_b32 vcc_hi, vcc_lo")
    poll_end(n, slp)
    for k in range(4): e(f"v_add_f32_dpp v{8+k}, v{8+k}, v{8+k} row_ror:8 {DPP}")
    for sw in (16,):
        for k in range(4): e(f"v_mov_b32 v{12+k}, v{8+k}")
        e("s_nop 0")
        for k in range(4): e(f"v_permlane{sw}_swap_b32 v{8+k}, v{12+k}")
        for k in range(4): e(f"v_add_f32 v{8+k}, v{8+k}, v{12+k}")
    put_tag(8, 63)
    e("s_lshl3_add_u32 s50, s32, s54"); e("s_lshl_b32 s50, s50, 7"); e(f"s_add_u32 s50, s50, {QB:#x}")
    e("s_mov_b64 exec, 0xff"); e("buffer_store_dwordx4 v[8:11], v40, s[44:47], s50 offen sc1"); e("s_mov_b64 exec, -1")
    c("job 2: q of the four heads of this workgroup's B unit -> LDS; lane = (head&1, half, c)")
    e("v_and_b32 v42, 31, v0"); e("v_lshlrev_b32 v42, 4, v42"); e("v_lshrrev_b32 v24, 5, v0"); e("v_lshl_add_u32 v42, v24, 10, v42")
    e("v_lshlrev_b32 v43, 4, v1"); e("v_lshl_add_u32 v43, v24, 8, v43"); e("v_and_b32 v24, 1, v2"); e("v_lshl_add_u32 v43, v24, 3, v43")
    e("s_lshl_b32 s52, s30, 12"); e("s_lshr_b32 s51, s31, 4"); e("s_lshl_b32 s51, s51, 9"); e("s_add_u32 s52, s52, s51")
    e(f"s_add_u32 s52, s52, {QB:#x}")
    lds_wait(8, 4 * 256 * T2 - 768 + 256 * pt)
    n = poll_begin()
    e("buffer_load_dwordx4 v[8:11], v42, s[44:47], s52 offen sc1")
    e("buffer_load_dwordx4 v[12:15], v42, s[44:47], s52 offen offset:2048 sc1")
    e("s_waitcnt vmcnt(0)")
    get_tag(16, 8); get_tag(17, 12)
    e("v_cmpx_eq_u32 vcc, s55, v16"); e("v_cmpx_eq_u32 vcc, s55, v17")
    poll_end(n, slp)
    for q in range(4): e(f"v_cvt_pk_bf16_f32 v{16+q}, v{8+2*q}, v{9+2*q}")
    e(f"ds_write_b64 v43, v[16:17] offset:{L_QB}"); e(f"ds_write_b64 v43, v[18:19] offset:{L_QB+512}")
    lds_wait(24, 2)
    e("v_mov_b32 v25, 1")
    e("ds_write_b32 v41, v25")
    if jit & 16:
        e("s_and_b32 s50, s2, 3"); e("s_cmp_lg_u32 s50, 1"); e("s_cbranch_scc1 L_j16x")
        for _ in range(30): e("s_sleep 127")
        lab("L_j16x")
    c("job 3: merge the four waves' B partials, publish (outputs first, then the tagged max/sum line)")
    lds_wait(4, 256)
    e("v_lshlrev_b32 v42, 4, v2")
    e("v_lshlrev_b32 v43, 5, v0")
    for w in range(4): e(f"ds_read_b32 v{8+w}, v42 offset:{L_RECB + w*RECB + 2048}")
    e("s_waitcnt lgkmcnt(0)")
    for w in range(4):
        for a in range(4): e(f"ds_read_b32 v{12+4*w+a}, v42 offset:{L_RECB + w*RECB + 2304 + 64*a}")
        e("s_waitcnt lgkmcnt(0)")
    e("v_max3_f32 v44, v8, v9, v10"); e("v_max_f32 v44, v44, v11")
    for w in range(4): e(f"v_sub_f32 v{8+w}, v{8+w}, v44")
    for w in range(4): e(f"v_exp_f32 v{8+w}, v{8+w}")
    e("v_mov_b32 v45, 0"); e("v_lshlrev_b32 v46, 8, v44"); e("v_mov_b32 v47, 0")
    for w in range(4):
        for a in range(4): e(f"v_fmac_f32 v45, v{8+w}, v{12+4*w+a}")
    put_tag(44, 63)
    for k in range(8): e(f"v_mov_b32 v{48+k}, 0")
    for w in range(4):
        e(f"ds_read_b128 v[12:15], v43 offset:{L_RECB + w*RECB}")
        e(f"ds_read_b128 v[16:19], v43 offset:{L_RECB + w*RECB + 16}")
        e("s_waitcnt lgkmcnt(0)")
        for k in range(8): e(f"v_fmac_f32 v{48+k}, v{8+w}, v{12+k}")
    for k in range(4): e(f"v_cvt_pk_bf16_f32 v{48+k}, v{48+2*k}, v{49+2*k}")
    e("s_lshr_b32 s52, s31, 4"); e("s_lshl3_add_u32 s52, s52, s30")
    e("s_and_b32 s51, s31, 15"); e("s_lshl4_add_u32 s52, s52, s51")
    e("s_lshl_b32 s50, s52, 10"); e(f"s_add_u32 s50, s50, {PBO:#x}")
    e("buffer_store_dwordx4 v[48:51], v40, s[44:47], s50 offen sc1")
    e("s_lshl_b32 s50, s52, 7"); e(f"s_add_u32 s50, s50, {PBML:#x}")
    e("v_lshlrev_b32 v42, 5, v2"); e("v_lshl_add_u32 v42, v1, 4, v42")
    e("s_waitcnt vmcnt(0)")
    e("s_mov_b32 exec_lo, 0x00030003"); e("s_mov_b32 exec_hi, 0x00030003")
    e("buffer_store_dwordx4 v[44:47], v42, s[44:47], s50 offen sc1")
    e("s_mov_b64 exec, -1")
    e("s_cmp_lt_u32 s54, 4"); e("s_cbranch_scc1 L_htiles")
    c("job 4: finish head h (both batches), multiply by the wo slice")
    e("v_lshrrev_b32 v42, 5, v0")
    e("v_lshlrev_b32 v43, 14, v42"); e("v_lshl_add_u32 v43, v1, 7, v43")
    e("v_and_b32 v47, 1, v2")
    e("v_lshlrev_b32 v35, 17, v42"); e("v_lshl_add_u32 v35, v47, 10, v35"); e("v_lshl_add_u32 v35, v1, 4, v35")
    e("v_lshl_add_u32 v33, v42, 5, v47"); e("v_lshlrev_b32 v33, 2, v33")
    e("s_lshr_b32 s51, s31, 3")
    e("s_lshl_b32 s52, s30, 11"); e("s_lshl_b32 s53, s51, 5"); e("s_add_u32 s52, s52, s53"); e(f"s_add_u32 s52, s52, {PBML:#x}")
    e("s_lshl_b32 s53, s30, 14"); e("s_lshl_b32 s51, s51, 8"); e("s_add_u32 s53, s53, s51"); e(f"s_add_u32 s53, s53, {PBO:#x}")
    lds_wait(8, 4 * 256 * (NA1 + 4 + T4) - 768 + 256 * pt)
    n = poll_begin()
    e("buffer_load_dwordx4 v[8:11], v43, s[44:47], s52 offen sc1")
    e("s_waitcnt vmcnt(0)")
    get_tag(16, 8, 2); e("v_perm_b32 v8, v8, v10, s57"); e("v_cmp_eq_u32 vcc, s55, v16")
    poll_end(n, slp)
    for t in range(8):
        e(f"buffer_load_dwordx4 v[{192+4*t}:{195+4*t}], v35, s[44:47], s53 offen offset:{2048*(t%2)} sc1")
        if t % 2 and t < 7: e("s_addk_i32 s53, 0x1000")
    e(f"v_max_f32_dpp v12, v8, v8 quad_perm:[1,0,3,2] {DPP}"); e("s_nop 1")
    for d in ("quad_perm:[2,3,0,1]", "row_ror:4", "row_ror:8"):
        e(f"v_max_f32_dpp v12, v12, v12 {d} {DPP}"); e("s_nop 1")
    e("v_sub_f32 v8, v8, v12"); e("v_exp_f32 v8, v8"); e("s_nop 0"); e("v_mul_f32 v9, v8, v9"); e("s_nop 1")
    for d in ("quad_perm:[1,0,3,2]", "quad_perm:[2,3,0,1]", "row_ror:4", "row_ror:8"):
        e(f"v_add_f32_dpp v9, v9, v9 {d} {DPP}"); e("s_nop 1")
    e("v_rcp_f32 v9, v9"); e("s_nop 0"); e("v_mul_f32 v8, v8, v9")
    for t in range(8): e(f"ds_bpermute_b32 v{48+t}, v33, v8 offset:{8*t}")
    for k in range(8): e(f"v_mov_b32 v{16+k}, 0")
    e("s_waitcnt vmcnt(0) lgkmcnt(0)")
    for t in range(8):
        for k in range(4):
            e(f"v_lshlrev_b32 v24, 16, v{192+4*t+k}"); e(f"v_and_b32 v25, 0xffff0000, v{192+4*t+k}")
            e(f"v_fmac_f32 v{16+2*k}, v{48+t}, v24"); e(f"v_fmac_f32 v{17+2*k}, v{48+t}, v25")
    e("s_nop 1")
    for k in range(4): e(f"v_permlane16_swap_b32 v{16+k}, v{20+k}")
    for k in range(4): e(f"v_add_f32 v{16+k}, v{16+k}, v{20+k}")
    e("v_cvt_pk_bf16_f32 v16, v16, v17"); e("v_cvt_pk_bf16_f32 v17, v18, v19")
    e("v_lshl_add_u32 v46, v1, 1, v47")
    e("v_lshlrev_b32 v46, 1, v46"); e("v_lshl_add_u32 v46, v42, 8, v46")
    for k in range(4): e(f"ds_write_b16{'_d16_hi' if k%2 else ''} v46, v{16+k//2} offset:{L_SCR + 64*k}")
    e("v_lshlrev_b32 v46, 8, v34"); e("v_lshl_add_u32 v46, v2, 6, v46")
    e("s_waitcnt lgkmcnt(0)")
    for k in range(4): e(f"ds_read_b128 v[{8+4*k}:{11+4*k}], v46 offset:{L_SCR + 16*k}")
    e("s_waitcnt lgkmcnt(0)")
    rows_mfma(False)
    c("line (b, cq*4 + ((l>>3)&3)) of head h")
    e("s_lshl_b32 s52, s32, 7"); e("s_and_b32 s51, s54, 3"); e(f"s_mul_i32 s51, s51, {4*YBS}")
    e("s_add_u32 s52, s52, s51"); e(f"s_add_u32 s52, s52, {YB:#x}")
    e("v_bfe_u32 v60, v0, 3, 2"); e("v_lshl_add_u32 v60, v42, 4, v60"); e(f"v_mul_u32_u24 v60, {YBS}, v60")
    e("v_and_b32 v24, 7, v0"); e("v_lshl_add_u32 v60, v24, 4, v60")
    put_tag(56, 63)
    if YBT >= 0:
        if YBT: lds_wait(8, 4 * 256 * YBT - 768 + 256 * pt)
        e("buffer_store_dwordx4 v[56:59], v60, s[44:47], s52 offen sc1")

    lab("L_htiles")
    lds_wait(24, 1, 32)
    wo_tiles()
    if cw:
        e("s_cmp_lg_u32 s33, 3"); e("s_cbranch_scc1 L_hfinal")
        for tick in [int(z) for z in cw.split(".")]:
            lds_wait(8, 256 * (tick + pt))
            e("global_load_dwordx4 v[44:47], v[42:43], off")
    lab("L_hfinal")
    e("v_and_b32 v8, 3, v0"); e(f"v_mul_u32_u24 v8, {RECA}, v8"); e("v_lshl_add_u32 v8, v2, 4, v8"); e("v_mov_b32 v9, 0")
    e("s_and_b32 s50, s31, 3"); e("s_lshl_b32 s50, s50, 5"); e("s_add_u32 s50, s50, s32"); e("s_lshl_b32 s50, s50, 7")
    e("s_bfe_u32 s51, s2, 0x10005"); e("s_lshl2_add_u32 s51, s51, s33"); e(f"s_mul_i32 s51, s51, {4*YAS}")
    e("s_add_u32 s50, s50, s51"); e(f"s_add_u32 s50, s50, {YA:#x}"); e(f"s_add_u32 s51, s50, {2*YAS}")
    e(f"v_mul_u32_u24 v10, {YAS}, v34"); e("v_and_b32 v11, 7, v0"); e("v_lshl_add_u32 v10, v11, 4, v10")
    e("v_lshl_add_u32 v10, v2, 28, v10")
    e("s_and_b32 s48, s54, 4"); e("s_add_u32 s48, s48, s33")
    if rh:
        c("helper 0 is here early: it runs the block once with an empty store range, which loads the instruction cache")
        e("s_cmp_lg_u32 s33, 0"); e("s_cselect_b32 s46, s46, 0"); e("s_cbranch_scc0 L_hf1")
        lab("L_hf0")
    e("s_waitcnt vmcnt(0) lgkmcnt(0)")
    e("s_barrier")
    if rh: lab("L_hf1")
    if stamps >= 2: e("s_memrealtime s[86:87]"); e("s_waitcnt lgkmcnt(0)")
    for kb in range(4): e(f"ds_read_b128 v[{16+4*kb}:{19+4*kb}], v8 offset:{L_RECA + kb*64}")
    e(f"ds_read_b128 v[12:15], v9 offset:{L_MA}")
    if YBT < 0:
        e("s_cmp_lg_u32 s48, 5"); e("s_cbranch_scc1 L_hf2")
        e("buffer_store_dwordx4 v[56:59], v60, s[44:47], s52 offen sc1")
        lab("L_hf2")
    def tile(nb, kb):
        d = 64 + 4 * nb; r = 128 + 4 * (nb * 4 + kb)
        e(f"v_mfma_f32_16x16x32_bf16 v[{d}:{d+3}], v[{16+4*kb}:{19+4*kb}], v[{r}:{r+3}], {f'v[{d}:{d+3}]' if kb else '0'}")
    fill = []
    fill += ["s_waitcnt lgkmcnt(0)", "v_max3_f32 v11, v12, v13, v14", "v_max_f32 v11, v11, v15"]
    fill += [f"v_sub_f32 v{12+w}, v{12+w}, v11" for w in range(4)]
    fill += [f"v_exp_f32 v{12+w}, v{12+w}" for w in range(4)]
    def comb(nb):
        d = 64 + 4 * nb; y = 32 + nb
        return [f"v_mul_f32 v{y}, v12, v{d}"] + [f"v_fmac_f32 v{y}, v{12+w}, v{d+w}" for w in range(1, 4)] + \
               [f"v_perm_b32 v{y}, v{y}, v63, s{56 + nb % 4}"]
    for nb in range(8):
        if nb >= 2: fill += comb(nb - 2)
        if nb == 5 and es: fill.append("buffer_store_dwordx4 v[32:35], v10, s[44:47], s50 offen sc1")
        for kb in range(4):
            if nb == 0: e(f"s_waitcnt lgkmcnt({4-kb})")
            tile(nb, kb)
            if nb >= 1:
                for _ in range(2):
                    if fill: e(fill.pop(0))
    for x in fill: e(x)
    if not es: e("buffer_store_dwordx4 v[32:35], v10, s[44:47], s50 offen sc1")
    for x in comb(6): e(x)
    e(f"s_nop {2 if es else 1}")
    for x in comb(7): e(x)
    e("buffer_store_dwordx4 v[36:39], v10, s[44:47], s51 offen sc1")
    if rh:
        e("s_cmp_eq_u32 s46, 0"); e(f"s_mov_b32 s46, {WSSZ:#x}"); e("s_cbranch_scc1 L_hf0")
    if stamps:
        e("s_cmp_lg_u32 s33, 0"); e("s_cbranch_scc1 L_end")
        e("s_memrealtime s[84:85]"); e("s_waitcnt lgkmcnt(0)")
        e("s_mov_b64 exec, 1"); e("s_mov_b32 s44, s28"); e("s_mov_b32 s45, s29")
        for k in range(8): e(f"v_mov_b32 v{16+k}, s{82+k}")
        e("s_lshl_b32 s51, s2, 7"); e("s_add_u32 s51, s51, 0x20030")
        e("buffer_store_dwordx4 v[16:19], off, s[44:47], s51")
        e("buffer_store_dwordx4 v[20:23], off, s[44:47], s51 offset:16")
    lab("L_end")
    e("s_endpgm")
    lab("L_balance")
    c("helper 2: every 8 loads of the stream it brings a few rows of wo_A into LDS, and (speed only) compares this")
    c("workgroup's progress with its neighbours' to set the depth of the load queue")
    e("s_mul_i32 s52, s30, 4352"); e(f"s_add_u32 s52, s52, {PROG:#x}")
    e("s_lshl1_add_u32 s53, s31, s52")
    e("v_lshlrev_b32 v42, 1, v0"); e("v_mov_b32 v12, 0")
    e("s_cmp_lg_u32 s31, 0"); e("s_cbranch_scc1 L_pi")
    e("s_mov_b64 exec, 0xff")
    e("buffer_store_dwordx4 v[28:31], v40, s[44:47], s52 offen sc1")
    e("s_cmp_lg_u32 s30, 0"); e("s_cbranch_scc1 L_pi")
    e("s_mov_b64 exec, -1")
    e("v_mul_u32_u24 v13, 0x1100, v0"); e(f"s_mov_b32 s50, {PROG + 0x10000:#x}")
    e("buffer_store_dword v12, v13, s[44:47], s50 offen sc1")
    lab("L_pi")
    e("s_mov_b64 exec, -1")
    e(f"s_mov_b32 s49, {256*n0 - 128}"); e(f"s_mov_b32 s79, {spin << 4}")
    e("s_mov_b32 s60, 0"); e("s_mov_b32 s61, 0")
    hdump(14)
    lab("L_pl")
    e("ds_read_b32 v24, v41 offset:8"); e("s_waitcnt lgkmcnt(0)")
    e("v_readfirstlane_b32 s51, v24"); e("s_sub_i32 s79, s79, 1"); e("s_cmp_lt_i32 s79, 0"); e("s_cbranch_scc1 L_pt")
    e("s_cmp_ge_u32 s51, s49"); e("s_cbranch_scc1 L_pt")
    e("s_sleep 2"); e("s_branch L_pl")
    lab("L_pt")
    if jit & 4:
        for _ in range(2): e("s_sleep 127")
    e("s_add_u32 s48, s51, 128"); e("s_lshr_b32 s48, s48, 8")
    e("s_lshl_b32 s49, s48, 8"); e("s_add_u32 s49, s49, 128"); e(f"s_min_u32 s49, s49, {(76 + pt)*256}")
    e("v_mov_b32 v12, s48")
    e("s_mov_b32 exec_hi, 1")
    e("buffer_load_sshort v13, v42, s[44:47], s52 offen nt")
    e("s_mov_b64 exec, 1")
    e("buffer_store_short v12, off, s[44:47], s53")
    if xk:
        c("column leaders rank the columns every few steps")
        e("s_cmp_lg_u32 s31, 0"); e("s_cbranch_scc1 L_pn")
        e(f"s_lshr_b32 s50, s48, {xp.bit_length()-1}"); e("s_cmp_eq_u32 s50, s60"); e("s_cbranch_scc1 L_pn")
        e("s_mov_b32 s60, s50"); e("s_mul_i32 s50, s50, 0x1100"); e(f"s_add_u32 s50, s50, {PROG + 0x10000:#x}")
        e("v_mov_b32 v14, 2")
        e("buffer_atomic_add v14, off, s[44:47], s50 sc0 sc1")
        e("s_waitcnt vmcnt(0)")
        e("v_readfirstlane_b32 s50, v14"); e("s_sub_i32 s50, s50, 7"); e(f"s_mul_i32 s50, s50, {xk}")
        if ls:
            e(f"s_ashr_i32 s51, s61, {ls}"); e("s_sub_i32 s61, s61, s51"); e("s_add_i32 s61, s61, s50"); e(f"s_ashr_i32 s50, s61, {xs}")
        if li:
            e("s_add_i32 s61, s61, s50"); e(f"s_lshl_b32 s50, s50, {li - xs}"); e("s_add_i32 s50, s50, s61")
            e(f"s_add_i32 s50, s50, {1 << (li - 1)}"); e(f"s_ashr_i32 s50, s50, {li}")
        if ff:
            c("even dies see slightly longer latencies than odd ones: small fixed bias (speed only)")
            e("s_getreg_b32 s51, hwreg(HW_REG_XCC_ID)"); e("s_bitcmp1_b32 s51, 0"); e(f"s_cselect_b32 s51, {-ff}, {ff}"); e("s_add_i32 s50, s50, s51")
        e("v_mov_b32 v14, s50")
        e("buffer_store_short v14, off, s[44:47], s52 offset:64")
        lab("L_pn")
    e("s_mov_b32 exec_lo, -1")
    e("s_waitcnt vmcnt(1)")
    e("v_readlane_b32 s50, v13, 32")
    e("v_subrev_u32 v13, s48, v13")
    for d in range(-2, 3):
        e(f"v_cmp_le_i32 vcc, {d}, v13"); e("s_bcnt1_i32_b64 s51, vcc"); e("s_add_i32 s50, s50, s51")
    e("s_mov_b64 exec, -1")
    e(f"s_sub_i32 s37, s50, {e1}"); e("s_max_i32 s37, s37, 0"); e(f"s_lshr_b32 s37, s37, {g2}"); e("s_min_u32 s37, s37, 16")
    e("s_bfm_b32 s37, s37, 16")
    e(f"s_sub_i32 s50, s50, {e0}"); e("s_abs_i32 s51, s50")
    if db: e(f"s_sub_i32 s51, s51, {db}"); e("s_max_i32 s51, s51, 0")
    e(f"s_lshr_b32 s51, s51, {gs}"); e("s_min_u32 s51, s51, 8")
    e("s_bfm_b32 s51, s51, 0")
    e("s_cmp_lt_i32 s50, 0"); e("s_cselect_b32 s50, 8, 0"); e("s_lshl_b32 s51, s51, s50")
    e("s_or_b32 s51, s51, s37")
    e("v_mov_b32 v12, s51"); e("ds_write_b32 v41, v12 offset:12")
    if tl:
        e("s_cmp_ge_u32 s2, 16"); e("s_cbranch_scc1 L_tl")
        e("s_memrealtime s[90:91]"); e("s_waitcnt lgkmcnt(0)"); e("v_mov_b32 v12, s90")
        e("s_lshl_b32 s50, s2, 9"); e("s_lshl2_add_u32 s50, s48, s50"); e("s_add_u32 s50, s50, 0x30000")
        e("s_mov_b64 exec, 1"); e("buffer_store_dword v12, off, s[44:47], s50"); e("s_mov_b64 exec, -1")
        lab("L_tl")
    e(f"s_cmp_lt_u32 s48, {w0}"); e("s_cbranch_scc1 L_pl")
    e("s_cmp_lt_i32 s36, 0"); e("s_cbranch_scc1 L_pe")
    e("s_cmp_eq_u32 s36, 0"); e("s_cbranch_scc1 L_pw")
    c("wo_A: piece = four rows, one load per column quarter")
    lab("L_pd")
    wo_piece()
    e(f"s_cmp_ge_u32 s48, {26 + pt}"); e("s_cbranch_scc1 L_pq")
    e(f"s_cmp_gt_u32 s36, {wk2}"); e(f"s_cselect_b32 s50, 7, {wk-1}"); e("s_and_b32 s50, s36, s50"); e("s_cbranch_scc1 L_pd")
    e("s_branch L_pl")
    lab("L_pq")
    e("s_cmp_lg_u32 s36, 0"); e("s_cbranch_scc1 L_pd")
    lab("L_pw")
    e("v_mov_b32 v12, 1"); e("s_waitcnt vmcnt(0)"); e("ds_write_b32 v41, v12 offset:24")
    e("ds_read_b32 v63, v41 offset:20")
    wo_tiles()
    e("v_mov_b32 v12, 2"); e("ds_write_b32 v41, v12 offset:24")
    e("s_mov_b32 s36, -1")
    lab("L_pe")
    e(f"s_cmp_lt_u32 s48, {75 + pt}"); e("s_cbranch_scc0 L_hfinal")
    e("s_cmp_lt_i32 s79, 0"); e("s_cbranch_scc0 L_pl")
    e("s_branch L_hfinal")

    if cw: lab("L_last")
    if drop or plain:
        job = None
        for k, t in enumerate(L):
            if t.startswith("  ; job "): job = t[8]
            if t.startswith("  ; helper 0 adds"): job = "q"
            if t.startswith("  ; helper 0: 128"): job = "h"
            if t.startswith("L_pl:"): job = None
            if t.startswith("  ; wo_B slice"): job = "b"
            if t.startswith("  ; wo_A: piece"): job = "a"
            if t.startswith("L_hfinal"): job = "f"
            if t.startswith("L_balance"): job = None
            if job is not None and "buffer_" in t and "off," not in t:
                if job + ("s" if "store" in t else "l") in drop.split("."): L[k] = "  s_nop 0"
                if job + ("s" if "store" in t else "l") in plain.split("."): L[k] = t.replace(" sc1", "" if "store" in t or pdef else " nt")
    L.append('.section .rodata,"a"'); L.append(".p2align 6")
    L.append(f".amdhsa_kernel {NAME}_kernel")
    for s in ("next_free_vgpr 256", "next_free_sgpr 96", "accum_offset 256", "group_segment_fixed_size 0",
              "kernarg_size 104", "user_sgpr_count 2", "user_sgpr_kernarg_segment_ptr 1",
              "system_sgpr_workgroup_id_x 1", "float_denorm_mode_32 3"):
        L.append("  .amdhsa_" + s)
    L.append(".end_amdhsa_kernel")
    return "\n".join(L) + "\n"

if __name__ == "__main__":
    import os
    names = []
    os.makedirs("k", exist_ok=True)
    for spec in sys.argv[1:]:
        p = {}
        for x in spec.split(","):
            if not x: continue
            k, v = x.split("=")
            p[k] = v.replace("+", " ") if k in ("wpol", "drop", "ms", "plain", "kvp", "bb", "cw") else int(v)
            if k == "wpol" and v == "def": p[k] = ""
            if k in ("ms", "cw") and v == "no": p[k] = ""
        fn = "k/k_" + (spec.replace(",", "_").replace("=", "").replace("+", "") or "base") + ".s"
        open(fn, "w").write(gen(**p))
        names.append("dev/" + fn)
    print(" ".join(names))
```
